```python
import torch

def _softmax(x, axis=-1):
    return torch.softmax(x, dim=axis)
def _gelu(x):
    return torch.nn.functional.gelu(x, approximate="tanh")
def _silu(x):
    return torch.nn.functional.silu(x)
def _sigmoid(x):
    return torch.sigmoid(x)
def _layernorm(x, axis=-1, eps=1e-5):
    m = x.mean(dim=axis, keepdim=True)
    v = x.var(dim=axis, keepdim=True, unbiased=False)
    return (x - m) / torch.sqrt(v + eps)
def _scatter_add(tgt, idx, src, axis=0):
    return tgt.clone().index_add_(axis, idx, src)
def _segment_sum(src, seg, n):
    out = torch.zeros((n,) + src.shape[1:], dtype=src.dtype)
    return out.index_add_(0, seg, src)
def _pad(x, pw):
    flat = tuple(v for pair in reversed(pw) for v in pair)
    return torch.nn.functional.pad(x, flat)

kernel_name = 'sequential_preLN__gqa_block_cached__mixer_token_mlp__decode'

def setup_inputs():

    _w = (lambda a: (lambda t: t.to(torch.bfloat16) if t.is_floating_point() else t)(torch.as_tensor(a)))
    def _A_setup():
        B, Sq, D = 8, 1, 512
        Hq, Hkv, Sk, Dh = 32, 8, 4096, 128
        assert Hq % Hkv == 0, (Hq, Hkv)
        return {
            "x": _w((lambda *s: torch.randn(*s, dtype=torch.bfloat16) * 0.05)(B, Sq, D)),
            "k_cache": _w((lambda *s: torch.randn(*s, dtype=torch.bfloat16) * 1.6)(B, Hkv, Sk, Dh)),
            "v_cache": _w((lambda *s: torch.randn(*s, dtype=torch.bfloat16) * 0.8)(B, Hkv, Sk, Dh)),
            "wq": _w((lambda *s: torch.randn(*s, dtype=torch.bfloat16) * 1.6)(D, Hq * Dh) * (D ** -0.5)),
            "wo": _w((lambda *s: torch.randn(*s, dtype=torch.bfloat16) * 0.8)(Hq * Dh, D) * ((Hq * Dh) ** -0.5)),
        }
    _A_in = _A_setup()

    def _B_setup():
        B, S, D, F = 8, 1, 512, 1792
        return {
            "x": _w((lambda *s: torch.randn(*s, dtype=torch.bfloat16) * 0.05)(B, S, D)),
            "w1": _w((lambda *s: torch.randn(*s, dtype=torch.bfloat16) * 0.8)(S, F) * (S ** -0.5)),
            "b1": _w((lambda *s: torch.randn(*s, dtype=torch.bfloat16) * 0.8)(F) * 0.02),
            "w2": _w((lambda *s: torch.randn(*s, dtype=torch.bfloat16) * 0.8)(F, S) * (F ** -0.5)),
            "b2": _w((lambda *s: torch.randn(*s, dtype=torch.bfloat16) * 0.4)(S) * 0.02),
        }
    _B_in = _B_setup()

    return {
        "A_x": _A_in["x"],
        "A_k_cache": _A_in["k_cache"],
        "A_v_cache": _A_in["v_cache"],
        "A_wq": _A_in["wq"],
        "A_wo": _A_in["wo"],
        "B_x": _B_in["x"],
        "B_w1": _B_in["w1"],
        "B_b1": _B_in["b1"],
        "B_w2": _B_in["w2"],
        "B_b2": _B_in["b2"],
    }

def reference(A_x, A_k_cache, A_v_cache, A_wq, A_wo, B_x, B_w1, B_b1, B_w2, B_b2):
    def _A_ref(x, k_cache, v_cache, wq, wo):
        B, Sq, D = x.shape
        Hq, Dh = 32, 128
        Hkv = k_cache.shape[1]
        rep = Hq // Hkv
        q = (lambda x, *d: x.permute(*d))((x @ wq).reshape(B, Sq, Hq, Dh), 0, 2, 1, 3)
        k = (lambda x, n, axis: torch.repeat_interleave(x, n, dim=axis))(k_cache, rep, axis=1)
        v = (lambda x, n, axis: torch.repeat_interleave(x, n, dim=axis))(v_cache, rep, axis=1)
        scores = torch.einsum("bhqd,bhkd->bhqk", q, k) * (Dh ** -0.5)
        p = _softmax(scores, axis=-1)
        o = torch.einsum("bhqk,bhkd->bhqd", p, v)
        return (lambda x, *d: x.permute(*d))(o, 0, 2, 1, 3).reshape(B, Sq, Hq * Dh) @ wo

    def _B_ref(x, w1, b1, w2, b2):
        B, S, D = x.shape
        h = _layernorm(x, axis=-1)
        u = torch.einsum("bsd,sf->bdf", h, w1) + b1
        u = _gelu(u)
        y = torch.einsum("bdf,fs->bds", u, w2) + b2
        return (lambda x, *d: x.permute(*d))(y, 0, 2, 1)

    x = A_x
    h = x + _A_ref(_layernorm(x, axis=-1), A_k_cache, A_v_cache, A_wq, A_wo)
    h2 = h + _B_ref(_layernorm(h, axis=-1), B_w1, B_b1, B_w2, B_b2)
    return h2
```

```python
import sys, struct, math

NAME = "sequential_preLN__gqa_block_cached__mixer_token_mlp__decode"

def f2u(x):
    return struct.unpack("<I", struct.pack("<f", x))[0]

WS_QM = 0x00000
WS_ST = 0x20000
WS_R1 = 0x40000
WS_GT = 0x80000
WS_R2 = 0x90000
WS_DBG = 0x100000
WS_SIZE = 0x400000

RING = 16384
L_MISC = 8 * RING
GW_N = 1792 + 32
L_W1 = L_MISC
L_B1 = L_W1 + GW_N * 4
L_W2 = L_B1 + GW_N * 4
L_QRED = L_W2 + GW_N * 4
L_NONCE = L_QRED + 4096
L_ORED = L_NONCE + 64
LDS_SIZE = L_ORED + 4096
assert LDS_SIZE <= 163840
R_WQ = 3 * 4096
R_WO = 3 * 4096 + 2048
R_XN = 2 * 4096
R_ACC = 0
R_GT = 4096

E0 = 108
NEXP = 24
GT_HALF = NEXP * 128

SPIN_LIMIT = 200000

class Asm:
    def __init__(self):
        self.L = []
        self.vm = 0
        self.lab = 0
    def __call__(self, s):
        self.L.append("  " + s)
    def label(self, n):
        self.L.append(n + ":")
    def newlabel(self, p="L"):
        self.lab += 1
        return f"{p}_{self.lab}"
    def vmem(self, s):
        self(s); self.vm += 1
        return self.vm
    def wait_vm(self, idx, extra=0):
        n = self.vm - idx + extra
        assert 0 <= n <= 63, n
        self(f"s_waitcnt vmcnt({n})")
    def nop(self, n):
        while n > 0:
            k = min(n, 16)
            self(f"s_nop {k-1}")
            n -= k
    def comment(self, s):
        self.L.append("  ; " + s)

def vr(a, n=1):
    return f"v{a}" if n == 1 else f"v[{a}:{a+n-1}]"
def sr(a, n=1):
    return f"s{a}" if n == 1 else f"s[{a}:{a+n-1}]"

DPPM = "row_mask:0xf bank_mask:0xf"

def gen(opts=None):
    o = dict(debug=False, wnt=False)
    if opts: o.update(opts)
    A = Asm()
    S_WAVE = 3
    SK, SV, SWQ, SWO, SWS, SX, SDBG, SOUT, SW1, SB1, SW2 = 8, 12, 16, 20, 24, 28, 32, 36, 40, 44, 48
    S_HKV, S_IDX, S_B, S_S, S_KOFF, S_RING, S_NONCE, S_B2 = 52, 53, 54, 55, 56, 57, 58, 59
    S_T0 = 60
    S_SPIN = 63
    S_P = 64
    S_TMP = 90
    S_EX = 100
    S_F = 64
    S_C0 = 68
    V_L = 0
    V_KD = 1
    V_KR = 5
    V_VO = 9
    V_M0, V_M1 = 10, 11
    V_J, V_G = 12, 13
    V_R1A = 14
    V_MW = 15
    V_WO = 16
    V_ACC = 24
    V_XA = 32
    V_XB = 38
    V_Q = 44
    V_S = 60
    V_VA = 92
    V_KP = 156
    V_T = 220
    V_XF = 252

    A.L.append(f"; @launch grid=(256,1,1) block=(512,1,1) lds={LDS_SIZE}")
    A.L.append('.amdgcn_target "amdgcn-amd-amdhsa--gfx950"')
    A.L.append(".text")
    A.L.append(f".globl {NAME}_kernel")
    A.L.append(".p2align 8")
    A.L.append(f".type {NAME}_kernel,@function")
    A.label(f"{NAME}_kernel")
    A("s_cmp_ge_u32 s2, 256")
    A("s_cbranch_scc1 L_end")
    A(f"s_load_dwordx16 {sr(S_P,16)}, s[0:1], 0")
    A(f"s_load_dwordx8 {sr(S_P+16,8)}, s[0:1], 64")
    A(f"s_load_dwordx2 {sr(S_P+24,2)}, s[0:1], 96")
    A(f"s_memrealtime {sr(S_TMP,2)}")
    A("v_lshrrev_b32 v1, 6, v0")
    A("v_and_b32 v0, 63, v0")
    A(f"v_readfirstlane_b32 {sr(S_WAVE)}, v1")
    A(f"v_and_b32 {vr(V_J)}, 15, v0")
    A(f"v_lshrrev_b32 {vr(V_G)}, 4, v0")
    A(f"s_and_b32 {sr(S_HKV)}, s2, 7")
    A(f"s_lshr_b32 {sr(S_IDX)}, s2, 3")
    A(f"s_lshr_b32 {sr(S_B)}, {sr(S_IDX)}, 2")
    A(f"s_and_b32 {sr(S_S)}, {sr(S_IDX)}, 3")
    A(f"s_lshl_b32 {sr(S_KOFF)}, {sr(S_B)}, 23")
    A(f"s_lshl_b32 {sr(S_TMP+2)}, {sr(S_HKV)}, 20")
    A(f"s_add_u32 {sr(S_KOFF)}, {sr(S_KOFF)}, {sr(S_TMP+2)}")
    A(f"s_lshl_b32 {sr(S_TMP+2)}, {sr(S_S)}, 18")
    A(f"s_add_u32 {sr(S_KOFF)}, {sr(S_KOFF)}, {sr(S_TMP+2)}")
    A(f"s_lshl_b32 {sr(S_TMP+2)}, {sr(S_WAVE)}, 12")
    A(f"s_add_u32 {sr(S_KOFF)}, {sr(S_KOFF)}, {sr(S_TMP+2)}")
    A(f"s_lshl_b32 {sr(S_RING)}, {sr(S_WAVE)}, 14")
    T = V_T
    A(f"v_xor_b32 {vr(T)}, {vr(V_J)}, {vr(V_G)}")
    A(f"v_lshlrev_b32 {vr(T+1)}, 8, {vr(V_G)}")
    A(f"v_lshlrev_b32 {vr(T+2)}, 8, {vr(V_J)}")
    A(f"v_add_u32 {vr(T+2)}, {sr(S_RING)}, {vr(T+2)}")
    for a in range(4):
        A(f"v_xor_b32 {vr(T+3)}, {4*a}, {vr(T)}")
        A(f"v_lshlrev_b32 {vr(T+3)}, 4, {vr(T+3)}")
        A(f"v_add_u32 {vr(V_KD+a)}, {vr(T+1)}, {vr(T+3)}")
        A(f"v_add_u32 {vr(V_KR+a)}, {vr(T+2)}, {vr(T+3)}")
    A(f"v_lshlrev_b32 {vr(V_VO)}, 10, {vr(V_G)}")
    A(f"v_lshl_add_u32 {vr(V_VO)}, {vr(V_J)}, 4, {vr(V_VO)}")
    A(f"v_lshrrev_b32 {vr(T)}, 2, {vr(V_J)}")
    A(f"v_and_b32 {vr(T+1)}, 1, {vr(T)}")
    A(f"v_lshlrev_b32 {vr(T+1)}, 4, {vr(T+1)}")
    A(f"v_mov_b32 {vr(T+2)}, 0xffff")
    A(f"v_lshlrev_b32 {vr(T+2)}, {vr(T+1)}, {vr(T+2)}")
    A(f"v_cmp_gt_u32 vcc, 2, {vr(T)}")
    A.nop(2)
    A(f"v_cndmask_b32 {vr(V_M0)}, 0, {vr(T+2)}, vcc")
    A(f"v_cndmask_b32 {vr(V_M1)}, {vr(T+2)}, 0, vcc")
    for r in (V_XA, V_XA+1, V_XA+4, V_XA+5, V_XB, V_XB+1, V_XB+4, V_XB+5):
        A(f"v_mov_b32 {vr(r)}, 0")
    for r in range(8):
        A(f"v_mov_b32 {vr(V_ACC+r)}, 0")
    V_SEN = T + 4
    for r in range(4):
        A(f"v_mov_b32 {vr(V_SEN+r)}, -1")
    A(f"v_lshlrev_b32 {vr(T+8)}, 4, v0")
    V_L16 = T + 8
    A("s_waitcnt lgkmcnt(0)")
    def srd(dst, p, nbytes):
        A(f"s_mov_b32 {sr(dst)}, {sr(S_P+2*p)}")
        A(f"s_and_b32 {sr(dst+1)}, {sr(S_P+2*p+1)}, 0xffff")
        A(f"s_mov_b32 {sr(dst+2)}, {nbytes}")
        A(f"s_mov_b32 {sr(dst+3)}, 0x20000")
    srd(SDBG, 11, 256)
    srd(SWS, 12, WS_SIZE)
    srd(SX, 0, 8192)
    srd(SWQ, 3, 4 << 20)
    srd(SK, 1, 64 << 20)
    srd(SWO, 4, 4 << 20)
    srd(SW1, 6, 3584)
    srd(SB1, 7, 3584)
    srd(SW2, 8, 3584)
    srd(SV, 2, 64 << 20)
    srd(SOUT, 10, 8192)
    A(f"s_load_dword {sr(S_B2)}, {sr(S_P+18,2)}, 0")
    V_NC = T + 10
    A(f"s_cmp_eq_u32 {sr(S_WAVE)}, 0")
    A("s_cbranch_scc0 L_w1")
    A(f"s_or_b32 {sr(S_TMP)}, {sr(S_TMP)}, 1")
    A(f"v_mov_b32 {vr(V_NC)}, {sr(S_TMP)}")
    A(f"v_mov_b32 {vr(V_NC+1)}, 0")
    A(f"s_lshl_b32 {sr(S_TMP+2)}, {sr(S_HKV)}, 5")
    A(f"v_mov_b32 {vr(T+9)}, {sr(S_TMP+2)}")
    A("s_mov_b64 exec, 1")
    A(f"buffer_atomic_cmpswap {vr(V_NC,2)}, {vr(T+9)}, {sr(SDBG,4)}, 0 offen sc0")
    A("s_mov_b64 exec, -1")
    A("s_branch L_wdone")
    A.label("L_w1")
    A(f"s_cmp_eq_u32 {sr(S_WAVE)}, 1")
    A("s_cbranch_scc0 L_w2")
    A(f"s_lshl_b32 {sr(S_TMP+2)}, {sr(S_HKV)}, 5")
    A(f"s_add_u32 {sr(S_TMP+2)}, {sr(S_TMP+2)}, {sr(S_IDX)}")
    A(f"s_lshl_b32 {sr(S_TMP+2)}, {sr(S_TMP+2)}, 10")
    A(f"s_add_u32 {sr(S_TMP+2)}, {sr(S_TMP+2)}, {WS_R1}")
    A(f"buffer_store_dwordx4 {vr(V_SEN,4)}, {vr(V_L16)}, {sr(SWS,4)}, {sr(S_TMP+2)} offen sc1")
    A("s_branch L_wdone")
    A.label("L_w2")
    A(f"s_cmp_eq_u32 {sr(S_WAVE)}, 2")
    A("s_cbranch_scc0 L_w3")
    A(f"v_lshrrev_b32 {vr(T+9)}, 2, v0")
    A(f"v_lshlrev_b32 {vr(T+9)}, 14, {vr(T+9)}")
    A(f"v_and_b32 {vr(T+12)}, 3, v0")
    A(f"v_lshl_add_u32 {vr(T+9)}, {vr(T+12)}, 4, {vr(T+9)}")
    A(f"s_lshl_b32 {sr(S_TMP+2)}, {sr(S_HKV)}, 11")
    A(f"s_lshl_b32 {sr(S_TMP+3)}, {sr(S_IDX)}, 6")
    A(f"s_add_u32 {sr(S_TMP+2)}, {sr(S_TMP+2)}, {sr(S_TMP+3)}")
    A(f"s_add_u32 {sr(S_TMP+2)}, {sr(S_TMP+2)}, {WS_R2}")
    A("s_mov_b32 exec_hi, 0")
    A(f"buffer_store_dwordx4 {vr(V_SEN,4)}, {vr(T+9)}, {sr(SWS,4)}, {sr(S_TMP+2)} offen sc1")
    A("s_mov_b64 exec, -1")
    A("s_branch L_wdone")
    A.label("L_w3")
    A(f"s_cmp_eq_u32 {sr(S_WAVE)}, 3")
    A("s_cbranch_scc0 L_wdone")
    A(f"s_lshl_b32 {sr(S_TMP+2)}, {sr(S_B)}, 3")
    A(f"s_add_u32 {sr(S_TMP+2)}, {sr(S_TMP+2)}, {sr(S_HKV)}")
    A(f"s_lshl_b32 {sr(S_TMP+2)}, {sr(S_TMP+2)}, 2")
    A(f"s_add_u32 {sr(S_TMP+2)}, {sr(S_TMP+2)}, {sr(S_S)}")
    A(f"s_lshl_b32 {sr(S_TMP+2)}, {sr(S_TMP+2)}, 8")
    A(f"s_add_u32 {sr(S_TMP+2)}, {sr(S_TMP+2)}, {WS_ST}")
    A("s_mov_b64 exec, 0xffff")
    A(f"buffer_store_dwordx4 {vr(V_SEN,4)}, {vr(V_L16)}, {sr(SWS,4)}, {sr(S_TMP+2)} offen sc1")
    A("s_mov_b64 exec, -1")
    A.label("L_wdone")
    WNT = " nt" if o["wnt"] else ""
    V_X = T + 12
    A(f"s_lshl_b32 {sr(S_TMP+2)}, {sr(S_WAVE)}, 10")
    op_x = A.vmem(f"buffer_load_dwordx4 {vr(V_X,4)}, {vr(V_L16)}, {sr(SX,4)}, {sr(S_TMP+2)} offen")
    A(f"v_lshrrev_b32 {vr(T+16)}, 1, v0")
    A(f"v_and_b32 {vr(T+17)}, 1, v0")
    A(f"v_lshlrev_b32 {vr(T+17)}, 4, {vr(T+17)}")
    A(f"v_lshl_add_u32 {vr(T+18)}, {vr(T+16)}, 13, {vr(T+17)}")
    A(f"s_lshl_b32 {sr(S_TMP+2)}, {sr(S_WAVE)}, 19")
    A(f"s_lshl_b32 {sr(S_TMP+3)}, {sr(S_HKV)}, 10")
    A(f"s_add_u32 {sr(S_TMP+2)}, {sr(S_TMP+2)}, {sr(S_TMP+3)}")
    A(f"s_lshl_b32 {sr(S_TMP+3)}, {sr(S_IDX)}, 5")
    A(f"s_add_u32 {sr(S_TMP+2)}, {sr(S_TMP+2)}, {sr(S_TMP+3)}")
    A(f"s_add_u32 {sr(S_TMP+4)}, {sr(S_RING)}, {R_WQ}")
    A(f"s_mov_b32 m0, {sr(S_TMP+4)}")
    A(f"s_add_u32 {sr(S_TMP+5)}, {sr(S_TMP+2)}, {32*8192}")
    A.vmem(f"buffer_load_dwordx4 {vr(T+18)}, {sr(SWQ,4)}, {sr(S_TMP+2)} offen{WNT} lds")
    A(f"s_add_u32 {sr(S_TMP+4)}, {sr(S_RING)}, {R_WQ+1024}")
    A(f"s_mov_b32 m0, {sr(S_TMP+4)}")
    A.nop(1)
    op_wq = A.vmem(f"buffer_load_dwordx4 {vr(T+18)}, {sr(SWQ,4)}, {sr(S_TMP+5)} offen{WNT} lds")
    V_GW = T + 20
    A(f"v_lshlrev_b32 {vr(T+19)}, 3, v0")
    A(f"s_mul_i32 {sr(S_TMP+2)}, {sr(S_WAVE)}, 448")
    A.vmem(f"buffer_load_dwordx2 {vr(V_GW,2)}, {vr(T+19)}, {sr(SW1,4)}, {sr(S_TMP+2)} offen")
    A.vmem(f"buffer_load_dwordx2 {vr(V_GW+2,2)}, {vr(T+19)}, {sr(SB1,4)}, {sr(S_TMP+2)} offen")
    op_gw = A.vmem(f"buffer_load_dwordx2 {vr(V_GW+4,2)}, {vr(T+19)}, {sr(SW2,4)}, {sr(S_TMP+2)} offen")
    op_k = {}
    def k_dma(t):
        slot = t & 3
        A(f"s_add_u32 {sr(S_TMP+4)}, {sr(S_RING)}, {slot*4096}")
        A(f"s_mov_b32 m0, {sr(S_TMP+4)}")
        A(f"s_add_u32 {sr(S_TMP+5)}, {sr(S_KOFF)}, {t*32768}")
        for a in range(4):
            op_k[t] = A.vmem(f"buffer_load_dwordx4 {vr(V_KD+a)}, {sr(SK,4)}, {sr(S_TMP+5)} offen offset:{a*1024} nt lds")
    k_dma(0)
    A(f"v_and_b32 {vr(T+26)}, 7, {vr(T+16)}")
    A(f"v_lshrrev_b32 {vr(T+27)}, 1, {vr(T+26)}")
    A(f"v_lshlrev_b32 {vr(T+27)}, 7, {vr(T+27)}")
    A(f"v_and_b32 {vr(T+26)}, 1, {vr(T+26)}")
    A(f"v_lshl_add_u32 {vr(T+27)}, {vr(T+26)}, 2, {vr(T+27)}")
    A(f"v_lshl_add_u32 {vr(T+27)}, {vr(V_G)}, 3, {vr(T+27)}")
    A(f"v_lshl_add_u32 {vr(T+27)}, {vr(T+27)}, 10, {vr(T+17)}")
    A(f"s_and_b32 {sr(S_TMP+2)}, {sr(S_WAVE)}, 1")
    A(f"s_lshl_b32 {sr(S_TMP+2)}, {sr(S_TMP+2)}, 6")
    A(f"s_lshr_b32 {sr(S_TMP+3)}, {sr(S_WAVE)}, 1")
    A(f"s_add_u32 {sr(S_TMP+2)}, {sr(S_TMP+2)}, {sr(S_TMP+3)}")
    A(f"s_lshl_b32 {sr(S_TMP+3)}, {sr(S_HKV)}, 9")
    A(f"s_add_u32 {sr(S_TMP+2)}, {sr(S_TMP+2)}, {sr(S_TMP+3)}")
    A(f"s_lshl_b32 {sr(S_TMP+2)}, {sr(S_TMP+2)}, 10")
    A(f"s_lshl_b32 {sr(S_TMP+3)}, {sr(S_IDX)}, 5")
    A(f"s_add_u32 {sr(S_TMP+2)}, {sr(S_TMP+2)}, {sr(S_TMP+3)}")
    A(f"s_add_u32 {sr(S_TMP+4)}, {sr(S_RING)}, {R_WO}")
    A(f"s_mov_b32 m0, {sr(S_TMP+4)}")
    A(f"s_add_u32 {sr(S_TMP+5)}, {sr(S_TMP+2)}, {32*1024}")
    A.vmem(f"buffer_load_dwordx4 {vr(T+27)}, {sr(SWO,4)}, {sr(S_TMP+2)} offen{WNT} lds")
    A(f"s_add_u32 {sr(S_TMP+4)}, {sr(S_RING)}, {R_WO+1024}")
    A(f"s_mov_b32 m0, {sr(S_TMP+4)}")
    A.nop(1)
    op_wo = A.vmem(f"buffer_load_dwordx4 {vr(T+27)}, {sr(SWO,4)}, {sr(S_TMP+5)} offen{WNT} lds")
    k_dma(1)

    def allreduce(op, regs, tmps):
        for dpp in ("quad_perm:[1,0,3,2]", "quad_perm:[2,3,0,1]", "row_half_mirror", "row_mirror"):
            A.nop(max(0, 2 - (len(regs) - 1)))
            for r in regs:
                A(f"{op}_dpp {vr(r)}, {vr(r)}, {vr(r)} {dpp} {DPPM}")
        xreduce(op, regs, tmps)
    def xreduce(op, regs, tmps):
        for pl in ("v_permlane16_swap_b32", "v_permlane32_swap_b32"):
            for r, t in zip(regs, tmps):
                A(f"v_mov_b32 {vr(t)}, {vr(r)}")
            A.nop(2)
            for r, t in zip(regs, tmps):
                A(f"{pl} {vr(r)}, {vr(t)}")
            A.nop(1)
            for r, t in zip(regs, tmps):
                A(f"{op} {vr(r)}, {vr(r)}, {vr(t)}")
    def rne1(dst, src):
        A(f"v_cvt_pk_bf16_f32 {vr(dst)}, {vr(src)}, {vr(src)}")
        A(f"v_lshlrev_b32 {vr(dst)}, 16, {vr(dst)}")
    def rne2(a, b, t):
        A(f"v_cvt_pk_bf16_f32 {vr(t)}, {vr(a)}, {vr(b)}")
        A(f"v_lshlrev_b32 {vr(a)}, 16, {vr(t)}")
        A(f"v_and_b32 {vr(b)}, 0xffff0000, {vr(t)}")
    def unpack8(dst, src):
        for i in range(4):
            A(f"v_lshlrev_b32 {vr(dst+2*i)}, 16, {vr(src+i)}")
            A(f"v_and_b32 {vr(dst+2*i+1)}, 0xffff0000, {vr(src+i)}")
    def layernorm(x, out, t):
        A(f"v_add_f32 {vr(t)}, {vr(x)}, {vr(x+1)}")
        A(f"v_add_f32 {vr(t+1)}, {vr(x+2)}, {vr(x+3)}")
        A(f"v_add_f32 {vr(t+2)}, {vr(x+4)}, {vr(x+5)}")
        A(f"v_add_f32 {vr(t+3)}, {vr(x+6)}, {vr(x+7)}")
        A(f"v_add_f32 {vr(t)}, {vr(t)}, {vr(t+1)}")
        A(f"v_add_f32 {vr(t+2)}, {vr(t+2)}, {vr(t+3)}")
        A(f"v_add_f32 {vr(t)}, {vr(t)}, {vr(t+2)}")
        allreduce("v_add_f32", [t], [t+1])
        A(f"v_mul_f32 {vr(t)}, {hex(f2u(1/512))}, {vr(t)}")
        for i in range(8):
            A(f"v_sub_f32 {vr(t+4+i)}, {vr(x+i)}, {vr(t)}")
        A(f"v_mul_f32 {vr(t+1)}, {vr(t+4)}, {vr(t+4)}")
        A(f"v_mul_f32 {vr(t+2)}, {vr(t+5)}, {vr(t+5)}")
        for i in range(2, 8, 2):
            A(f"v_fmac_f32 {vr(t+1)}, {vr(t+4+i)}, {vr(t+4+i)}")
            A(f"v_fmac_f32 {vr(t+2)}, {vr(t+5+i)}, {vr(t+5+i)}")
        A(f"v_add_f32 {vr(t+1)}, {vr(t+1)}, {vr(t+2)}")
        allreduce("v_add_f32", [t+1], [t+2])
        A(f"v_mul_f32 {vr(t+1)}, {hex(f2u(1/512))}, {vr(t+1)}")
        rne2(t, t+1, t+2)
        A(f"v_add_f32 {vr(t+1)}, {hex(f2u(1e-5))}, {vr(t+1)}")
        rne1(t+1, t+1)
        A(f"v_sqrt_f32 {vr(t+1)}, {vr(t+1)}")
        A.nop(1)
        rne1(t+1, t+1)
        A(f"v_rcp_f32 {vr(t+2)}, {vr(t+1)}")
        for i in range(8):
            A(f"v_sub_f32 {vr(t+4+i)}, {vr(x+i)}, {vr(t)}")
        for i in range(0, 8, 2):
            rne2(t+4+i, t+5+i, t+3)
        for i in range(8):
            A(f"v_mul_f32 {vr(out+i)}, {vr(t+4+i)}, {vr(t+2)}")
        for i in range(8):
            A(f"v_fma_f32 {vr(t+4+i)}, -{vr(out+i)}, {vr(t+1)}, {vr(t+4+i)}")
        for i in range(8):
            A(f"v_fmac_f32 {vr(out+i)}, {vr(t+4+i)}, {vr(t+2)}")

    XF = V_VA
    LT = V_VA + 8
    A.wait_vm(op_x)
    unpack8(XF, V_X)
    layernorm(XF, XF, LT)
    for i in range(4):
        A(f"v_cvt_pk_bf16_f32 {vr(LT+i)}, {vr(XF+2*i)}, {vr(XF+2*i+1)}")
    A(f"v_add_u32 {vr(LT+4)}, {sr(S_RING)}, {vr(V_L16)}")
    A(f"ds_write_b128 {vr(LT+4)}, {vr(LT,4)} offset:{R_XN}")
    A.wait_vm(op_gw)
    GWF = V_VA + 24
    for k in range(3):
        for i in range(2):
            A(f"v_lshlrev_b32 {vr(GWF+4*k+2*i)}, 16, {vr(V_GW+2*k+i)}")
            A(f"v_and_b32 {vr(GWF+4*k+2*i+1)}, 0xffff0000, {vr(V_GW+2*k+i)}")
    A(f"s_mul_i32 {sr(S_TMP+2)}, {sr(S_WAVE)}, 896")
    A(f"v_add_u32 {vr(LT+5)}, {sr(S_TMP+2)}, {vr(V_L16)}")
    A(f"v_add_u32 {vr(LT+5)}, {L_W1}, {vr(LT+5)}")
    A(f"ds_write_b128 {vr(LT+5)}, {vr(GWF,4)}")
    A(f"ds_write_b128 {vr(LT+5)}, {vr(GWF+4,4)} offset:{L_B1-L_W1}")
    A(f"ds_write_b128 {vr(LT+5)}, {vr(GWF+8,4)} offset:{L_W2-L_W1}")
    A(f"s_cmp_eq_u32 {sr(S_WAVE)}, 0")
    A("s_cbranch_scc0 L_nonce_done")
    A(f"v_readfirstlane_b32 {sr(S_TMP+2)}, {vr(V_NC)}")
    A.nop(1)
    A(f"s_cmp_eq_u32 {sr(S_TMP+2)}, 0")
    A(f"s_cselect_b32 {sr(S_TMP+2)}, {sr(S_TMP)}, {sr(S_TMP+2)}")
    A(f"v_mov_b32 {vr(LT+6)}, {sr(S_TMP+2)}")
    A(f"v_mov_b32 {vr(LT+7)}, {L_NONCE}")
    A(f"ds_write_b32 {vr(LT+7)}, {vr(LT+6)}")
    A.label("L_nonce_done")
    V_WQ = V_VA + 40
    A(f"v_lshlrev_b32 {vr(LT+8)}, 8, {vr(V_G)}")
    A(f"v_lshl_add_u32 {vr(LT+8)}, {vr(V_J)}, 3, {vr(LT+8)}")
    A(f"v_add_u32 {vr(LT+8)}, {sr(S_RING)}, {vr(LT+8)}")
    V_TRA = T + 9
    A(f"v_mov_b32 {vr(V_TRA)}, {vr(LT+8)}")
    for u in range(2):
        for h in range(2):
            A(f"ds_read_b64_tr_b16 {vr(V_WQ+4*u+2*h,2)}, {vr(LT+8)} offset:{R_WQ+u*1024+h*128}")
    A("s_waitcnt lgkmcnt(0)")
    A("s_barrier")
    A(f"v_and_b32 {vr(LT)}, 7, {vr(V_J)}")
    A(f"v_lshlrev_b32 {vr(LT)}, 14, {vr(LT)}")
    A(f"v_lshl_add_u32 {vr(LT)}, {vr(V_G)}, 4, {vr(LT)}")
    A(f"s_lshl_b32 {sr(S_TMP+2)}, {sr(S_WAVE)}, 7")
    A(f"v_add_u32 {vr(LT)}, {sr(S_TMP+2)}, {vr(LT)}")
    V_XA_ = V_VA + 48
    A(f"ds_read_b128 {vr(V_XA_,4)}, {vr(LT)} offset:{R_XN}")
    A(f"ds_read_b128 {vr(V_XA_+4,4)}, {vr(LT)} offset:{R_XN+64}")
    A(f"v_mov_b32 {vr(LT+1)}, {L_NONCE}")
    A(f"ds_read_b32 {vr(LT+2)}, {vr(LT+1)}")
    V_QD = V_VA + 56
    A("s_waitcnt lgkmcnt(0)")
    A(f"v_mfma_f32_16x16x32_bf16 {vr(V_QD,4)}, {vr(V_XA_,4)}, {vr(V_WQ,4)}, 0")
    A(f"v_mfma_f32_16x16x32_bf16 {vr(V_QD,4)}, {vr(V_XA_+4,4)}, {vr(V_WQ+4,4)}, {vr(V_QD,4)}")
    A(f"v_readfirstlane_b32 {sr(S_NONCE)}, {vr(LT+2)}")
    A(f"s_lshl_b32 {sr(S_TMP+2)}, {sr(S_WAVE)}, 9")
    A(f"s_add_u32 {sr(S_TMP+2)}, {sr(S_TMP+2)}, {L_QRED}")
    A(f"v_add_u32 {vr(LT+3)}, {sr(S_TMP+2)}, {vr(V_L16)}")
    A.nop(6)
    A("s_mov_b32 exec_hi, 0")
    A(f"ds_write_b128 {vr(LT+3)}, {vr(V_QD,4)}")
    A("s_mov_b64 exec, -1")
    A("s_waitcnt lgkmcnt(0)")
    A("s_barrier")
    A(f"s_lshr_b32 {sr(S_TMP+2)}, {sr(S_WAVE)}, 2")
    A(f"s_lshl_b32 {sr(S_TMP+2)}, {sr(S_TMP+2)}, 8")
    A(f"s_and_b32 {sr(S_TMP+3)}, {sr(S_WAVE)}, 3")
    A(f"s_lshl_b32 {sr(S_TMP+3)}, {sr(S_TMP+3)}, 2")
    A(f"s_add_u32 {sr(S_TMP+2)}, {sr(S_TMP+2)}, {sr(S_TMP+3)}")
    A(f"s_add_u32 {sr(S_TMP+2)}, {sr(S_TMP+2)}, {L_QRED}")
    A(f"v_lshlrev_b32 {vr(LT)}, 9, {vr(V_G)}")
    A(f"v_lshl_add_u32 {vr(LT)}, {vr(V_J)}, 4, {vr(LT)}")
    A(f"v_add_u32 {vr(LT)}, {sr(S_TMP+2)}, {vr(LT)}")
    A(f"ds_read_b32 {vr(LT+1)}, {vr(LT)}")
    A(f"ds_read_b32 {vr(LT+2)}, {vr(LT)} offset:2048")
    k_dma(2)
    A("s_waitcnt lgkmcnt(0)")
    A(f"v_add_f32 {vr(LT+1)}, {vr(LT+1)}, {vr(LT+2)}")
    xreduce("v_add_f32", [LT+1], [LT+2])
    A.nop(2)
    A(f"v_mov_b32_dpp {vr(LT+2)}, {vr(LT+1)} quad_perm:[1,0,3,2] {DPPM}")
    A(f"v_cvt_pk_bf16_f32 {vr(LT+4)}, {vr(LT+1)}, {vr(LT+2)}")
    A(f"v_mov_b32 {vr(LT+5)}, {sr(S_NONCE)}")
    A(f"s_lshl_b32 {sr(S_TMP+2)}, {sr(S_WAVE)}, 14")
    A(f"s_lshl_b32 {sr(S_TMP+3)}, {sr(S_HKV)}, 11")
    A(f"s_add_u32 {sr(S_TMP+2)}, {sr(S_TMP+2)}, {sr(S_TMP+3)}")
    A(f"s_lshl_b32 {sr(S_TMP+3)}, {sr(S_IDX)}, 6")
    A(f"s_add_u32 {sr(S_TMP+2)}, {sr(S_TMP+2)}, {sr(S_TMP+3)}")
    A(f"v_lshlrev_b32 {vr(LT+3)}, 2, v0")
    A("s_mov_b64 exec, 0x5555")
    A.vmem(f"buffer_store_dwordx2 {vr(LT+4,2)}, {vr(LT+3)}, {sr(SWS,4)}, {sr(S_TMP+2)} offen sc1")
    A("s_mov_b64 exec, -1")
    A.wait_vm(op_wo)
    for u in range(2):
        for h in range(2):
            A(f"ds_read_b64_tr_b16 {vr(V_WO+4*u+2*h,2)}, {vr(V_TRA)} offset:{R_WO+u*1024+h*128}")
    A("s_waitcnt lgkmcnt(0)")
    k_dma(3)

    A(f"s_mul_i32 {sr(S_TMP+2)}, {sr(S_WAVE)}, 768")
    A(f"s_add_u32 {sr(S_TMP+2)}, {sr(S_TMP+2)}, s2")
    for k in range(3):
        A(f"s_add_u32 {sr(S_TMP+3)}, {sr(S_TMP+2)}, {256*k}")
        A(f"s_cmp_ge_u32 {sr(S_TMP+3)}, {GT_HALF}")
        A(f"s_cselect_b32 {sr(S_TMP+4)}, {0x8000 - GT_HALF}, 0")
        A(f"s_add_u32 {sr(S_TMP+3)}, {sr(S_TMP+3)}, {sr(S_TMP+4)}")
        A(f"s_add_u32 {sr(S_TMP+3)}, {sr(S_TMP+3)}, {E0*128}")
        A(f"s_lshl_b32 {sr(S_T0+k)}, {sr(S_TMP+3)}, 16")
    K0 = -2.0 * math.sqrt(2.0 / math.pi) * math.log2(math.e)
    K1 = K0 * 0.044715
    G_W = V_VA
    G_A = V_VA + 12
    G_B = V_VA + 24
    G_P = V_VA + 36
    G_ACC = T + 0
    G_K0 = T + 3
    G_AD = T + 4
    A(f"v_mov_b32 {vr(G_K0)}, {hex(f2u(K0))}")
    A(f"v_add_u32 {vr(G_AD)}, {L_W1}, {vr(V_L16)}")
    for k in range(3):
        A(f"v_mov_b32 {vr(G_ACC+k)}, 0")
    def g_chunk(c, nt=3, tsrc=None):
        tsrc = tsrc or [sr(S_T0+k) for k in range(3)]
        A(f"ds_read_b128 {vr(G_W,4)}, {vr(G_AD)} offset:{c*1024}")
        A(f"ds_read_b128 {vr(G_W+4,4)}, {vr(G_AD)} offset:{c*1024 + L_B1-L_W1}")
        A(f"ds_read_b128 {vr(G_W+8,4)}, {vr(G_AD)} offset:{c*1024 + L_W2-L_W1}")
        A("s_waitcnt lgkmcnt(0)")
        n = nt * 4
        E = [(k, f) for k in range(nt) for f in range(4)]
        for i, (k, f) in enumerate(E):
            A(f"v_mul_f32 {vr(G_A+i)}, {tsrc[k]}, {vr(G_W+f)}")
        def round_all(R):
            for i in range(0, n, 2):
                A(f"v_cvt_pk_bf16_f32 {vr(G_P+i//2)}, {vr(R+i)}, {vr(R+i+1)}")
            for i in range(0, n, 2):
                A(f"v_lshlrev_b32 {vr(R+i)}, 16, {vr(G_P+i//2)}")
                A(f"v_and_b32 {vr(R+i+1)}, 0xffff0000, {vr(G_P+i//2)}")
        round_all(G_A)
        for i, (k, f) in enumerate(E):
            A(f"v_add_f32 {vr(G_A+i)}, {vr(G_A+i)}, {vr(G_W+4+f)}")
        round_all(G_A)
        for i in range(n):
            A(f"v_mul_f32 {vr(G_B+i)}, {vr(G_A+i)}, {vr(G_A+i)}")
        for i in range(n):
            A(f"v_fmamk_f32 {vr(G_B+i)}, {vr(G_B+i)}, {hex(f2u(K1))}, {vr(G_K0)}")
        for i in range(n):
            A(f"v_mul_f32 {vr(G_B+i)}, {vr(G_A+i)}, {vr(G_B+i)}")
        for i in range(n):
            A(f"v_exp_f32 {vr(G_B+i)}, {vr(G_B+i)}")
        for i in range(n):
            A(f"v_add_f32 {vr(G_B+i)}, 1.0, {vr(G_B+i)}")
        for i in range(n):
            A(f"v_rcp_f32 {vr(G_B+i)}, {vr(G_B+i)}")
        for i in range(n):
            A(f"v_mul_f32 {vr(G_B+i)}, {vr(G_A+i)}, {vr(G_B+i)}")
        round_all(G_B)
        for i, (k, f) in enumerate(E):
            A(f"v_fmac_f32 {vr(G_ACC+k)}, {vr(G_B+i)}, {vr(G_W+8+f)}")
    def g_finish(nt):
        allreduce("v_add_f32", [G_ACC+k for k in range(nt)], [G_P+k for k in range(nt)])
        for k in range(nt):
            rne1(G_ACC+k, G_ACC+k)
        for k in range(nt):
            A(f"v_add_f32 {vr(G_ACC+k)}, {sr(S_B2)}, {vr(G_ACC+k)}")
        for k in range(nt):
            rne1(G_ACC+k, G_ACC+k)
    A(f"s_lshl_b32 {sr(S_B2)}, {sr(S_B2)}, 16")

    gsched = {0: [0, 1], 1: [2, 3], 2: [4, 5], 3: [6]}
    for t in range(4):
        A.comment(f"park K tile {t}")
        A.wait_vm(op_k[t])
        for ks in range(4):
            A(f"ds_read_b128 {vr(V_KP+16*t+4*ks,4)}, {vr(V_KR+ks)} offset:{(t&3)*4096}")
        A("s_waitcnt lgkmcnt(0)")
        k_dma(t + 4)
        if t == 3:
            A(f"v_and_b32 {vr(T+10)}, 3, {vr(V_J)}")
            A(f"v_lshlrev_b32 {vr(T+10)}, 9, {vr(T+10)}")
            A(f"v_lshl_add_u32 {vr(T+10)}, {vr(V_G)}, 5, {vr(T+10)}")
            A(f"s_lshl_b32 {sr(S_TMP+6)}, {sr(S_B)}, 14")
            A(f"s_lshl_b32 {sr(S_TMP+3)}, {sr(S_HKV)}, 11")
            A(f"s_add_u32 {sr(S_TMP+6)}, {sr(S_TMP+6)}, {sr(S_TMP+3)}")
            V_QA = T + 10
            def q_loads(count):
                last = None
                for ks in range(4):
                    for h in range(2):
                        s = f"buffer_load_dwordx4 {vr(V_S+8*ks+4*h,4)}, {vr(V_QA)}, {sr(SWS,4)}, {sr(S_TMP+6)} offen offset:{ks*128+h*16} sc1"
                        if count: last = A.vmem(s)
                        else: A(s)
                return last
            op_q = q_loads(True)
        for c in gsched[t]:
            g_chunk(c)
    g_finish(3)
    A(f"v_cmp_eq_u32 vcc, 1, v0")
    A.nop(2)
    A(f"v_cndmask_b32 {vr(G_P)}, {vr(G_ACC)}, {vr(G_ACC+1)}, vcc")
    A(f"v_cmp_eq_u32 vcc, 2, v0")
    A.nop(2)
    A(f"v_cndmask_b32 {vr(G_P)}, {vr(G_P)}, {vr(G_ACC+2)}, vcc")
    A(f"v_mov_b32 {vr(G_P+1)}, {sr(S_NONCE)}")
    A(f"v_lshlrev_b32 {vr(G_P+2)}, 11, v0")
    A(f"s_mul_i32 {sr(S_TMP+2)}, {sr(S_WAVE)}, {768*8}")
    A(f"s_lshl_b32 {sr(S_TMP+3)}, s2, 3")
    A(f"s_add_u32 {sr(S_TMP+2)}, {sr(S_TMP+2)}, {sr(S_TMP+3)}")
    A(f"s_add_u32 {sr(S_TMP+2)}, {sr(S_TMP+2)}, {WS_GT}")
    A("s_mov_b64 exec, 7")
    A.vmem(f"buffer_store_dwordx2 {vr(G_P,2)}, {vr(G_P+2)}, {sr(SWS,4)}, {sr(S_TMP+2)} offen sc1")
    A("s_mov_b64 exec, -1")

    op_v = {}
    def v_load(t):
        base = (V_VA + 16 * t) if t < 4 else (V_KP + 16 * (t - 4))
        A(f"s_add_u32 {sr(S_TMP+5)}, {sr(S_KOFF)}, {t*32768}")
        for u in range(4):
            op_v[t] = A.vmem(f"buffer_load_dwordx4 {vr(base+4*u,4)}, {vr(V_VO)}, {sr(SV,4)}, {sr(S_TMP+5)} offen offset:{u*256} nt")
    for t in range(4):
        A.wait_vm(op_k[t + 4])
        v_load(t)
    A.wait_vm(op_q)
    A(f"s_mov_b32 {sr(S_SPIN)}, {SPIN_LIMIT}")
    A.label("L_qchk")
    A(f"v_xor_b32 {vr(T+12)}, {sr(S_NONCE)}, {vr(V_S+1)}")
    for i in range(1, 16):
        A(f"v_xor_b32 {vr(T+13)}, {sr(S_NONCE)}, {vr(V_S+2*i+1)}")
        A(f"v_or_b32 {vr(T+12)}, {vr(T+12)}, {vr(T+13)}")
    A(f"v_cmp_ne_u32 vcc, 0, {vr(T+12)}")
    A("s_cbranch_vccz L_qok")
    A(f"s_sub_u32 {sr(S_SPIN)}, {sr(S_SPIN)}, 1")
    A("s_cbranch_scc1 L_qok")
    q_loads(False)
    A("s_waitcnt vmcnt(0)")
    A("s_branch L_qchk")
    A.label("L_qok")
    for i in range(16):
        A(f"v_mov_b32 {vr(V_Q+i)}, {vr(V_S+2*i)}")
    A.nop(2)
    for t in range(4):
        for ks in range(4):
            c = "0" if ks == 0 else vr(V_S+4*t, 4)
            A(f"v_mfma_f32_16x16x32_bf16 {vr(V_S+4*t,4)}, {vr(V_KP+16*t+4*ks,4)}, {vr(V_Q+4*ks,4)}, {c}")
    for t in range(4):
        for ks in range(4):
            A(f"ds_read_b128 {vr(V_KP+16*t+4*ks,4)}, {vr(V_KR+ks)} offset:{t*4096}")
    for t in range(4):
        A(f"s_waitcnt lgkmcnt({12-4*t})")
        for ks in range(4):
            c = "0" if ks == 0 else vr(V_S+16+4*t, 4)
            A(f"v_mfma_f32_16x16x32_bf16 {vr(V_S+16+4*t,4)}, {vr(V_KP+16*t+4*ks,4)}, {vr(V_Q+4*ks,4)}, {c}")
    v_load(4)
    v_load(5)
    SC = hex(f2u(128 ** -0.5))
    LOG2E = math.log2(math.e)
    P = T
    for t0 in range(0, 32, 16):
        for i in range(0, 16, 2):
            A(f"v_cvt_pk_bf16_f32 {vr(P+i//2)}, {vr(V_S+t0+i)}, {vr(V_S+t0+i+1)}")
        for i in range(0, 16, 2):
            A(f"v_lshlrev_b32 {vr(V_S+t0+i)}, 16, {vr(P+i//2)}")
            A(f"v_and_b32 {vr(V_S+t0+i+1)}, 0xffff0000, {vr(P+i//2)}")
        for i in range(16):
            A(f"v_mul_f32 {vr(V_S+t0+i)}, {SC}, {vr(V_S+t0+i)}")
        for i in range(0, 16, 2):
            A(f"v_cvt_pk_bf16_f32 {vr(P+i//2)}, {vr(V_S+t0+i)}, {vr(V_S+t0+i+1)}")
        for i in range(0, 16, 2):
            A(f"v_lshlrev_b32 {vr(V_S+t0+i)}, 16, {vr(P+i//2)}")
            A(f"v_and_b32 {vr(V_S+t0+i+1)}, 0xffff0000, {vr(P+i//2)}")
    for i in range(4):
        A(f"v_max3_f32 {vr(P+i)}, {vr(V_S+8*i)}, {vr(V_S+8*i+1)}, {vr(V_S+8*i+2)}")
    for i in range(4):
        A(f"v_max3_f32 {vr(P+i)}, {vr(P+i)}, {vr(V_S+8*i+3)}, {vr(V_S+8*i+4)}")
    for i in range(4):
        A(f"v_max3_f32 {vr(P+i)}, {vr(P+i)}, {vr(V_S+8*i+5)}, {vr(V_S+8*i+6)}")
    for i in range(4):
        A(f"v_max_f32 {vr(P+i)}, {vr(P+i)}, {vr(V_S+8*i+7)}")
    A(f"v_max3_f32 {vr(V_MW)}, {vr(P)}, {vr(P+1)}, {vr(P+2)}")
    A(f"v_max_f32 {vr(V_MW)}, {vr(V_MW)}, {vr(P+3)}")
    xreduce("v_max_f32", [V_MW], [P])
    A(f"v_mul_f32 {vr(P)}, {hex(f2u(-LOG2E))}, {vr(V_MW)}")
    A(f"s_mov_b32 {sr(S_C0)}, {hex(f2u(LOG2E))}")
    for i in range(32):
        A(f"v_fma_f32 {vr(V_S+i)}, {vr(V_S+i)}, {sr(S_C0)}, {vr(P)}")
    for i in range(32):
        A(f"v_exp_f32 {vr(V_S+i)}, {vr(V_S+i)}")
    for i in range(4):
        A(f"v_add_f32 {vr(P+1+i)}, {vr(V_S+8*i)}, {vr(V_S+8*i+1)}")
    for k in range(2, 8):
        for i in range(4):
            A(f"v_add_f32 {vr(P+1+i)}, {vr(P+1+i)}, {vr(V_S+8*i+k)}")
    A(f"v_add_f32 {vr(P+1)}, {vr(P+1)}, {vr(P+2)}")
    A(f"v_add_f32 {vr(P+3)}, {vr(P+3)}, {vr(P+4)}")
    A(f"v_add_f32 {vr(P+1)}, {vr(P+1)}, {vr(P+3)}")
    xreduce("v_add_f32", [P+1], [P+2])
    for i in range(32):
        A(f"v_cvt_pk_bf16_f32 {vr(V_S+i)}, {vr(V_S+i)}, {vr(V_S+i)}")
    A(f"v_min_u32 {vr(P+4)}, -2, {vr(V_MW)}")
    A(f"v_min_u32 {vr(P+5)}, -2, {vr(P+1)}")
    A(f"s_lshl_b32 {sr(S_TMP+7)}, {sr(S_B)}, 3")
    A(f"s_add_u32 {sr(S_TMP+7)}, {sr(S_TMP+7)}, {sr(S_HKV)}")
    A(f"s_lshl_b32 {sr(S_TMP+7)}, {sr(S_TMP+7)}, 10")
    A(f"s_add_u32 {sr(S_TMP+7)}, {sr(S_TMP+7)}, {WS_ST}")
    A(f"s_lshl_b32 {sr(S_TMP+2)}, {sr(S_S)}, 8")
    A(f"s_lshl_b32 {sr(S_TMP+3)}, {sr(S_WAVE)}, 5")
    A(f"s_add_u32 {sr(S_TMP+2)}, {sr(S_TMP+2)}, {sr(S_TMP+3)}")
    A(f"s_add_u32 {sr(S_TMP+2)}, {sr(S_TMP+2)}, {sr(S_TMP+7)}")
    A(f"v_lshlrev_b32 {vr(P+6)}, 3, v0")
    A("s_mov_b64 exec, 15")
    A.vmem(f"buffer_store_dwordx2 {vr(P+4,2)}, {vr(P+6)}, {sr(SWS,4)}, {sr(S_TMP+2)} offen sc1")
    A("s_mov_b64 exec, -1")
    A(f"v_lshlrev_b32 {vr(V_L16)}, 4, v0")

    flip = [0]
    def pv(t):
        base = (V_VA + 16 * t) if t < 4 else (V_KP + 16 * (t - 4))
        A.wait_vm(op_v[t])
        for u in range(4):
            X = V_XA if flip[0] == 0 else V_XB
            flip[0] ^= 1
            A(f"v_and_b32 {vr(X+2)}, {vr(V_S+4*t+u)}, {vr(V_M0)}")
            A(f"v_and_b32 {vr(X+3)}, {vr(V_S+4*t+u)}, {vr(V_M1)}")
            A.nop(2)
            A(f"v_mfma_f32_16x16x32_bf16 {vr(V_ACC,4)}, {vr(X+2,4)}, {vr(base+4*u,4)}, {vr(V_ACC,4)}")
            A(f"v_mfma_f32_16x16x32_bf16 {vr(V_ACC+4,4)}, {vr(X,4)}, {vr(base+4*u,4)}, {vr(V_ACC+4,4)}")
    pv(0)
    pv(1)
    V_ST = T + 12
    V_GL = V_Q
    GREG = [V_Q, V_Q+4, V_Q+8, V_Q+12, T+16, T+20]
    V_NA = T + 24
    A(f"s_cmp_lt_u32 s2, 8")
    A("s_cbranch_scc0 L_nogl")
    A(f"s_mul_i32 {sr(S_TMP+8)}, {sr(S_WAVE)}, 6144")
    A(f"s_add_u32 {sr(S_TMP+8)}, {sr(S_TMP+8)}, {WS_GT}")
    A(f"s_add_u32 {sr(S_TMP+9)}, {sr(S_TMP+8)}, 4096")
    A(f"v_and_b32 {vr(T+26)}, 3, v0")
    A(f"v_lshlrev_b32 {vr(T+26)}, 6, {vr(T+26)}")
    def g_loads():
        for i in range(6):
            so = S_TMP+8 if i < 4 else S_TMP+9
            A(f"buffer_load_dwordx4 {vr(GREG[i],4)}, {vr(V_L16)}, {sr(SWS,4)}, {sr(so)} offen offset:{(i&3)*1024} sc1")
        A(f"buffer_load_dword {vr(V_NA)}, {vr(T+26)}, {sr(SDBG,4)}, 0 offen sc1")
        A(f"buffer_load_dword {vr(V_NA+1)}, {vr(T+26)}, {sr(SDBG,4)}, 0 offen offset:32 sc1")
    g_loads()
    A(f"s_lshl_b32 {sr(S_TMP+2)}, s2, 10")
    A(f"buffer_load_dwordx4 {vr(V_XF,4)}, {vr(V_L16)}, {sr(SX,4)}, {sr(S_TMP+2)} offen")
    A.label("L_nogl")
    op_st = A.vmem(f"buffer_load_dwordx4 {vr(V_ST,4)}, {vr(V_L16)}, {sr(SWS,4)}, {sr(S_TMP+7)} offen sc1")
    v_load(6)
    v_load(7)
    pv(2); pv(3); pv(4); pv(5)
    A.wait_vm(op_st)
    A(f"s_mov_b32 {sr(S_SPIN)}, {SPIN_LIMIT}")
    A.label("L_stchk")
    A(f"v_max3_u32 {vr(T)}, {vr(V_ST)}, {vr(V_ST+1)}, {vr(V_ST+2)}")
    A(f"v_max_u32 {vr(T)}, {vr(T)}, {vr(V_ST+3)}")
    A(f"v_cmp_eq_u32 vcc, -1, {vr(T)}")
    A("s_cbranch_vccz L_stok")
    A(f"s_sub_u32 {sr(S_SPIN)}, {sr(S_SPIN)}, 1")
    A("s_cbranch_scc1 L_stok")
    A(f"buffer_load_dwordx4 {vr(V_ST,4)}, {vr(V_L16)}, {sr(SWS,4)}, {sr(S_TMP+7)} offen sc1")
    A("s_waitcnt vmcnt(0)")
    A("s_branch L_stchk")
    A.label("L_stok")
    A(f"v_mov_b32 {vr(T)}, {vr(V_ST)}")
    A(f"v_mov_b32 {vr(T+1)}, {vr(V_ST+2)}")
    def preduce(op, regs, tmps):
        for d in (8, 4, 2):
            A.nop(max(0, 2 - (len(regs) - 1)))
            for r in regs:
                A(f"{op}_dpp {vr(r)}, {vr(r)}, {vr(r)} row_ror:{d} {DPPM}")
        xreduce(op, regs, tmps)
    preduce("v_max_f32", [T, T+1], [T+2, T+3])
    A(f"v_sub_f32 {vr(T+2)}, {vr(V_ST)}, {vr(T)}")
    A(f"v_sub_f32 {vr(T+3)}, {vr(V_ST+2)}, {vr(T+1)}")
    A(f"v_mul_f32 {vr(T+2)}, {sr(S_C0)}, {vr(T+2)}")
    A(f"v_mul_f32 {vr(T+3)}, {sr(S_C0)}, {vr(T+3)}")
    A(f"v_exp_f32 {vr(T+2)}, {vr(T+2)}")
    A(f"v_exp_f32 {vr(T+3)}, {vr(T+3)}")
    A.nop(1)
    A(f"v_mul_f32 {vr(T+2)}, {vr(T+2)}, {vr(V_ST+1)}")
    A(f"v_mul_f32 {vr(T+3)}, {vr(T+3)}, {vr(V_ST+3)}")
    preduce("v_add_f32", [T+2, T+3], [T+4, T+5])
    A.nop(2)
    A(f"v_mov_b32_dpp {vr(T+4)}, {vr(T)} quad_perm:[0,0,1,1] {DPPM}")
    A(f"v_mov_b32_dpp {vr(T+5)}, {vr(T+1)} quad_perm:[0,0,1,1] {DPPM}")
    A(f"v_mov_b32_dpp {vr(T+6)}, {vr(T+2)} quad_perm:[0,0,1,1] {DPPM}")
    A(f"v_mov_b32_dpp {vr(T+7)}, {vr(T+3)} quad_perm:[0,0,1,1] {DPPM}")
    A(f"v_and_b32 {vr(T+9)}, 1, v0")
    A(f"v_cmp_eq_u32 vcc, 1, {vr(T+9)}")
    A.nop(2)
    A(f"v_cndmask_b32 {vr(T+4)}, {vr(T+4)}, {vr(T+5)}, vcc")
    A(f"v_cndmask_b32 {vr(T+6)}, {vr(T+6)}, {vr(T+7)}, vcc")
    A(f"v_sub_f32 {vr(T+4)}, {vr(V_MW)}, {vr(T+4)}")
    A(f"v_mul_f32 {vr(T+4)}, {sr(S_C0)}, {vr(T+4)}")
    A(f"v_exp_f32 {vr(T+4)}, {vr(T+4)}")
    A(f"v_rcp_f32 {vr(T+6)}, {vr(T+6)}")
    A.nop(1)
    A(f"v_mul_f32 {vr(T+4)}, {vr(T+4)}, {vr(T+6)}")
    A.nop(1)
    for h in range(4):
        A(f"v_readlane_b32 {sr(S_F+h)}, {vr(T+4)}, {h}")
    A(f"s_cmp_lt_u32 s2, 8")
    A("s_cbranch_scc0 L_nogw")
    A(f"s_mov_b32 {sr(S_SPIN)}, {SPIN_LIMIT}")
    A.label("L_gchk")
    A(f"v_xor_b32 {vr(T)}, {vr(V_NA)}, {vr(GREG[0]+1)}")
    for i in range(6):
        if i:
            A(f"v_xor_b32 {vr(T+1)}, {vr(V_NA)}, {vr(GREG[i]+1)}")
            A(f"v_or_b32 {vr(T)}, {vr(T)}, {vr(T+1)}")
        A(f"v_xor_b32 {vr(T+1)}, {vr(V_NA+1)}, {vr(GREG[i]+3)}")
        A(f"v_or_b32 {vr(T)}, {vr(T)}, {vr(T+1)}")
    A(f"v_and_b32 {vr(T+1)}, {vr(V_NA)}, {vr(V_NA+1)}")
    A(f"v_and_b32 {vr(T+1)}, 1, {vr(T+1)}")
    A(f"v_xor_b32 {vr(T+1)}, 1, {vr(T+1)}")
    A(f"v_or_b32 {vr(T)}, {vr(T)}, {vr(T+1)}")
    A(f"v_cmp_ne_u32 vcc, 0, {vr(T)}")
    A("s_cbranch_vccz L_gok")
    A(f"s_sub_u32 {sr(S_SPIN)}, {sr(S_SPIN)}, 1")
    A("s_cbranch_scc1 L_gok")
    g_loads()
    A("s_waitcnt vmcnt(0)")
    A("s_branch L_gchk")
    A.label("L_gok")
    A(f"v_lshlrev_b32 {vr(T)}, 3, v0")
    A(f"v_add_u32 {vr(T)}, {sr(S_RING)}, {vr(T)}")
    for i in range(6):
        A(f"v_mov_b32 {vr(GREG[i]+1)}, {vr(GREG[i]+2)}")
    for i in range(6):
        A(f"ds_write_b64 {vr(T)}, {vr(GREG[i],2)} offset:{R_GT+i*512}")
    A.label("L_nogw")
    A(f"v_lshlrev_b32 {vr(V_R1A)}, 11, {vr(V_J)}")
    A(f"v_and_b32 {vr(T)}, 1, {vr(V_J)}")
    A(f"v_lshlrev_b32 {vr(T)}, 10, {vr(T)}")
    A(f"v_sub_u32 {vr(V_R1A)}, {vr(V_R1A)}, {vr(T)}")
    A(f"v_lshl_add_u32 {vr(V_R1A)}, {vr(V_G)}, 4, {vr(V_R1A)}")
    A(f"s_lshl_b32 {sr(S_TMP+8)}, {sr(S_HKV)}, 15")
    A(f"s_lshl_b32 {sr(S_TMP+3)}, {sr(S_WAVE)}, 7")
    A(f"s_add_u32 {sr(S_TMP+8)}, {sr(S_TMP+8)}, {sr(S_TMP+3)}")
    A(f"s_add_u32 {sr(S_TMP+8)}, {sr(S_TMP+8)}, {WS_R1}")
    A(f"v_add_u32 {vr(T+9)}, {sr(S_RING)}, {vr(V_L16)}")
    pv(6); pv(7)
    A.nop(8)
    for r in range(8):
        A(f"v_mul_f32 {vr(V_ACC+r)}, {sr(S_F+(r&3))}, {vr(V_ACC+r)}")
    A(f"ds_write_b128 {vr(T+9)}, {vr(V_ACC,4)} offset:{R_ACC}")
    A(f"ds_write_b128 {vr(T+9)}, {vr(V_ACC+4,4)} offset:{R_ACC+1024}")
    A("s_waitcnt lgkmcnt(0)")
    A("s_barrier")
    A(f"s_cmp_eq_u32 {sr(S_WAVE)}, 0")
    A("s_cbranch_scc0 L_r1poll")
    RB = V_VA
    A(f"v_add_u32 {vr(T+10)}, {4*RING}, {vr(V_L16)}")
    for w in range(1, 8):
        ad = V_L16 if w < 4 else T + 10
        off = (w & 3) * RING + R_ACC
        A(f"ds_read_b128 {vr(RB+8*w,4)}, {vr(ad)} offset:{off}")
        A(f"ds_read_b128 {vr(RB+8*w+4,4)}, {vr(ad)} offset:{off+1024}")
    for w in range(1, 8):
        A(f"s_waitcnt lgkmcnt({2*(7-w)})")
        for r in range(8):
            A(f"v_add_f32 {vr(V_ACC+r)}, {vr(V_ACC+r)}, {vr(RB+8*w+r)}")
    for h in range(4):
        A(f"v_cvt_pk_bf16_f32 {vr(T+h)}, {vr(V_ACC+h)}, {vr(V_ACC+4+h)}")
    for h in range(4):
        A(f"v_min_u32 {vr(T+h)}, -2, {vr(T+h)}")
    A(f"s_lshl_b32 {sr(S_TMP+2)}, {sr(S_HKV)}, 5")
    A(f"s_add_u32 {sr(S_TMP+2)}, {sr(S_TMP+2)}, {sr(S_IDX)}")
    A(f"s_lshl_b32 {sr(S_TMP+2)}, {sr(S_TMP+2)}, 10")
    A(f"s_add_u32 {sr(S_TMP+2)}, {sr(S_TMP+2)}, {WS_R1}")
    A(f"buffer_store_dwordx4 {vr(T,4)}, {vr(V_L16)}, {sr(SWS,4)}, {sr(S_TMP+2)} offen sc1")
    A.label("L_r1poll")
    RA = V_KP
    A(f"s_mov_b32 {sr(S_SPIN)}, {SPIN_LIMIT}")
    A.label("L_r1loop")
    for tau in range(2):
        for u in range(2):
            A(f"buffer_load_dwordx4 {vr(RA+8*tau+4*u,4)}, {vr(V_R1A)}, {sr(SWS,4)}, {sr(S_TMP+8)} offen offset:{tau*2048+u*64} sc1")
    A("s_waitcnt vmcnt(0)")
    A(f"v_max3_u32 {vr(T+4)}, {vr(RA)}, {vr(RA+1)}, {vr(RA+2)}")
    for i in range(3, 15, 2):
        A(f"v_max3_u32 {vr(T+4)}, {vr(T+4)}, {vr(RA+i)}, {vr(RA+i+1)}")
    A(f"v_max_u32 {vr(T+4)}, {vr(T+4)}, {vr(RA+15)}")
    A(f"v_cmp_eq_u32 vcc, -1, {vr(T+4)}")
    A("s_cbranch_vccz L_r1ok")
    A(f"s_sub_u32 {sr(S_SPIN)}, {sr(S_SPIN)}, 1")
    A("s_cbranch_scc0 L_r1loop")
    A.label("L_r1ok")
    OD = V_ACC
    first = True
    for tau in range(2):
        for u in range(2):
            c = "0" if first else vr(OD, 4)
            first = False
            A(f"v_mfma_f32_16x16x32_bf16 {vr(OD,4)}, {vr(RA+8*tau+4*u,4)}, {vr(V_WO+4*u,4)}, {c}")
    A(f"v_lshlrev_b32 {vr(T)}, 7, {vr(V_G)}")
    A(f"v_lshl_add_u32 {vr(T)}, {vr(V_J)}, 2, {vr(T)}")
    A(f"s_lshl_b32 {sr(S_TMP+2)}, {sr(S_WAVE)}, 9")
    A(f"s_add_u32 {sr(S_TMP+2)}, {sr(S_TMP+2)}, {L_ORED}")
    A(f"v_add_u32 {vr(T)}, {sr(S_TMP+2)}, {vr(T)}")
    A.nop(4)
    A(f"v_add_f32 {vr(T+1)}, {vr(OD)}, {vr(OD+1)}")
    A(f"v_add_f32 {vr(T+2)}, {vr(OD+2)}, {vr(OD+3)}")
    A(f"ds_write_b32 {vr(T)}, {vr(T+1)}")
    A(f"ds_write_b32 {vr(T)}, {vr(T+2)} offset:64")
    A("s_waitcnt lgkmcnt(0)")
    A("s_barrier")
    A(f"s_cmp_eq_u32 {sr(S_WAVE)}, 0")
    A("s_cbranch_scc0 L_end")
    A(f"v_and_b32 {vr(T)}, 31, v0")
    A(f"v_lshlrev_b32 {vr(T)}, 4, {vr(T)}")
    A(f"v_lshrrev_b32 {vr(T+1)}, 5, v0")
    A(f"v_lshl_add_u32 {vr(T)}, {vr(T+1)}, 11, {vr(T)}")
    A(f"v_add_u32 {vr(T)}, {L_ORED}, {vr(T)}")
    for k in range(4):
        A(f"ds_read_b128 {vr(RB+4*k,4)}, {vr(T)} offset:{k*512}")
    A(f"v_lshrrev_b32 {vr(T+2)}, 2, v0")
    A(f"v_lshlrev_b32 {vr(T+2)}, 14, {vr(T+2)}")
    A(f"v_and_b32 {vr(T+3)}, 3, v0")
    A(f"v_lshl_add_u32 {vr(T+2)}, {vr(T+3)}, 4, {vr(T+2)}")
    A(f"s_lshl_b32 {sr(S_TMP+2)}, {sr(S_HKV)}, 11")
    A(f"s_lshl_b32 {sr(S_TMP+3)}, {sr(S_IDX)}, 6")
    A(f"s_add_u32 {sr(S_TMP+2)}, {sr(S_TMP+2)}, {sr(S_TMP+3)}")
    A(f"s_add_u32 {sr(S_TMP+2)}, {sr(S_TMP+2)}, {WS_R2}")
    A("s_waitcnt lgkmcnt(0)")
    for r in range(4):
        A(f"v_add_f32 {vr(RB+r)}, {vr(RB+r)}, {vr(RB+4+r)}")
        A(f"v_add_f32 {vr(RB+8+r)}, {vr(RB+8+r)}, {vr(RB+12+r)}")
    for r in range(4):
        A(f"v_add_f32 {vr(RB+r)}, {vr(RB+r)}, {vr(RB+8+r)}")
    for r in range(4):
        A(f"v_mov_b32 {vr(RB+4+r)}, {vr(RB+r)}")
    A.nop(2)
    for r in range(4):
        A(f"v_permlane32_swap_b32 {vr(RB+r)}, {vr(RB+4+r)}")
    A.nop(1)
    for r in range(4):
        A(f"v_add_f32 {vr(RB+r)}, {vr(RB+r)}, {vr(RB+4+r)}")
    for r in range(4):
        A(f"v_min_u32 {vr(RB+r)}, -2, {vr(RB+r)}")
    A("s_mov_b32 exec_hi, 0")
    A(f"buffer_store_dwordx4 {vr(RB,4)}, {vr(T+2)}, {sr(SWS,4)}, {sr(S_TMP+2)} offen sc1")
    A("s_mov_b64 exec, -1")
    A(f"s_cmp_lt_u32 s2, 8")
    A("s_cbranch_scc0 L_end")
    FB = V_KP
    A(f"v_lshlrev_b32 {vr(T)}, 5, v0")
    A(f"s_lshl_b32 {sr(S_TMP+2)}, s2, 14")
    A(f"s_add_u32 {sr(S_TMP+2)}, {sr(S_TMP+2)}, {WS_R2}")
    for k in range(1, 4):
        A(f"s_add_u32 {sr(S_TMP+2+k)}, {sr(S_TMP+2)}, {4096*k}")
    A(f"s_mov_b32 {sr(S_SPIN)}, {SPIN_LIMIT}")
    A.label("L_r2loop")
    for hk in range(8):
        for h in range(2):
            A(f"buffer_load_dwordx4 {vr(FB+8*hk+4*h,4)}, {vr(T)}, {sr(SWS,4)}, {sr(S_TMP+2+(hk>>1))} offen offset:{(hk&1)*2048+h*16} sc1")
    A("s_waitcnt vmcnt(0)")
    A(f"v_max3_u32 {vr(T+1)}, {vr(FB)}, {vr(FB+1)}, {vr(FB+2)}")
    for i in range(3, 63, 2):
        A(f"v_max3_u32 {vr(T+1)}, {vr(T+1)}, {vr(FB+i)}, {vr(FB+i+1)}")
    A(f"v_max_u32 {vr(T+1)}, {vr(T+1)}, {vr(FB+63)}")
    A(f"v_cmp_eq_u32 vcc, -1, {vr(T+1)}")
    A("s_cbranch_vccz L_r2ok")
    A(f"s_sub_u32 {sr(S_SPIN)}, {sr(S_SPIN)}, 1")
    A("s_cbranch_scc0 L_r2loop")
    A.label("L_r2ok")
    for st in (4, 2, 1):
        for hk in range(st):
            for r in range(8):
                A(f"v_add_f32 {vr(FB+8*hk+r)}, {vr(FB+8*hk+r)}, {vr(FB+8*(hk+st)+r)}")
    H = FB + 8
    N1 = FB + 16
    LT2 = FB + 24
    for i in range(0, 8, 2):
        rne2(FB+i, FB+i+1, LT2)
    unpack8(H, V_XF)
    for i in range(8):
        A(f"v_add_f32 {vr(H+i)}, {vr(H+i)}, {vr(FB+i)}")
    for i in range(0, 8, 2):
        rne2(H+i, H+i+1, LT2)
    layernorm(H, N1, LT2)
    for i in range(0, 8, 2):
        rne2(N1+i, N1+i+1, LT2)
    layernorm(N1, N1, LT2)
    for i in range(0, 8, 2):
        rne2(N1+i, N1+i+1, LT2)
    Y = FB + 36
    AD = FB + 44
    BAD = FB + 52
    A(f"s_mov_b32 {sr(S_TMP+2)}, {(2**32 + 767)//768}")
    A(f"s_mov_b32 {sr(S_TMP+3)}, {RING - 768*4}")
    A(f"v_mov_b32 {vr(LT2+2)}, 0")
    for i in range(8):
        A(f"v_bfe_u32 {vr(LT2)}, {vr(N1+i)}, 16, 15")
        A(f"v_subrev_u32 {vr(LT2)}, {E0*128}, {vr(LT2)}")
        A(f"v_cmp_gt_u32 vcc, {GT_HALF}, {vr(LT2)}")
        A(f"v_lshrrev_b32 {vr(LT2+1)}, 31, {vr(N1+i)}")
        A(f"v_mul_u32_u24 {vr(LT2+1)}, {GT_HALF}, {vr(LT2+1)}")
        A(f"v_cndmask_b32 {vr(BAD+i)}, 1, 0, vcc")
        A(f"v_cndmask_b32 {vr(LT2)}, 0, {vr(LT2)}, vcc")
        A(f"v_add_u32 {vr(LT2)}, {vr(LT2)}, {vr(LT2+1)}")
        A(f"v_mul_hi_u32 {vr(LT2+1)}, {vr(LT2)}, {sr(S_TMP+2)}")
        A(f"v_mul_lo_u32 {vr(LT2+1)}, {vr(LT2+1)}, {sr(S_TMP+3)}")
        A(f"v_lshl_add_u32 {vr(AD+i)}, {vr(LT2)}, 2, {vr(LT2+1)}")
        A(f"ds_read_b32 {vr(Y+i)}, {vr(AD+i)} offset:{R_GT}")
        A(f"v_or_b32 {vr(LT2+2)}, {vr(LT2+2)}, {vr(BAD+i)}")
    A(f"v_cmp_ne_u32 vcc, 0, {vr(LT2+2)}")
    A("s_waitcnt lgkmcnt(0)")
    A("s_cbranch_vccz L_nofb")
    A(f"v_mov_b32 {vr(G_K0)}, {hex(f2u(K0))}")
    A(f"v_add_u32 {vr(G_AD)}, {L_W1}, {vr(V_L16)}")
    A(f"s_mov_b32 {sr(S_TMP+8)}, 8")
    A.label("L_fbo")
    A(f"v_cmp_ne_u32 {sr(S_TMP+4,2)}, 0, {vr(BAD)}")
    A.label("L_fbi")
    A(f"s_cmp_eq_u64 {sr(S_TMP+4,2)}, 0")
    A(f"s_cbranch_scc1 L_fbd")
    A(f"s_ff1_i32_b64 {sr(S_TMP+6)}, {sr(S_TMP+4,2)}")
    A(f"s_bitset0_b64 {sr(S_TMP+4,2)}, {sr(S_TMP+6)}")
    A(f"v_readlane_b32 {sr(S_T0)}, {vr(N1)}, {sr(S_TMP+6)}")
    A(f"v_mov_b32 {vr(G_ACC)}, 0")
    A.nop(2)
    for c in range(7):
        g_chunk(c, 1, [sr(S_T0)])
    g_finish(1)
    A(f"s_lshl_b64 exec, 1, {sr(S_TMP+6)}")
    A(f"v_mov_b32 {vr(Y)}, {vr(G_ACC)}")
    A("s_mov_b64 exec, -1")
    A(f"s_branch L_fbi")
    A.label("L_fbd")
    for R in (N1, Y, BAD):
        A(f"v_mov_b32 {vr(LT2)}, {vr(R)}")
        for i in range(7):
            A(f"v_mov_b32 {vr(R+i)}, {vr(R+i+1)}")
        A(f"v_mov_b32 {vr(R+7)}, {vr(LT2)}")
    A(f"s_sub_u32 {sr(S_TMP+8)}, {sr(S_TMP+8)}, 1")
    A(f"s_cmp_lg_u32 {sr(S_TMP+8)}, 0")
    A("s_cbranch_scc1 L_fbo")
    A.label("L_nofb")
    for i in range(8):
        A(f"v_add_f32 {vr(Y+i)}, {vr(Y+i)}, {vr(H+i)}")
    for i in range(4):
        A(f"v_cvt_pk_bf16_f32 {vr(AD+i)}, {vr(Y+2*i)}, {vr(Y+2*i+1)}")
    A(f"s_lshl_b32 {sr(S_TMP+2)}, s2, 10")
    A(f"buffer_store_dwordx4 {vr(AD,4)}, {vr(V_L16)}, {sr(SOUT,4)}, {sr(S_TMP+2)} offen")
    A.label("L_end")
    A("s_endpgm")

    A.L.append('.section .rodata,"a"')
    A.L.append(".p2align 6")
    A.L.append(f".amdhsa_kernel {NAME}_kernel")
    A.L.append("  .amdhsa_next_free_vgpr 256")
    A.L.append("  .amdhsa_next_free_sgpr 102")
    A.L.append("  .amdhsa_accum_offset 256")
    A.L.append("  .amdhsa_group_segment_fixed_size 0")
    A.L.append("  .amdhsa_kernarg_size 104")
    A.L.append("  .amdhsa_user_sgpr_count 2")
    A.L.append("  .amdhsa_user_sgpr_kernarg_segment_ptr 1")
    A.L.append("  .amdhsa_system_sgpr_workgroup_id_x 1")
    A.L.append("  .amdhsa_float_denorm_mode_32 3")
    A.L.append(".end_amdhsa_kernel")
    return "\n".join(A.L) + "\n"

if __name__ == "__main__":
    out = sys.argv[1] if len(sys.argv) > 1 else "k1.s"
    open(out, "w").write(gen())
    print("wrote", out)
```

```python
import sys, struct, math

NAME = "sequential_preLN__gqa_block_cached__mixer_token_mlp__decode"

def f2u(x):
    return struct.unpack("<I", struct.pack("<f", x))[0]

WS_QM = 0x00000
WS_ST = 0x20000
WS_R1 = 0x40000
WS_GT = 0x80000
WS_R2 = 0x200000
WS_DBG = 0x100000
WS_SIZE = 0x400000

RING = 32768
L_STG = 4 * RING
L_XN = L_STG + 16384
L_GT = L_STG
L_QRED = L_XN + 8192
L_Q = L_QRED + 2048
L_STAT = L_Q + 1024
L_FAC = L_STAT + 128
L_FLAG = L_FAC + 64
L_ORED = L_FLAG + 64
L_H = L_ORED + 2048
LDS_SIZE = L_H + 2048
assert LDS_SIZE <= 163840, LDS_SIZE
F_XN, F_Q1, F_Q2, F_ST, F_FAC, F_NONCE, F_WO, F_WOL = [L_FLAG + 4 * i for i in range(8)]

E0 = 108
NEXP = 24
GT_HALF = NEXP * 128
SPIN_LIMIT = 200000

class Asm:
    def __init__(self):
        self.L = []
        self.vm = 0
        self.lab = 0
    def __call__(self, s):
        self.L.append("  " + s)
    def label(self, n):
        self.L.append(n + ":")
    def newlabel(self, p="L"):
        self.lab += 1
        return f"{p}_{self.lab}"
    def vmem(self, s):
        self(s); self.vm += 1
        return self.vm
    def wait_vm(self, idx, extra=0):
        n = self.vm - idx + extra
        assert 0 <= n <= 63, n
        self(f"s_waitcnt vmcnt({n})")
    def nop(self, n):
        while n > 0:
            k = min(n, 16)
            self(f"s_nop {k-1}")
            n -= k
    def comment(self, s):
        self.L.append("  ; " + s)

def vr(a, n=1):
    return f"v{a}" if n == 1 else f"v[{a}:{a+n-1}]"
def sr(a, n=1):
    return f"s{a}" if n == 1 else f"s[{a}:{a+n-1}]"

DPPM = "row_mask:0xf bank_mask:0xf"
LOG2E = math.log2(math.e)

def gen(opts=None):
    o = dict(debug=False, D=3, qpos=12, wnt=True, pst=2, pg=0, skip='', rot=0, wolate=1, D2=3, nsw=14, nv1=7)
    if opts: o.update(opts)
    A = Asm()
    stamps = {"s": [], "a": []}
    cur = ["c"]
    V_STAMP = 255
    def stamp(name):
        if not o["debug"]: return
        lst = stamps[cur[0]]
        k = len(lst); lst.append(name)
        assert k < 32
        A(f"s_memrealtime s[100:101]")
        A("s_waitcnt lgkmcnt(0)")
        A(f"v_writelane_b32 v{V_STAMP}, s100, {k}")
    S_WAVE = 3
    SK, SV, SWQ, SWO, SWS, SX, SDBG, SOUT, SW1, SB1, SW2 = 8, 12, 16, 20, 24, 28, 32, 36, 40, 44, 48
    S_HKV, S_IDX, S_B, S_S, S_KOFF, S_RING, S_NONCE, S_B2 = 52, 53, 54, 55, 56, 57, 58, 59
    S_RT = 60
    S_SPIN = 63
    S_P = 64
    S_TMP = 90
    S_F = 64
    S_C0 = 68
    V_J, V_G, V_L16 = 12, 13, 1

    A.L.append(f"; @launch grid=(256,1,1) block=(512,1,1) lds={LDS_SIZE}")
    A.L.append('.amdgcn_target "amdgcn-amd-amdhsa--gfx950"')
    A.L.append(".text")
    A.L.append(f".globl {NAME}_kernel")
    A.L.append(".p2align 8")
    A.L.append(f".type {NAME}_kernel,@function")
    A.label(f"{NAME}_kernel")
    A("s_cmp_ge_u32 s2, 256")
    A("s_cbranch_scc1 L_end")
    A(f"s_load_dwordx16 {sr(S_P,16)}, s[0:1], 0")
    A(f"s_load_dwordx8 {sr(S_P+16,8)}, s[0:1], 64")
    A(f"s_load_dwordx2 {sr(S_P+24,2)}, s[0:1], 96")
    A(f"s_memrealtime {sr(S_RT,2)}")
    A("v_lshrrev_b32 v1, 6, v0")
    A("v_and_b32 v0, 63, v0")
    if o["debug"]: A(f"v_mov_b32 v{V_STAMP}, 0")
    A(f"v_readfirstlane_b32 {sr(S_WAVE)}, v1")
    A(f"v_and_b32 {vr(V_J)}, 15, v0")
    A(f"v_lshrrev_b32 {vr(V_G)}, 4, v0")
    A(f"s_and_b32 {sr(S_HKV)}, s2, 7")
    A(f"s_lshr_b32 {sr(S_IDX)}, s2, 3")
    A(f"s_lshr_b32 {sr(S_B)}, {sr(S_IDX)}, 2")
    A(f"s_and_b32 {sr(S_S)}, {sr(S_IDX)}, 3")
    def srd(dst, p, nbytes):
        A(f"s_mov_b32 {sr(dst)}, {sr(S_P+2*p)}")
        A(f"s_and_b32 {sr(dst+1)}, {sr(S_P+2*p+1)}, 0xffff")
        A(f"s_mov_b32 {sr(dst+2)}, {nbytes}")
        A(f"s_mov_b32 {sr(dst+3)}, 0x20000")

    def xreduce(op, regs, tmps, steps=("v_permlane16_swap_b32", "v_permlane32_swap_b32")):
        for pl in steps:
            for r, t in zip(regs, tmps):
                A(f"v_mov_b32 {vr(t)}, {vr(r)}")
            A.nop(2)
            for r, t in zip(regs, tmps):
                A(f"{pl} {vr(r)}, {vr(t)}")
            A.nop(1)
            for r, t in zip(regs, tmps):
                A(f"{op} {vr(r)}, {vr(r)}, {vr(t)}")
    def allreduce(op, regs, tmps):
        for dpp in ("quad_perm:[1,0,3,2]", "quad_perm:[2,3,0,1]", "row_half_mirror", "row_mirror"):
            A.nop(max(0, 2 - (len(regs) - 1)))
            for r in regs:
                A(f"{op}_dpp {vr(r)}, {vr(r)}, {vr(r)} {dpp} {DPPM}")
        xreduce(op, regs, tmps)
    def rne1(dst, src):
        A(f"v_cvt_pk_bf16_f32 {vr(dst)}, {vr(src)}, {vr(src)}")
        A(f"v_lshlrev_b32 {vr(dst)}, 16, {vr(dst)}")
    def rne2(a, b, t):
        A(f"v_cvt_pk_bf16_f32 {vr(t)}, {vr(a)}, {vr(b)}")
        A(f"v_lshlrev_b32 {vr(a)}, 16, {vr(t)}")
        A(f"v_and_b32 {vr(b)}, 0xffff0000, {vr(t)}")
    def unpack(dst, src, n):
        for i in range(n):
            A(f"v_lshlrev_b32 {vr(dst+2*i)}, 16, {vr(src+i)}")
            A(f"v_and_b32 {vr(dst+2*i+1)}, 0xffff0000, {vr(src+i)}")
    def layernorm(x, out, t):
        A(f"v_add_f32 {vr(t)}, {vr(x)}, {vr(x+1)}")
        A(f"v_add_f32 {vr(t+1)}, {vr(x+2)}, {vr(x+3)}")
        A(f"v_add_f32 {vr(t+2)}, {vr(x+4)}, {vr(x+5)}")
        A(f"v_add_f32 {vr(t+3)}, {vr(x+6)}, {vr(x+7)}")
        A(f"v_add_f32 {vr(t)}, {vr(t)}, {vr(t+1)}")
        A(f"v_add_f32 {vr(t+2)}, {vr(t+2)}, {vr(t+3)}")
        A(f"v_add_f32 {vr(t)}, {vr(t)}, {vr(t+2)}")
        allreduce("v_add_f32", [t], [t+1])
        A(f"v_mul_f32 {vr(t)}, {hex(f2u(1/512))}, {vr(t)}")
        for i in range(8):
            A(f"v_sub_f32 {vr(t+4+i)}, {vr(x+i)}, {vr(t)}")
        A(f"v_mul_f32 {vr(t+1)}, {vr(t+4)}, {vr(t+4)}")
        A(f"v_mul_f32 {vr(t+2)}, {vr(t+5)}, {vr(t+5)}")
        for i in range(2, 8, 2):
            A(f"v_fmac_f32 {vr(t+1)}, {vr(t+4+i)}, {vr(t+4+i)}")
            A(f"v_fmac_f32 {vr(t+2)}, {vr(t+5+i)}, {vr(t+5+i)}")
        A(f"v_add_f32 {vr(t+1)}, {vr(t+1)}, {vr(t+2)}")
        allreduce("v_add_f32", [t+1], [t+2])
        A(f"v_mul_f32 {vr(t+1)}, {hex(f2u(1/512))}, {vr(t+1)}")
        rne2(t, t+1, t+2)
        A(f"v_add_f32 {vr(t+1)}, {hex(f2u(1e-5))}, {vr(t+1)}")
        rne1(t+1, t+1)
        A(f"v_sqrt_f32 {vr(t+1)}, {vr(t+1)}")
        A.nop(1)
        rne1(t+1, t+1)
        A(f"v_rcp_f32 {vr(t+2)}, {vr(t+1)}")
        for i in range(8):
            A(f"v_sub_f32 {vr(t+4+i)}, {vr(x+i)}, {vr(t)}")
        for i in range(0, 8, 2):
            rne2(t+4+i, t+5+i, t+3)
        for i in range(8):
            A(f"v_mul_f32 {vr(out+i)}, {vr(t+4+i)}, {vr(t+2)}")
        for i in range(8):
            A(f"v_fma_f32 {vr(t+4+i)}, -{vr(out+i)}, {vr(t+1)}, {vr(t+4+i)}")
        for i in range(8):
            A(f"v_fmac_f32 {vr(out+i)}, {vr(t+4+i)}, {vr(t+2)}")
    def lds_inc(flag, t):
        A(f"v_mov_b32 {vr(t)}, {flag}")
        A(f"v_mov_b32 {vr(t+1)}, 1")
        A("s_waitcnt lgkmcnt(0)")
        A("s_mov_b64 exec, 1")
        A(f"ds_add_u32 {vr(t)}, {vr(t+1)}")
        A("s_mov_b64 exec, -1")
    def lds_wait(flag, target, t, sleep=1):
        lp, dn = A.newlabel("Lw"), A.newlabel("Lwd")
        A(f"v_mov_b32 {vr(t)}, {flag}")
        A(f"s_mov_b32 {sr(S_SPIN)}, {SPIN_LIMIT*4}")
        A.label(lp)
        A(f"ds_read_b32 {vr(t+1)}, {vr(t)}")
        A("s_waitcnt lgkmcnt(0)")
        A(f"v_readfirstlane_b32 {sr(S_TMP+9)}, {vr(t+1)}")
        A.nop(1)
        A(f"s_cmp_ge_u32 {sr(S_TMP+9)}, {target}")
        A(f"s_cbranch_scc1 {dn}")
        if sleep: A(f"s_sleep {sleep}")
        A(f"s_sub_u32 {sr(S_SPIN)}, {sr(S_SPIN)}, 1")
        A(f"s_cbranch_scc0 {lp}")
        A.label(dn)
    def poll_pipe(nsets, nld, issue_fn, check_fn, done_fn):
        lp, fin = A.newlabel("Lpp"), A.newlabel("Lppf")
        dn = [A.newlabel("Lppd") for _ in range(nsets)]
        A(f"s_mov_b32 {sr(S_SPIN)}, {SPIN_LIMIT}")
        for k in range(nsets): issue_fn(k)
        A.label(lp)
        for k in range(nsets):
            A(f"s_waitcnt vmcnt({nld*(nsets-1)})")
            check_fn(k)
            A(f"s_cbranch_vccz {dn[k]}")
            issue_fn(k)
        A(f"s_sub_u32 {sr(S_SPIN)}, {sr(S_SPIN)}, 1")
        A(f"s_cbranch_scc0 {lp}")
        A("s_waitcnt vmcnt(0)")
        for k in range(nsets):
            A.label(dn[k])
            done_fn(k)
            if k + 1 < nsets: A(f"s_branch {fin}")
        A.label(fin)
    def ln_row(op_x, VX, XF, LT, row):
        A.wait_vm(op_x)
        unpack(XF, VX, 4)
        layernorm(XF, XF, LT)
        for i in range(4):
            A(f"v_cvt_pk_bf16_f32 {vr(LT+i)}, {vr(XF+2*i)}, {vr(XF+2*i+1)}")
        A(f"s_lshl_b32 {sr(S_TMP+2)}, {sr(S_WAVE)}, 11")
        A(f"s_add_u32 {sr(S_TMP+2)}, {sr(S_TMP+2)}, {L_XN + 1024*row}")
        A(f"v_lshl_add_u32 {vr(LT+4)}, v0, 4, {sr(S_TMP+2)}")
        A(f"ds_write_b128 {vr(LT+4)}, {vr(LT,4)}")

    A(f"v_lshlrev_b32 {vr(V_L16)}, 4, v0")
    A(f"s_lshl_b32 {sr(S_TMP+2)}, {sr(S_WAVE)}, 11")
    A(f"s_cmp_ge_u32 {sr(S_WAVE)}, 4")
    A("s_cbranch_scc1 L_stream")

    cur[0] = "a"
    A("s_setprio 3")
    T = 208
    V_X = T
    V_SEN = T + 4
    for r in range(4):
        A(f"v_mov_b32 {vr(V_SEN+r)}, -1")
    A(f"v_lshrrev_b32 {vr(T+8)}, 1, v0")
    A(f"v_and_b32 {vr(T+9)}, 1, v0")
    A(f"v_lshlrev_b32 {vr(T+9)}, 4, {vr(T+9)}")
    A(f"v_lshl_add_u32 {vr(T+10)}, {vr(T+8)}, 13, {vr(T+9)}")
    A(f"s_lshl_b32 {sr(S_TMP+3)}, {sr(S_WAVE)}, 20")
    A(f"s_lshl_b32 {sr(S_TMP+4)}, {sr(S_HKV)}, 10")
    A(f"s_add_u32 {sr(S_TMP+3)}, {sr(S_TMP+3)}, {sr(S_TMP+4)}")
    A(f"s_lshl_b32 {sr(S_TMP+4)}, {sr(S_IDX)}, 5")
    A(f"s_add_u32 {sr(S_TMP+3)}, {sr(S_TMP+3)}, {sr(S_TMP+4)}")
    A(f"s_lshl_b32 {sr(S_RING)}, {sr(S_WAVE)}, 12")
    A(f"s_add_u32 {sr(S_RING)}, {sr(S_RING)}, {L_STG}")
    A(f"s_mov_b32 m0, {sr(S_RING)}")
    A("s_waitcnt lgkmcnt(0)")
    srd(SX, 0, 8192)
    op_x = A.vmem(f"buffer_load_dwordx4 {vr(V_X,4)}, {vr(V_L16)}, {sr(SX,4)}, {sr(S_TMP+2)} offen")
    op_x2 = A.vmem(f"buffer_load_dwordx4 {vr(T+24,4)}, {vr(V_L16)}, {sr(SX,4)}, {sr(S_TMP+2)} offen offset:1024")
    srd(SWQ, 3, 4 << 20)
    WNT = " nt" if o["wnt"] else ""
    for u in range(4):
        if u:
            A(f"s_add_u32 {sr(S_TMP+4)}, {sr(S_RING)}, {u*1024}")
            A(f"s_mov_b32 m0, {sr(S_TMP+4)}")
            A(f"s_add_u32 {sr(S_TMP+3)}, {sr(S_TMP+3)}, {32*8192}")
        if 'q' in o['skip']: continue
        op_wq = A.vmem(f"buffer_load_dwordx4 {vr(T+10)}, {sr(SWQ,4)}, {sr(S_TMP+3)} offen{WNT} lds")
    srd(SDBG, 11, 256)
    srd(SWS, 12, WS_SIZE)
    V_NC = T + 12
    A(f"s_cmp_eq_u32 {sr(S_WAVE)}, 0")
    A("s_cbranch_scc0 L_w1")
    A(f"s_or_b32 {sr(S_RT)}, {sr(S_RT)}, 1")
    A(f"v_mov_b32 {vr(V_NC)}, {sr(S_RT)}")
    A(f"v_mov_b32 {vr(V_NC+1)}, 0")
    A(f"s_lshl_b32 {sr(S_TMP+2)}, {sr(S_HKV)}, 5")
    A(f"v_mov_b32 {vr(T+11)}, {sr(S_TMP+2)}")
    A("s_mov_b64 exec, 1")
    A(f"buffer_atomic_cmpswap {vr(V_NC,2)}, {vr(T+11)}, {sr(SDBG,4)}, 0 offen sc0")
    A(f"buffer_load_dword {vr(T+18)}, {vr(T+11)}, {sr(SX,4)}, 0 offen")
    A("s_mov_b64 exec, 0xffff")
    A(f"v_lshlrev_b32 {vr(T+14)}, 2, v0")
    A(f"v_add_u32 {vr(T+14)}, {L_FLAG}, {vr(T+14)}")
    A(f"v_mov_b32 {vr(T+15)}, 0")
    A(f"ds_write_b32 {vr(T+14)}, {vr(T+15)}")
    A("s_mov_b64 exec, -1")
    A("s_waitcnt lgkmcnt(0)")
    A("s_branch L_wdone")
    A.label("L_w1")
    A(f"s_cmp_eq_u32 {sr(S_WAVE)}, 1")
    A("s_cbranch_scc0 L_w2")
    A(f"s_lshl_b32 {sr(S_TMP+2)}, {sr(S_HKV)}, 5")
    A(f"s_add_u32 {sr(S_TMP+2)}, {sr(S_TMP+2)}, {sr(S_IDX)}")
    A(f"s_lshl_b32 {sr(S_TMP+2)}, {sr(S_TMP+2)}, 10")
    A(f"s_add_u32 {sr(S_TMP+2)}, {sr(S_TMP+2)}, {WS_R1}")
    A("s_mov_b32 exec_hi, 0")
    A(f"buffer_store_dwordx4 {vr(V_SEN,4)}, {vr(V_L16)}, {sr(SWS,4)}, {sr(S_TMP+2)} offen sc1")
    A("s_mov_b64 exec, -1")
    A("s_mov_b32 exec_lo, 0")
    A(f"buffer_store_dwordx4 {vr(V_SEN,4)}, {vr(V_L16)}, {sr(SWS,4)}, {sr(S_TMP+2)} offen sc1")
    A("s_mov_b64 exec, -1")
    A("s_branch L_wdone")
    A.label("L_w2")
    A(f"s_cmp_eq_u32 {sr(S_WAVE)}, 2")
    A("s_cbranch_scc0 L_w3")
    A(f"v_lshlrev_b32 {vr(T+11)}, 16, {vr(V_G)}")
    A(f"v_lshl_add_u32 {vr(T+11)}, {vr(V_J)}, 4, {vr(T+11)}")
    A(f"s_lshl_b32 {sr(S_TMP+2)}, {sr(S_HKV)}, 13")
    A(f"s_lshl_b32 {sr(S_TMP+4)}, {sr(S_S)}, 11")
    A(f"s_add_u32 {sr(S_TMP+2)}, {sr(S_TMP+2)}, {sr(S_TMP+4)}")
    A(f"s_lshl_b32 {sr(S_TMP+4)}, {sr(S_B)}, 8")
    A(f"s_add_u32 {sr(S_TMP+2)}, {sr(S_TMP+2)}, {sr(S_TMP+4)}")
    A(f"s_add_u32 {sr(S_TMP+2)}, {sr(S_TMP+2)}, {WS_R2}")
    A(f"s_add_u32 {sr(S_TMP+4)}, {sr(S_TMP+2)}, {4*65536}")
    A(f"buffer_store_dwordx4 {vr(V_SEN,4)}, {vr(T+11)}, {sr(SWS,4)}, {sr(S_TMP+2)} offen sc1")
    A(f"buffer_store_dwordx4 {vr(V_SEN,4)}, {vr(T+11)}, {sr(SWS,4)}, {sr(S_TMP+4)} offen sc1")
    A("s_branch L_wdone")
    A.label("L_w3")
    A(f"s_lshl_b32 {sr(S_TMP+2)}, {sr(S_B)}, 3")
    A(f"s_add_u32 {sr(S_TMP+2)}, {sr(S_TMP+2)}, {sr(S_HKV)}")
    A(f"s_lshl_b32 {sr(S_TMP+2)}, {sr(S_TMP+2)}, 2")
    A(f"s_add_u32 {sr(S_TMP+2)}, {sr(S_TMP+2)}, {sr(S_S)}")
    A(f"s_lshl_b32 {sr(S_TMP+2)}, {sr(S_TMP+2)}, 7")
    A(f"s_add_u32 {sr(S_TMP+2)}, {sr(S_TMP+2)}, {WS_ST}")
    A("s_mov_b64 exec, 0x0f")
    A(f"buffer_store_dwordx4 {vr(V_SEN,4)}, {vr(V_L16)}, {sr(SWS,4)}, {sr(S_TMP+2)} offen sc1")
    A("s_mov_b64 exec, 0xf0")
    A(f"buffer_store_dwordx4 {vr(V_SEN,4)}, {vr(V_L16)}, {sr(SWS,4)}, {sr(S_TMP+2)} offen sc1")
    A("s_mov_b64 exec, -1")
    A.label("L_wdone")
    A.vm += 2
    A("s_barrier")
    stamp("start")
    if 'A' in o['skip']:
        lds_inc(F_Q2, T+20)
        lds_inc(F_FAC, T+20)
        A("s_barrier")
        A("s_branch L_fin")
    srd(SWO, 4, 4 << 20)
    srd(SW1, 6, 3584)
    srd(SB1, 7, 3584)
    srd(SW2, 8, 3584)
    srd(SOUT, 10, 8192)
    A(f"s_load_dword {sr(S_B2)}, {sr(S_P+18,2)}, 0")
    XF = 176; LT = 184
    ln_row(op_x, V_X, XF, LT, 0)
    ln_row(op_x2, T+24, XF, LT, 1)
    lds_inc(F_XN, LT+5)
    stamp("ln_done")
    V_TRA = 2
    A(f"v_lshlrev_b32 {vr(V_TRA)}, 8, {vr(V_G)}")
    A(f"v_lshl_add_u32 {vr(V_TRA)}, {vr(V_J)}, 3, {vr(V_TRA)}")
    A(f"v_add_u32 {vr(V_TRA)}, {sr(S_RING)}, {vr(V_TRA)}")
    A(f"v_and_b32 {vr(LT)}, 7, {vr(V_J)}")
    A(f"v_lshlrev_b32 {vr(LT)}, 10, {vr(LT)}")
    A(f"v_lshl_add_u32 {vr(LT)}, {vr(V_G)}, 4, {vr(LT)}")
    A(f"s_lshl_b32 {sr(S_TMP+2)}, {sr(S_WAVE)}, 8")
    A(f"s_add_u32 {sr(S_TMP+2)}, {sr(S_TMP+2)}, {L_XN}")
    A(f"v_add_u32 {vr(LT)}, {sr(S_TMP+2)}, {vr(LT)}")
    A(f"v_lshrrev_b32 {vr(T+16)}, 3, v0")
    A(f"v_and_b32 {vr(T+16)}, 1, {vr(T+16)}")
    A(f"v_lshlrev_b32 {vr(T+17)}, 13, {vr(V_G)}")
    A(f"v_lshl_add_u32 {vr(T+17)}, {vr(T+16)}, 12, {vr(T+17)}")
    A(f"v_and_b32 {vr(T+16)}, 7, v0")
    A(f"v_lshl_add_u32 {vr(T+17)}, {vr(T+16)}, 4, {vr(T+17)}")
    A("s_waitcnt vmcnt(2)")
    stamp("wq_landed")
    V_WQ = 144
    for u in range(4):
        for h in range(2):
            A(f"ds_read_b64_tr_b16 {vr(V_WQ+4*u+2*h,2)}, {vr(V_TRA)} offset:{u*1024+h*128}")
    lds_wait(F_XN, 4, LT+8, sleep=0)
    V_XA_ = 16
    for u in range(4):
        A(f"ds_read_b128 {vr(V_XA_+4*u,4)}, {vr(LT)} offset:{64*u}")
    V_QD = LT + 12
    A(f"s_lshl_b32 {sr(S_TMP+2)}, {sr(S_WAVE)}, 9")
    A(f"s_add_u32 {sr(S_TMP+2)}, {sr(S_TMP+2)}, {L_QRED}")
    A(f"v_add_u32 {vr(LT+3)}, {sr(S_TMP+2)}, {vr(V_L16)}")
    A("s_waitcnt lgkmcnt(0)")
    for u in range(4):
        c = "0" if u == 0 else vr(V_QD, 4)
        A(f"v_mfma_f32_16x16x32_bf16 {vr(V_QD,4)}, {vr(V_XA_+4*u,4)}, {vr(V_WQ+4*u,4)}, {c}")
    A(f"s_lshl_b32 {sr(S_TMP+3)}, {sr(S_HKV)}, 9")
    A(f"s_lshl_b32 {sr(S_TMP+4)}, {sr(S_S)}, 7")
    A(f"s_add_u32 {sr(S_TMP+3)}, {sr(S_TMP+3)}, {sr(S_TMP+4)}")
    A(f"s_add_u32 {sr(S_TMP+3)}, {sr(S_TMP+3)}, {sr(S_WAVE)}")
    A(f"s_lshl_b32 {sr(S_TMP+3)}, {sr(S_TMP+3)}, 10")
    A(f"s_lshl_b32 {sr(S_TMP+4)}, {sr(S_B)}, 7")
    A(f"s_add_u32 {sr(S_TMP+3)}, {sr(S_TMP+3)}, {sr(S_TMP+4)}")
    A(f"s_mov_b32 m0, {sr(S_RING)}")
    A.nop(4)
    A("s_mov_b32 exec_hi, 0")
    A(f"ds_write_b128 {vr(LT+3)}, {vr(V_QD,4)}")
    A("s_mov_b64 exec, -1")
    stamp("mfma")
    A("s_waitcnt vmcnt(0)")
    A(f"s_cmp_eq_u32 {sr(S_WAVE)}, 0")
    A("s_cbranch_scc0 L_nonce_done")
    A(f"v_readfirstlane_b32 {sr(S_TMP+2)}, {vr(V_NC)}")
    A.nop(1)
    A(f"s_cmp_eq_u32 {sr(S_TMP+2)}, 0")
    A(f"s_cselect_b32 {sr(S_TMP+2)}, {sr(S_RT)}, {sr(S_TMP+2)}")
    A(f"v_mov_b32 {vr(LT+6)}, {sr(S_TMP+2)}")
    A(f"v_mov_b32 {vr(LT+7)}, {F_NONCE}")
    A(f"ds_write_b32 {vr(LT+7)}, {vr(LT+6)}")
    A.label("L_nonce_done")
    lds_inc(F_Q1, LT+8)
    stamp("qpart")
    A(f"s_lshr_b32 {sr(S_TMP+2)}, {sr(S_WAVE)}, 1")
    A(f"s_lshl_b32 {sr(S_TMP+2)}, {sr(S_TMP+2)}, 8")
    A(f"s_and_b32 {sr(S_TMP+4)}, {sr(S_WAVE)}, 1")
    A(f"s_lshl_b32 {sr(S_TMP+4)}, {sr(S_TMP+4)}, 3")
    A(f"s_add_u32 {sr(S_TMP+2)}, {sr(S_TMP+2)}, {sr(S_TMP+4)}")
    A(f"s_add_u32 {sr(S_TMP+2)}, {sr(S_TMP+2)}, {L_QRED}")
    A(f"v_and_b32 {vr(LT)}, 1, {vr(V_G)}")
    A(f"v_lshlrev_b32 {vr(LT)}, 10, {vr(LT)}")
    A(f"v_lshl_add_u32 {vr(LT)}, {vr(V_J)}, 4, {vr(LT)}")
    A(f"v_lshrrev_b32 {vr(LT+1)}, 1, {vr(V_G)}")
    A(f"v_lshl_add_u32 {vr(LT)}, {vr(LT+1)}, 2, {vr(LT)}")
    A(f"v_add_u32 {vr(LT)}, {sr(S_TMP+2)}, {vr(LT)}")
    A(f"v_lshlrev_b32 {vr(LT+3)}, 14, {vr(LT+1)}")
    A(f"v_lshl_add_u32 {vr(LT+3)}, {vr(V_J)}, 2, {vr(LT+3)}")
    A(f"s_lshl_b32 {sr(S_TMP+5)}, {sr(S_WAVE)}, 15")
    A(f"s_lshl_b32 {sr(S_TMP+4)}, {sr(S_HKV)}, 11")
    A(f"s_add_u32 {sr(S_TMP+5)}, {sr(S_TMP+5)}, {sr(S_TMP+4)}")
    A(f"s_lshl_b32 {sr(S_TMP+4)}, {sr(S_IDX)}, 6")
    A(f"s_add_u32 {sr(S_TMP+5)}, {sr(S_TMP+5)}, {sr(S_TMP+4)}")
    A(f"v_mov_b32 {vr(LT+7)}, {F_NONCE}")
    lds_wait(F_Q1, 4, LT+8, sleep=0)
    A(f"ds_read_b32 {vr(LT+1)}, {vr(LT)}")
    A(f"ds_read_b32 {vr(LT+2)}, {vr(LT)} offset:512")
    A(f"ds_read_b32 {vr(LT+5)}, {vr(LT+7)}")
    A("s_waitcnt lgkmcnt(0)")
    A(f"v_add_f32 {vr(LT+1)}, {vr(LT+1)}, {vr(LT+2)}")
    xreduce("v_add_f32", [LT+1], [LT+2], steps=("v_permlane16_swap_b32",))
    A.nop(2)
    A(f"v_mov_b32_dpp {vr(LT+2)}, {vr(LT+1)} quad_perm:[1,0,3,2] {DPPM}")
    A(f"v_readfirstlane_b32 {sr(S_NONCE)}, {vr(LT+5)}")
    A(f"v_cvt_pk_bf16_f32 {vr(LT+4)}, {vr(LT+1)}, {vr(LT+2)}")
    A("s_mov_b32 exec_lo, 0x5555")
    A("s_mov_b32 exec_hi, 0x5555")
    A.vmem(f"buffer_store_dwordx2 {vr(LT+4,2)}, {vr(LT+3)}, {sr(SWS,4)}, {sr(S_TMP+5)} offen sc1")
    A("s_mov_b64 exec, -1")
    stamp("q_published")
    V_L8 = 3
    A(f"v_lshlrev_b32 {vr(V_L8)}, 3, v0")
    GW1, GB1, GW2 = 16, 44, 72
    RAW1, RAWB = 86, 100
    G_A, G_B, G_P, G_ACC, G_T, G_K0 = 86, 118, 150, 166, 174, 182
    V_WO = 184
    K0 = -2.0 * math.sqrt(2.0 / math.pi) * LOG2E
    K1 = K0 * 0.044715
    S_ONE_LO, S_ONE_HI = S_C0 + 1, S_C0 + 2
    A(f"s_mov_b32 {sr(S_ONE_LO)}, 0x00003f80")
    A(f"s_mov_b32 {sr(S_ONE_HI)}, 0x3f800000")
    A(f"s_mov_b32 {sr(S_C0)}, {hex(f2u(LOG2E))}")
    A(f"s_lshl_b32 {sr(S_B2)}, {sr(S_B2)}, 16")
    A(f"s_cmp_eq_u32 {sr(S_WAVE)}, 0")
    A("s_cbranch_scc0 L_noqpoll")
    A(f"s_lshl_b32 {sr(S_TMP+6)}, {sr(S_B)}, 14")
    A(f"s_lshl_b32 {sr(S_TMP+4)}, {sr(S_HKV)}, 11")
    A(f"s_add_u32 {sr(S_TMP+6)}, {sr(S_TMP+6)}, {sr(S_TMP+4)}")
    QG = G_A
    A(f"v_add_u32 {vr(LT+6)}, {L_Q}, {vr(V_L8)}")
    def q_iss(k):
        A(f"buffer_load_dwordx4 {vr(QG+8*k,4)}, {vr(V_L16)}, {sr(SWS,4)}, {sr(S_TMP+6)} offen sc1")
        A(f"buffer_load_dwordx4 {vr(QG+8*k+4,4)}, {vr(V_L16)}, {sr(SWS,4)}, {sr(S_TMP+6)} offen offset:1024 sc1")
    def q_chk(k):
        for i in range(4):
            A(f"v_xor_b32 {vr(LT+i)}, {sr(S_NONCE)}, {vr(QG+8*k+2*i+1)}")
        A(f"v_or3_b32 {vr(LT)}, {vr(LT)}, {vr(LT+1)}, {vr(LT+2)}")
        A(f"v_or_b32 {vr(LT)}, {vr(LT)}, {vr(LT+3)}")
        A(f"v_cmp_ne_u32 vcc, 0, {vr(LT)}")
    def q_done(k):
        A(f"v_mov_b32 {vr(QG+8*k+1)}, {vr(QG+8*k+2)}")
        A(f"v_mov_b32 {vr(QG+8*k+5)}, {vr(QG+8*k+6)}")
        A(f"ds_write_b64 {vr(LT+6)}, {vr(QG+8*k,2)}")
        A(f"ds_write_b64 {vr(LT+6)}, {vr(QG+8*k+4,2)} offset:512")
    A("s_waitcnt vmcnt(0)")
    poll_pipe(3, 2, q_iss, q_chk, q_done)
    lds_inc(F_Q2, LT+8)
    stamp("q_ok")
    A("s_waitcnt vmcnt(0)")
    A.label("L_noqpoll")
    S_WOS = 5
    A(f"s_mov_b32 {sr(S_WOS)}, {sr(S_TMP+3)}")
    V_XF = 4
    A(f"s_cmp_lt_u32 s2, 8")
    A("s_cbranch_scc0 L_noxf")
    A(f"s_lshl_b32 {sr(S_TMP+2)}, s2, 10")
    A(f"s_lshl_b32 {sr(S_TMP+4)}, {sr(S_WAVE)}, 8")
    A(f"s_add_u32 {sr(S_TMP+2)}, {sr(S_TMP+2)}, {sr(S_TMP+4)}")
    A(f"v_lshlrev_b32 {vr(LT+6)}, 2, v0")
    A(f"buffer_load_dword {vr(V_XF)}, {vr(LT+6)}, {sr(SX,4)}, {sr(S_TMP+2)} offen")
    A.label("L_noxf")
    A(f"s_cmp_eq_u32 {sr(S_WAVE)}, 0")
    A("s_cbranch_scc1 L_gskip")
    def gw_load():
        for (srd_, dst) in ((SW1, RAW1), (SB1, RAWB), (SW2, GW2)):
            if 'g' in o['skip']: continue
            for c in range(3):
                A.vmem(f"buffer_load_dwordx4 {vr(dst+4*c,4)}, {vr(V_L16)}, {sr(srd_,4)}, 0 offen offset:{1024*c}")
            A.vmem(f"buffer_load_dwordx2 {vr(dst+12,2)}, {vr(V_L8)}, {sr(srd_,4)}, 0 offen offset:3072")
    def gw_unpack():
        A("s_waitcnt vmcnt(0)")
        unpack(GW1, RAW1, 14)
        unpack(GB1, RAWB, 14)
        A(f"v_mov_b32 {vr(G_K0)}, {hex(f2u(K0))}")
    def wo_dma():
        for u in range(4):
            if u:
                A(f"s_add_u32 {sr(S_TMP+4)}, {sr(S_RING)}, {u*1024}")
                A(f"s_mov_b32 m0, {sr(S_TMP+4)}")
                A(f"s_add_u32 {sr(S_WOS)}, {sr(S_WOS)}, {32*1024}")
            if 'o' in o['skip']: continue
            A.vmem(f"buffer_load_dwordx4 {vr(T+17)}, {sr(SWO,4)}, {sr(S_WOS)} offen{WNT} lds")
    gw_load()
    A(f"s_lshl_b32 {sr(S_TMP+2)}, {sr(S_WAVE)}, 11")
    A(f"s_sub_u32 {sr(S_TMP+2)}, {sr(S_TMP+2)}, 2048")
    A(f"s_add_u32 {sr(S_TMP+8)}, {sr(S_TMP+2)}, s2")
    for k in range(8):
        A(f"s_add_u32 {sr(S_TMP+3)}, {sr(S_TMP+8)}, {256*k}")
        A(f"s_cmp_ge_u32 {sr(S_TMP+3)}, {GT_HALF}")
        A(f"s_cselect_b32 {sr(S_TMP+4)}, {0x8000 - GT_HALF}, 0")
        A(f"s_add_u32 {sr(S_TMP+3)}, {sr(S_TMP+3)}, {sr(S_TMP+4)}")
        A(f"s_add_u32 {sr(S_TMP+3)}, {sr(S_TMP+3)}, {E0*128}")
        A(f"s_lshl_b32 {sr(S_TMP+3)}, {sr(S_TMP+3)}, 16")
        A(f"v_mov_b32 {vr(G_T+k)}, {sr(S_TMP+3)}")
        A(f"v_mov_b32 {vr(G_ACC+k)}, 0")
    A(f"s_setprio {o['pg']}")
    gw_unpack()
    def g_chunk(c, nt):
        n = nt * 4
        E = [(k, f) for k in range(nt) for f in range(4)]
        for i, (k, f) in enumerate(E):
            A(f"v_mul_f32 {vr(G_A+i)}, {vr(G_T+k)}, {vr(GW1+4*c+f)}")
        for i in range(0, n, 2):
            A(f"v_cvt_pk_bf16_f32 {vr(G_P+i//2)}, {vr(G_A+i)}, {vr(G_A+i+1)}")
        for i, (k, f) in enumerate(E):
            one = S_ONE_LO if i % 2 == 0 else S_ONE_HI
            A(f"v_dot2_f32_bf16 {vr(G_A+i)}, {vr(G_P+i//2)}, {sr(one)}, {vr(GB1+4*c+f)}")
        A.nop(max(0, 3 - (n - 2)))
        for i in range(0, n, 2):
            if n == 4 and i == 2: A.nop(2)
            A(f"v_cvt_pk_bf16_f32 {vr(G_P+i//2)}, {vr(G_A+i)}, {vr(G_A+i+1)}")
        for i in range(0, n, 2):
            A(f"v_lshlrev_b32 {vr(G_A+i)}, 16, {vr(G_P+i//2)}")
            A(f"v_and_b32 {vr(G_A+i+1)}, 0xffff0000, {vr(G_P+i//2)}")
        for i in range(n):
            A(f"v_mul_f32 {vr(G_B+i)}, {vr(G_A+i)}, {vr(G_A+i)}")
        for i in range(n):
            A(f"v_fmamk_f32 {vr(G_B+i)}, {vr(G_B+i)}, {hex(f2u(K1))}, {vr(G_K0)}")
        for i in range(n):
            A(f"v_mul_f32 {vr(G_B+i)}, {vr(G_A+i)}, {vr(G_B+i)}")
        for i in range(n):
            A(f"v_exp_f32 {vr(G_B+i)}, {vr(G_B+i)}")
        for i in range(n):
            A(f"v_add_f32 {vr(G_B+i)}, 1.0, {vr(G_B+i)}")
        for i in range(n):
            A(f"v_rcp_f32 {vr(G_B+i)}, {vr(G_B+i)}")
        for i in range(n):
            A(f"v_mul_f32 {vr(G_B+i)}, {vr(G_A+i)}, {vr(G_B+i)}")
        for i in range(0, n, 2):
            A(f"v_cvt_pk_bf16_f32 {vr(G_P+i//2)}, {vr(G_B+i)}, {vr(G_B+i+1)}")
        for i in range(0, n, 2):
            k, f = E[i]
            A(f"v_dot2_f32_bf16 {vr(G_ACC+k)}, {vr(G_P+i//2)}, {vr(GW2+2*c+f//2)}, {vr(G_ACC+k)}")
        A.nop(3)
    def g_finish(nt):
        allreduce("v_add_f32", [G_ACC+k for k in range(nt)], [G_P+k for k in range(nt)])
        for k in range(nt):
            rne1(G_ACC+k, G_ACC+k)
        for k in range(nt):
            A(f"v_add_f32 {vr(G_ACC+k)}, {sr(S_B2)}, {vr(G_ACC+k)}")
        for k in range(nt):
            rne1(G_ACC+k, G_ACC+k)
    for c in range(7 if 'G' not in o['skip'] else 0):
        g_chunk(c, 8)
    g_finish(8)
    A("s_setprio 3")
    A(f"v_mov_b32 {vr(G_P)}, {vr(G_ACC)}")
    for k in range(1, 8):
        A(f"v_cmp_eq_u32 vcc, {k}, v0")
        A.nop(2)
        A(f"v_cndmask_b32 {vr(G_P)}, {vr(G_P)}, {vr(G_ACC+k)}, vcc")
    A(f"v_mov_b32 {vr(G_P+1)}, {sr(S_NONCE)}")
    A(f"v_lshlrev_b32 {vr(G_P+2)}, 11, v0")
    A(f"s_lshl_b32 {sr(S_TMP+2)}, {sr(S_TMP+8)}, 3")
    A(f"s_add_u32 {sr(S_TMP+2)}, {sr(S_TMP+2)}, {WS_GT}")
    A(f"s_mov_b64 exec, 0xff")
    A(f"buffer_store_dwordx2 {vr(G_P,2)}, {vr(G_P+2)}, {sr(SWS,4)}, {sr(S_TMP+2)} offen sc1")
    A("s_mov_b64 exec, -1")
    A.label("L_gskip")
    wo_dma()
    stamp("g_done")
    A("s_waitcnt vmcnt(0)")
    lds_inc(F_WOL, T)
    A(f"v_lshrrev_b32 {vr(T+2)}, 2, {vr(V_J)}")
    A(f"v_lshlrev_b32 {vr(V_TRA)}, 10, {vr(V_G)}")
    A(f"v_lshl_add_u32 {vr(V_TRA)}, {vr(T+2)}, 7, {vr(V_TRA)}")
    A(f"v_and_b32 {vr(T+2)}, 3, {vr(V_J)}")
    A(f"v_lshl_add_u32 {vr(V_TRA)}, {vr(T+2)}, 3, {vr(V_TRA)}")
    A(f"s_lshl_b32 {sr(S_TMP+2)}, {sr(S_WAVE)}, 5")
    A(f"s_add_u32 {sr(S_TMP+2)}, {sr(S_TMP+2)}, {L_STG}")
    A(f"v_add_u32 {vr(V_TRA)}, {sr(S_TMP+2)}, {vr(V_TRA)}")
    V_R1A = 5
    A(f"v_lshlrev_b32 {vr(V_R1A)}, 11, {vr(V_J)}")
    A(f"v_and_b32 {vr(T)}, 1, {vr(V_J)}")
    A(f"v_lshlrev_b32 {vr(T)}, 10, {vr(T)}")
    A(f"v_sub_u32 {vr(V_R1A)}, {vr(V_R1A)}, {vr(T)}")
    A(f"v_lshl_add_u32 {vr(V_R1A)}, {vr(V_G)}, 4, {vr(V_R1A)}")
    S_R1C, S_R1P, S_R2P = 72, 73, 74
    A(f"s_lshl_b32 {sr(S_R1C)}, {sr(S_HKV)}, 15")
    A(f"s_add_u32 {sr(S_R1C)}, {sr(S_R1C)}, {WS_R1}")
    A(f"s_lshl_b32 {sr(S_R1P)}, {sr(S_IDX)}, 10")
    A(f"s_add_u32 {sr(S_R1P)}, {sr(S_R1P)}, {sr(S_R1C)}")
    A(f"s_lshl_b32 {sr(S_TMP+3)}, {sr(S_WAVE)}, 8")
    A(f"s_add_u32 {sr(S_R1P)}, {sr(S_R1P)}, {sr(S_TMP+3)}")
    A(f"s_lshl_b32 {sr(S_TMP+3)}, {sr(S_S)}, 8")
    A(f"s_add_u32 {sr(S_R1C)}, {sr(S_R1C)}, {sr(S_TMP+3)}")
    A(f"s_lshl_b32 {sr(S_R2P)}, {sr(S_HKV)}, 13")
    A(f"s_lshl_b32 {sr(S_TMP+3)}, {sr(S_S)}, 11")
    A(f"s_add_u32 {sr(S_R2P)}, {sr(S_R2P)}, {sr(S_TMP+3)}")
    A(f"s_lshl_b32 {sr(S_TMP+3)}, {sr(S_B)}, 8")
    A(f"s_add_u32 {sr(S_R2P)}, {sr(S_R2P)}, {sr(S_TMP+3)}")
    A(f"s_lshl_b32 {sr(S_TMP+3)}, {sr(S_WAVE)}, 6")
    A(f"s_add_u32 {sr(S_R2P)}, {sr(S_R2P)}, {sr(S_TMP+3)}")
    A(f"s_add_u32 {sr(S_R2P)}, {sr(S_R2P)}, {WS_R2}")
    A(f"s_add_u32 {sr(S_R2P+1)}, {sr(S_R2P)}, 65536")
    V_PR = 6
    V_L4 = 7
    V_R2A = 10
    A(f"s_lshl_b32 {sr(S_TMP+3)}, {sr(S_WAVE)}, 9")
    A(f"v_add_u32 {vr(V_PR)}, {sr(S_TMP+3)}, {vr(V_L8)}")
    A(f"v_add_u32 {vr(V_PR+5)}, {2*RING}, {vr(V_PR)}")
    A(f"v_lshlrev_b32 {vr(V_L4)}, 2, v0")
    A(f"v_lshlrev_b32 {vr(V_R2A)}, 17, {vr(V_G)}")
    A(f"v_lshl_add_u32 {vr(V_R2A)}, {vr(V_J)}, 2, {vr(V_R2A)}")
    def wo_frag():
        lds_wait(F_WOL, 4, T, sleep=2)
        for u in range(4):
            for h in range(2):
                A(f"ds_read_b64_tr_b16 {vr(V_WO+4*u+2*h,2)}, {vr(V_TRA)} offset:{u*4096+h*512}")
        lds_inc(F_WO, T)
    A(f"s_cmp_eq_u32 {sr(S_WAVE)}, 0")
    A("s_cbranch_scc0 L_notstat")
    V_ST = T + 12
    A(f"s_lshl_b32 {sr(S_TMP+7)}, {sr(S_B)}, 3")
    A(f"s_add_u32 {sr(S_TMP+7)}, {sr(S_TMP+7)}, {sr(S_HKV)}")
    A(f"s_lshl_b32 {sr(S_TMP+7)}, {sr(S_TMP+7)}, 9")
    A(f"s_add_u32 {sr(S_TMP+7)}, {sr(S_TMP+7)}, {WS_ST}")
    A(f"s_lshl_b32 {sr(S_TMP+2)}, {sr(S_S)}, 7")
    A(f"s_add_u32 {sr(S_TMP+2)}, {sr(S_TMP+2)}, {sr(S_TMP+7)}")
    A(f"v_and_b32 {vr(T+10)}, 0x1ff, {vr(V_L16)}")
    A(f"v_and_b32 {vr(T+11)}, 0x7f, {vr(V_L16)}")
    A(f"v_add_u32 {vr(T+11)}, {L_STAT}, {vr(T+11)}")
    A(f"v_and_b32 {vr(T+20)}, 0x3f, {vr(V_L8)}")
    A(f"v_add_u32 {vr(T+20)}, {L_FAC}, {vr(T+20)}")
    A(f"s_lshl_b32 {sr(S_TMP+8)}, {sr(S_S)}, 3")
    lds_wait(F_ST, 4, T)
    A(f"ds_read_b128 {vr(V_ST,4)}, {vr(T+11)}")
    A("s_waitcnt lgkmcnt(0)")
    for r in range(4):
        A(f"v_min_u32 {vr(V_ST+r)}, -2, {vr(V_ST+r)}")
    A("s_mov_b64 exec, 0xff")
    A(f"buffer_store_dwordx4 {vr(V_ST,4)}, {vr(V_L16)}, {sr(SWS,4)}, {sr(S_TMP+2)} offen sc1")
    A("s_mov_b64 exec, -1")
    stamp("st_pub")
    STP = 86
    V_ST = V_ST + 4
    def st_iss(k):
        A(f"buffer_load_dwordx4 {vr(STP+4*k,4)}, {vr(T+10)}, {sr(SWS,4)}, {sr(S_TMP+7)} offen sc1")
    def st_chk(k):
        A(f"v_max3_u32 {vr(T)}, {vr(STP+4*k)}, {vr(STP+4*k+1)}, {vr(STP+4*k+2)}")
        A(f"v_max_u32 {vr(T)}, {vr(T)}, {vr(STP+4*k+3)}")
        A(f"v_cmp_eq_u32 vcc, -1, {vr(T)}")
    def st_done(k):
        for r in range(4):
            A(f"v_mov_b32 {vr(V_ST+r)}, {vr(STP+4*k+r)}")
    poll_pipe(3, 1, st_iss, st_chk, st_done)
    A(f"v_mov_b32 {vr(T)}, {vr(V_ST)}")
    A(f"v_mov_b32 {vr(T+1)}, {vr(V_ST+2)}")
    def preduce(op, regs, tmps):
        for d in (8, 4, 2):
            A.nop(max(0, 2 - (len(regs) - 1)))
            for r in regs:
                A(f"{op}_dpp {vr(r)}, {vr(r)}, {vr(r)} row_ror:{d} {DPPM}")
        xreduce(op, regs, tmps, steps=("v_permlane16_swap_b32",))
    preduce("v_max_f32", [T, T+1], [T+2, T+3])
    A(f"v_sub_f32 {vr(T+2)}, {vr(V_ST)}, {vr(T)}")
    A(f"v_sub_f32 {vr(T+3)}, {vr(V_ST+2)}, {vr(T+1)}")
    A(f"v_mul_f32 {vr(T+2)}, {sr(S_C0)}, {vr(T+2)}")
    A(f"v_mul_f32 {vr(T+3)}, {sr(S_C0)}, {vr(T+3)}")
    A(f"v_exp_f32 {vr(T+2)}, {vr(T+2)}")
    A(f"v_exp_f32 {vr(T+3)}, {vr(T+3)}")
    A.nop(1)
    A(f"v_mul_f32 {vr(T+4)}, {vr(T+2)}, {vr(V_ST+1)}")
    A(f"v_mul_f32 {vr(T+5)}, {vr(T+3)}, {vr(V_ST+3)}")
    preduce("v_add_f32", [T+4, T+5], [T+6, T+7])
    A(f"v_rcp_f32 {vr(T+4)}, {vr(T+4)}")
    A(f"v_rcp_f32 {vr(T+5)}, {vr(T+5)}")
    A.nop(1)
    A(f"v_mul_f32 {vr(T+2)}, {vr(T+2)}, {vr(T+4)}")
    A(f"v_mul_f32 {vr(T+3)}, {vr(T+3)}, {vr(T+5)}")
    A(f"s_lshl_b64 exec, 0xff, {sr(S_TMP+8)}")
    A(f"ds_write_b64 {vr(T+20)}, {vr(T+2,2)}")
    A("s_mov_b64 exec, -1")
    lds_inc(F_FAC, T+8)
    stamp("fac_done")
    A("s_waitcnt vmcnt(0)")
    wo_frag()
    A("s_branch L_pre_s4")
    A.label("L_notstat")
    wo_frag()
    A(f"s_cmp_lt_u32 s2, 8")
    A("s_cbranch_scc0 L_pre_s4")
    GG = 86
    V_NA = T + 12
    A(f"s_sub_u32 {sr(S_TMP+2)}, {sr(S_WAVE)}, 1")
    A(f"s_lshl_b32 {sr(S_TMP+3)}, {sr(S_TMP+2)}, 14")
    A(f"s_add_u32 {sr(S_TMP+3)}, {sr(S_TMP+3)}, {WS_GT}")
    for k in range(1, 4):
        A(f"s_add_u32 {sr(S_TMP+3+k)}, {sr(S_TMP+3)}, {4096*k}")
    A(f"v_and_b32 {vr(T+10)}, 3, v0")
    A(f"v_lshlrev_b32 {vr(T+10)}, 6, {vr(T+10)}")
    A(f"s_lshl_b32 {sr(S_TMP+2)}, {sr(S_TMP+2)}, 13")
    A(f"s_add_u32 {sr(S_TMP+2)}, {sr(S_TMP+2)}, {L_GT}")
    A(f"v_add_u32 {vr(T+11)}, {sr(S_TMP+2)}, {vr(V_L8)}")
    lds_wait(F_ST, 1, T+4, sleep=4)
    A(f"s_mov_b32 {sr(S_SPIN)}, {SPIN_LIMIT}")
    A.label("L_gchk")
    for i in range(16):
        A(f"buffer_load_dwordx4 {vr(GG+4*i,4)}, {vr(V_L16)}, {sr(SWS,4)}, {sr(S_TMP+3+(i>>2))} offen offset:{(i&3)*1024} sc1")
    A(f"buffer_load_dword {vr(V_NA)}, {vr(T+10)}, {sr(SDBG,4)}, 0 offen sc1")
    A(f"buffer_load_dword {vr(V_NA+1)}, {vr(T+10)}, {sr(SDBG,4)}, 0 offen offset:32 sc1")
    A("s_waitcnt vmcnt(0)")
    A(f"v_and_b32 {vr(T)}, {vr(V_NA)}, {vr(V_NA+1)}")
    A(f"v_and_b32 {vr(T)}, 1, {vr(T)}")
    A(f"v_xor_b32 {vr(T)}, 1, {vr(T)}")
    for i in range(16):
        A(f"v_xor_b32 {vr(T+1)}, {vr(V_NA)}, {vr(GG+4*i+1)}")
        A(f"v_xor_b32 {vr(T+2)}, {vr(V_NA+1)}, {vr(GG+4*i+3)}")
        A(f"v_or3_b32 {vr(T)}, {vr(T)}, {vr(T+1)}, {vr(T+2)}")
    A(f"v_cmp_ne_u32 vcc, 0, {vr(T)}")
    A("s_cbranch_vccz L_gok")
    A("s_sleep 32")
    A(f"s_sub_u32 {sr(S_SPIN)}, {sr(S_SPIN)}, 1")
    A("s_cbranch_scc0 L_gchk")
    A.label("L_gok")
    lds_wait(F_WO, 4, T+4)
    for i in range(16):
        A(f"v_mov_b32 {vr(GG+4*i+1)}, {vr(GG+4*i+2)}")
    for i in range(16):
        A(f"ds_write_b64 {vr(T+11)}, {vr(GG+4*i,2)} offset:{i*512}")
    stamp("gt_done")
    A.label("L_pre_s4")
    A("s_waitcnt lgkmcnt(0)")
    A("s_barrier")
    stamp("s4")
    if 'T' in o['skip']: A("s_branch L_fin")
    RB = 86
    for w in range(4):
        ad = V_PR if w < 2 else V_PR + 5
        A(f"ds_read_b64 {vr(RB+2*w,2)}, {vr(ad)} offset:{(w&1)*RING}")
    S_M = 80
    for k in range(4):
        A(f"s_mov_b64 {sr(S_M+2*k,2)}, -1")
    A(f"s_mov_b32 {sr(S_SPIN)}, {SPIN_LIMIT}")
    A("s_waitcnt lgkmcnt(2)")
    A(f"v_pk_add_f32 {vr(RB,2)}, {vr(RB,2)}, {vr(RB+2,2)}")
    A("s_waitcnt lgkmcnt(0)")
    A(f"v_pk_add_f32 {vr(RB+4,2)}, {vr(RB+4,2)}, {vr(RB+6,2)}")
    A(f"v_pk_add_f32 {vr(RB,2)}, {vr(RB,2)}, {vr(RB+4,2)}")
    A(f"v_cvt_pk_bf16_f32 {vr(RB+2)}, {vr(RB)}, {vr(RB+1)}")
    A(f"v_min_u32 {vr(RB+2)}, -2, {vr(RB+2)}")
    A(f"buffer_store_dword {vr(RB+2)}, {vr(V_L4)}, {sr(SWS,4)}, {sr(S_R1P)} offen sc1")
    stamp("r1_pub")
    RA = 96
    A.label("L_r1loop")
    for k in range(4):
        tau, up = k >> 1, k & 1
        A(f"s_mov_b64 exec, {sr(S_M+2*k,2)}")
        A(f"s_cbranch_execz L_r1s{k}")
        for uu in range(2):
            u = 2 * up + uu
            A(f"buffer_load_dwordx4 {vr(RA+8*k+4*uu,4)}, {vr(V_R1A)}, {sr(SWS,4)}, {sr(S_R1C)} offen offset:{tau*2048+u*64} sc1")
        A.label(f"L_r1s{k}")
    A("s_mov_b64 exec, -1")
    A("s_waitcnt vmcnt(0)")
    for k in range(4):
        A(f"v_max3_u32 {vr(T+k)}, {vr(RA+8*k)}, {vr(RA+8*k+1)}, {vr(RA+8*k+2)}")
    for k in range(4):
        A(f"v_max3_u32 {vr(T+k)}, {vr(T+k)}, {vr(RA+8*k+3)}, {vr(RA+8*k+4)}")
    for k in range(4):
        A(f"v_max3_u32 {vr(T+k)}, {vr(T+k)}, {vr(RA+8*k+5)}, {vr(RA+8*k+6)}")
    for k in range(4):
        A(f"v_max_u32 {vr(T+k)}, {vr(T+k)}, {vr(RA+8*k+7)}")
    for k in range(4):
        A(f"v_cmp_eq_u32 {sr(S_M+2*k,2)}, -1, {vr(T+k)}")
    A(f"s_or_b64 {sr(S_TMP,2)}, {sr(S_M,2)}, {sr(S_M+2,2)}")
    A(f"s_or_b64 {sr(S_TMP+2,2)}, {sr(S_M+4,2)}, {sr(S_M+6,2)}")
    A(f"s_or_b64 {sr(S_TMP,2)}, {sr(S_TMP,2)}, {sr(S_TMP+2,2)}")
    A("s_cbranch_scc0 L_r1ok")
    A(f"s_sub_u32 {sr(S_SPIN)}, {sr(S_SPIN)}, 1")
    A("s_cbranch_scc0 L_r1loop")
    A.label("L_r1ok")
    OD = T + 8
    for k in range(4):
        tau, up = k >> 1, k & 1
        for uu in range(2):
            u = 2 * up + uu
            od = OD + 4 * uu
            c = "0" if k == 0 else vr(od, 4)
            A(f"v_mfma_f32_16x16x32_bf16 {vr(od,4)}, {vr(RA+8*k+4*uu,4)}, {vr(V_WO+4*u,4)}, {c}")
    stamp("r1_ok")
    A.nop(8)
    A(f"v_pk_add_f32 {vr(OD,2)}, {vr(OD,2)}, {vr(OD+4,2)}")
    A(f"v_pk_add_f32 {vr(OD+2,2)}, {vr(OD+2,2)}, {vr(OD+6,2)}")
    A(f"v_add_f32 {vr(T+1)}, {vr(OD)}, {vr(OD+1)}")
    A(f"v_add_f32 {vr(T+2)}, {vr(OD+2)}, {vr(OD+3)}")
    A(f"v_min_u32 {vr(T+1)}, -2, {vr(T+1)}")
    A(f"v_min_u32 {vr(T+2)}, -2, {vr(T+2)}")
    A(f"buffer_store_dword {vr(T+1)}, {vr(V_R2A)}, {sr(SWS,4)}, {sr(S_R2P)} offen sc1")
    A(f"buffer_store_dword {vr(T+2)}, {vr(V_R2A)}, {sr(SWS,4)}, {sr(S_R2P+1)} offen sc1")
    stamp("r2_pub")
    A(f"s_cmp_lt_u32 s2, 8")
    A("s_cbranch_scc0 L_fin")
    FB = 96
    H = 196
    OWN = 184
    D_ = T + 24
    N1 = T + 32
    LT2 = T
    A(f"s_lshl_b32 {sr(S_TMP+2)}, s2, 16")
    A(f"s_lshl_b32 {sr(S_TMP+6)}, {sr(S_WAVE)}, 9")
    A(f"s_add_u32 {sr(S_TMP+2)}, {sr(S_TMP+2)}, {sr(S_TMP+6)}")
    A(f"s_add_u32 {sr(S_TMP+2)}, {sr(S_TMP+2)}, {WS_R2}")
    A(f"s_add_u32 {sr(S_TMP+6)}, {sr(S_TMP+6)}, {L_H}")
    A(f"v_add_u32 {vr(OWN+8)}, {sr(S_TMP+6)}, {vr(V_L8)}")
    A(f"v_lshlrev_b32 {vr(OWN+9)}, 5, v0")
    A(f"v_add_u32 {vr(OWN+9)}, {L_H}, {vr(OWN+9)}")
    A(f"v_lshlrev_b32 {vr(OWN+6)}, 16, {vr(V_XF)}")
    A(f"v_and_b32 {vr(OWN+7)}, 0xffff0000, {vr(V_XF)}")
    A(f"s_mov_b32 {sr(S_SPIN)}, {SPIN_LIMIT}")
    for k in range(4):
        A(f"s_mov_b64 {sr(S_M+2*k,2)}, -1")
    A.label("L_r2loop")
    for k in range(4):
        A(f"s_cmp_eq_u64 {sr(S_M+2*k,2)}, 0")
        A(f"s_cbranch_scc1 L_r2s{k}")
        for pp in range(4):
            A(f"s_add_u32 {sr(S_TMP+3)}, {sr(S_TMP+2)}, {(4*k+pp)*4096}")
            for x in range(2):
                p = 8 * k + 2 * pp + x
                A(f"buffer_load_dwordx2 {vr(FB+2*p,2)}, {vr(V_L8)}, {sr(SWS,4)}, {sr(S_TMP+3)} offen offset:{x*2048} sc1")
        A.label(f"L_r2s{k}")
    A("s_waitcnt vmcnt(0)")
    for st in range(8):
        for k in range(4):
            r = FB + 16 * k
            if st == 0:
                A(f"v_max3_u32 {vr(T+k)}, {vr(r)}, {vr(r+1)}, {vr(r+2)}")
            elif st < 7:
                A(f"v_max3_u32 {vr(T+k)}, {vr(T+k)}, {vr(r+1+2*st)}, {vr(r+2+2*st)}")
            else:
                A(f"v_max_u32 {vr(T+k)}, {vr(T+k)}, {vr(r+15)}")
    for k in range(4):
        A(f"v_cmp_eq_u32 {sr(S_M+2*k,2)}, -1, {vr(T+k)}")
    A(f"s_or_b64 {sr(S_TMP,2)}, {sr(S_M,2)}, {sr(S_M+2,2)}")
    A(f"s_or_b64 {sr(S_TMP+4,2)}, {sr(S_M+4,2)}, {sr(S_M+6,2)}")
    A(f"s_or_b64 {sr(S_TMP,2)}, {sr(S_TMP,2)}, {sr(S_TMP+4,2)}")
    A("s_cbranch_scc0 L_r2ok")
    A(f"s_sub_u32 {sr(S_SPIN)}, {sr(S_SPIN)}, 1")
    A("s_cbranch_scc0 L_r2loop")
    A.label("L_r2ok")
    w_ = 2
    while w_ <= 32:
        for p in range(0, 64, 2 * w_):
            A(f"v_pk_add_f32 {vr(FB+p,2)}, {vr(FB+p,2)}, {vr(FB+p+w_,2)}")
        w_ *= 2
    rne2(FB, FB+1, T)
    A(f"v_pk_add_f32 {vr(OWN,2)}, {vr(FB,2)}, {vr(OWN+6,2)}")
    rne2(OWN, OWN+1, T)
    A(f"ds_write_b64 {vr(OWN+8)}, {vr(OWN,2)}")
    A("s_waitcnt lgkmcnt(0)")
    A("s_barrier")
    stamp("r2_ok")
    A(f"ds_read_b128 {vr(H,4)}, {vr(OWN+9)}")
    A(f"ds_read_b128 {vr(H+4,4)}, {vr(OWN+9)} offset:16")
    def ln_stats(x, t):
        A(f"v_readfirstlane_b32 {sr(S_TMP+7)}, {vr(x)}")
        A.nop(2)
        A(f"v_mov_b32 {vr(t+2)}, {sr(S_TMP+7)}")
        A(f"v_mov_b32 {vr(t+3)}, {sr(S_TMP+7)}")
        for i in range(0, 8, 2):
            A(f"v_pk_add_f32 {vr(t+4+i,2)}, {vr(x+i,2)}, {vr(t+2,2)} neg_lo:[0,1] neg_hi:[0,1]")
        A(f"v_pk_add_f32 {vr(t,2)}, {vr(t+4,2)}, {vr(t+6,2)}")
        A(f"v_pk_mul_f32 {vr(t+12,2)}, {vr(t+4,2)}, {vr(t+4,2)}")
        A(f"v_pk_add_f32 {vr(t,2)}, {vr(t,2)}, {vr(t+8,2)}")
        A(f"v_pk_fma_f32 {vr(t+12,2)}, {vr(t+6,2)}, {vr(t+6,2)}, {vr(t+12,2)}")
        A(f"v_pk_add_f32 {vr(t,2)}, {vr(t,2)}, {vr(t+10,2)}")
        A(f"v_pk_fma_f32 {vr(t+12,2)}, {vr(t+8,2)}, {vr(t+8,2)}, {vr(t+12,2)}")
        A(f"v_add_f32 {vr(t)}, {vr(t)}, {vr(t+1)}")
        A(f"v_pk_fma_f32 {vr(t+12,2)}, {vr(t+10,2)}, {vr(t+10,2)}, {vr(t+12,2)}")
        A(f"v_add_f32 {vr(t+1)}, {vr(t+12)}, {vr(t+13)}")
        allreduce("v_add_f32", [t, t+1], [t+4, t+5])
        A(f"v_mul_f32 {vr(t)}, {hex(f2u(1/512))}, {vr(t)}")
        A(f"v_mul_f32 {vr(t+1)}, {hex(f2u(1/512))}, {vr(t+1)}")
        A(f"v_fma_f32 {vr(t+1)}, -{vr(t)}, {vr(t)}, {vr(t+1)}")
        A(f"v_add_f32 {vr(t)}, {vr(t)}, {vr(t+2)}")
        A(f"v_max_f32 {vr(t+1)}, 0, {vr(t+1)}")
        rne2(t, t+1, t+4)
        A(f"v_add_f32 {vr(t+1)}, {hex(f2u(1e-5))}, {vr(t+1)}")
        rne1(t+1, t+1)
        A(f"v_sqrt_f32 {vr(t+1)}, {vr(t+1)}")
        A.nop(1)
        rne1(t+1, t+1)
        A(f"v_rcp_f32 {vr(t+2)}, {vr(t+1)}")
        A(f"v_mov_b32 {vr(t+4)}, {vr(t)}")
        A(f"v_mov_b32 {vr(t+5)}, {vr(t)}")
        A(f"v_mov_b32 {vr(t+6)}, {vr(t+1)}")
        A(f"v_mov_b32 {vr(t+7)}, {vr(t+1)}")
        A(f"v_mov_b32 {vr(t+3)}, {vr(t+2)}")
    def ln_apply(pairs, t, pk):
        for (s_, d, n) in pairs:
            A(f"v_pk_add_f32 {vr(d,2)}, {vr(s_,2)}, {vr(t+4,2)} neg_lo:[0,1] neg_hi:[0,1]")
        for i, (s_, d, n) in enumerate(pairs):
            A(f"v_cvt_pk_bf16_f32 {vr(pk+i)}, {vr(d)}, {vr(d+1)}")
        for i, (s_, d, n) in enumerate(pairs):
            A(f"v_lshlrev_b32 {vr(d)}, 16, {vr(pk+i)}")
            A(f"v_and_b32 {vr(d+1)}, 0xffff0000, {vr(pk+i)}")
        for (s_, d, n) in pairs:
            A(f"v_pk_mul_f32 {vr(n,2)}, {vr(d,2)}, {vr(t+2,2)}")
        for (s_, d, n) in pairs:
            A(f"v_pk_fma_f32 {vr(d,2)}, {vr(n,2)}, {vr(t+6,2)}, {vr(d,2)} neg_lo:[1,0,0] neg_hi:[1,0,0]")
        for (s_, d, n) in pairs:
            A(f"v_pk_fma_f32 {vr(n,2)}, {vr(d,2)}, {vr(t+2,2)}, {vr(n,2)}")
        for i, (s_, d, n) in enumerate(pairs):
            A(f"v_cvt_pk_bf16_f32 {vr(pk+i)}, {vr(n)}, {vr(n+1)}")
        for i, (s_, d, n) in enumerate(pairs):
            A(f"v_lshlrev_b32 {vr(n)}, 16, {vr(pk+i)}")
            A(f"v_and_b32 {vr(n+1)}, 0xffff0000, {vr(pk+i)}")
    A("s_waitcnt lgkmcnt(0)")
    ln_stats(H, LT2)
    ln_apply([(H+i, D_+i, N1+i) for i in range(0, 8, 2)] + [(OWN, OWN+4, OWN+2)], LT2, LT2+8)
    ln_stats(N1, LT2)
    ln_apply([(OWN+2, OWN+4, OWN+2)], LT2, LT2+8)
    Y = OWN + 4
    S_MS = 80
    A(f"s_mov_b32 {sr(S_TMP+8)}, {GT_HALF}")
    for x in range(2):
        A(f"v_bfe_u32 {vr(LT2+2*x)}, {vr(OWN+2+x)}, 16, 15")
        A(f"v_subrev_u32 {vr(LT2+2*x)}, {E0*128}, {vr(LT2+2*x)}")
        A(f"v_cmp_gt_u32 {sr(S_MS+2*x,2)}, {sr(S_TMP+8)}, {vr(LT2+2*x)}")
        A(f"v_lshrrev_b32 {vr(LT2+2*x+1)}, 31, {vr(OWN+2+x)}")
        A(f"v_mul_u32_u24 {vr(LT2+2*x+1)}, {GT_HALF}, {vr(LT2+2*x+1)}")
        A(f"v_cndmask_b32 {vr(LT2+2*x)}, 0, {vr(LT2+2*x)}, {sr(S_MS+2*x,2)}")
        A(f"v_add_lshl_u32 {vr(LT2+2*x)}, {vr(LT2+2*x)}, {vr(LT2+2*x+1)}, 2")
        A(f"v_add_u32 {vr(LT2+2*x)}, {L_GT}, {vr(LT2+2*x)}")
        A(f"ds_read_b32 {vr(Y+x)}, {vr(LT2+2*x)}")
    A(f"s_and_b64 {sr(S_TMP+4,2)}, {sr(S_MS,2)}, {sr(S_MS+2,2)}")
    A(f"s_lshl_b32 {sr(S_TMP+2)}, s2, 10")
    A(f"s_lshl_b32 {sr(S_TMP+3)}, {sr(S_WAVE)}, 8")
    A(f"s_add_u32 {sr(S_TMP+2)}, {sr(S_TMP+2)}, {sr(S_TMP+3)}")
    A(f"s_cmp_eq_u64 {sr(S_TMP+4,2)}, -1")
    A("s_waitcnt lgkmcnt(0)")
    A("s_cbranch_scc1 L_nofb")
    gw_load()
    gw_unpack()
    for x in range(2):
        lp, dn = A.newlabel("Lfb"), A.newlabel("Lfbd")
        A(f"s_not_b64 {sr(S_TMP+4,2)}, {sr(S_MS+2*x,2)}")
        A.label(lp)
        A(f"s_cmp_eq_u64 {sr(S_TMP+4,2)}, 0")
        A(f"s_cbranch_scc1 {dn}")
        A(f"s_ff1_i32_b64 {sr(S_TMP+6)}, {sr(S_TMP+4,2)}")
        A(f"s_bitset0_b64 {sr(S_TMP+4,2)}, {sr(S_TMP+6)}")
        A(f"v_readlane_b32 {sr(S_TMP+7)}, {vr(OWN+2+x)}, {sr(S_TMP+6)}")
        A(f"v_mov_b32 {vr(G_ACC)}, 0")
        A.nop(2)
        A(f"v_mov_b32 {vr(G_T)}, {sr(S_TMP+7)}")
        A(f"v_mov_b32 {vr(G_K0)}, {hex(f2u(K0))}")
        for c in range(7):
            g_chunk(c, 1)
        g_finish(1)
        A(f"s_lshl_b64 exec, 1, {sr(S_TMP+6)}")
        A(f"v_mov_b32 {vr(Y+x)}, {vr(G_ACC)}")
        A("s_mov_b64 exec, -1")
        A(f"s_branch {lp}")
        A.label(dn)
    A.label("L_nofb")
    A(f"v_pk_add_f32 {vr(Y,2)}, {vr(Y,2)}, {vr(OWN,2)}")
    A(f"v_cvt_pk_bf16_f32 {vr(Y)}, {vr(Y)}, {vr(Y+1)}")
    A(f"buffer_store_dword {vr(Y)}, {vr(V_L4)}, {sr(SOUT,4)}, {sr(S_TMP+2)} offen")
    A("s_branch L_fin")

    A.label("L_stream")
    cur[0] = "s"
    A.vm = 0
    A(f"s_setprio {o['pst']}")
    V_KD = 2
    V_KR = 6
    V_VO = 10
    V_M0, V_M1 = 11, 14
    V_MW, V_LS = 15, 236
    V_ACC = 16
    V_XA = 24
    V_XB = 30
    V_Q = 36
    V_S = 52
    V_KF = 92
    V_V = 124
    T = 238
    NVS = 7
    S_SW = 62
    A(f"s_sub_u32 {sr(S_SW)}, {sr(S_WAVE)}, 4")
    A(f"s_lshl_b32 {sr(S_KOFF)}, {sr(S_B)}, 23")
    A(f"s_lshl_b32 {sr(S_TMP+3)}, {sr(S_HKV)}, 20")
    A(f"s_add_u32 {sr(S_KOFF)}, {sr(S_KOFF)}, {sr(S_TMP+3)}")
    A(f"s_lshl_b32 {sr(S_TMP+3)}, {sr(S_S)}, 18")
    A(f"s_add_u32 {sr(S_KOFF)}, {sr(S_KOFF)}, {sr(S_TMP+3)}")
    A(f"s_lshl_b32 {sr(S_TMP+3)}, {sr(S_SW)}, 12")
    A(f"s_add_u32 {sr(S_KOFF)}, {sr(S_KOFF)}, {sr(S_TMP+3)}")
    A(f"s_lshl_b32 {sr(S_RING)}, {sr(S_SW)}, 15")
    S_ROT = 4
    if o["rot"] == 1:
        A(f"s_lshl_b32 {sr(S_ROT)}, {sr(S_HKV)}, 1")
        A(f"s_add_u32 {sr(S_ROT)}, {sr(S_ROT)}, {sr(S_IDX)}")
    elif o["rot"] == 2:
        A(f"s_mul_i32 {sr(S_ROT)}, {sr(S_IDX)}, 5")
        A(f"s_lshl_b32 {sr(S_TMP+3)}, {sr(S_HKV)}, 1")
        A(f"s_add_u32 {sr(S_ROT)}, {sr(S_ROT)}, {sr(S_TMP+3)}")
    A(f"s_lshl_b32 {sr(S_ROT)}, {sr(S_ROT)}, 14")
    A(f"v_xor_b32 {vr(T)}, {vr(V_J)}, {vr(V_G)}")
    A(f"v_lshlrev_b32 {vr(T+1)}, 8, {vr(V_G)}")
    A(f"v_lshlrev_b32 {vr(T+2)}, 8, {vr(V_J)}")
    A(f"v_add_u32 {vr(T+2)}, {sr(S_RING)}, {vr(T+2)}")
    for a in range(4):
        A(f"v_xor_b32 {vr(T+3)}, {4*a}, {vr(T)}")
        A(f"v_lshlrev_b32 {vr(T+3)}, 4, {vr(T+3)}")
        A(f"v_add_u32 {vr(V_KD+a)}, {vr(T+1)}, {vr(T+3)}")
        A(f"v_add_u32 {vr(V_KR+a)}, {vr(T+2)}, {vr(T+3)}")
    A(f"v_lshlrev_b32 {vr(V_VO)}, 10, {vr(V_G)}")
    A(f"v_lshl_add_u32 {vr(V_VO)}, {vr(V_J)}, 4, {vr(V_VO)}")
    A("s_waitcnt lgkmcnt(0)")
    srd(SK, 1, 64 << 20)
    srd(SV, 2, 64 << 20)
    if o["debug"]: srd(SWS, 12, WS_SIZE)
    A("s_barrier")
    stamp("start")
    NV1 = o["nv1"]
    seq = [("K", t) for t in range(8)] + [("V", t) for t in range(NV1)] + [("K", t) for t in range(8, 16)] + [("V", t) for t in range(NV1, 16)]
    ops = {}
    qk_done, pv_done = set(), set()
    D = o["D"]
    def Dat(n): return D if n < o["nsw"] else o["D2"]
    def land_n(m):
        for n in range(32):
            if n - Dat(n) >= m: return n
        return 32
    def vslot(t): return V_V + 16 * (t if t < 7 else (t - 7) % 7)
    def sslot(t): return V_S + 4 * (t if t < 8 else (t - 8 if t < 8 + NV1 else t - NV1))
    def issue(n):
        k, t = seq[n]
        if k == "K" and t >= 8: assert (t - 8) in qk_done, (n, t)
        if k == "V" and t >= 7: assert (t - 7) in pv_done, (n, t)
        if n >= Dat(n):
            A.wait_vm(ops[seq[n - Dat(n)]])
        if k == "K":
            A(f"s_add_u32 {sr(S_TMP+4)}, {sr(S_RING)}, {(t&7)*4096}")
            A(f"s_mov_b32 m0, {sr(S_TMP+4)}")
        if o["rot"]:
            A(f"s_add_u32 {sr(S_TMP+5)}, {sr(S_ROT)}, {t*16384}")
            A(f"s_and_b32 {sr(S_TMP+5)}, {sr(S_TMP+5)}, 0x3ffff")
            A(f"s_add_u32 {sr(S_TMP+5)}, {sr(S_TMP+5)}, {sr(S_KOFF)}")
        else:
            A(f"s_add_u32 {sr(S_TMP+5)}, {sr(S_KOFF)}, {t*16384}")
        if k == "K":
            for a in range(4):
                ops[(k, t)] = A.vmem(f"buffer_load_dwordx4 {vr(V_KD+a)}, {sr(SK,4)}, {sr(S_TMP+5)} offen offset:{a*1024} nt lds")
        else:
            base = vslot(t)
            for u in range(4):
                ops[(k, t)] = A.vmem(f"buffer_load_dwordx4 {vr(base+4*u,4)}, {vr(V_VO)}, {sr(SV,4)}, {sr(S_TMP+5)} offen offset:{u*256} nt")
    SC = hex(f2u(128 ** -0.5))
    def k_read(t):
        A.wait_vm(ops[("K", t)])
        for ks in range(4):
            A(f"ds_read_b128 {vr(V_KF+16*(t&1)+4*ks,4)}, {vr(V_KR+ks)} offset:{(t&7)*4096}")
    def k_mfma(t):
        s_ = sslot(t)
        if 8 <= t < 8 + NV1: assert (t - 8) in pv_done, t
        qk_done.add(t)
        for ks in range(4):
            c = "0" if ks == 0 else vr(s_, 4)
            A(f"v_mfma_f32_16x16x32_bf16 {vr(s_,4)}, {vr(V_KF+16*(t&1)+4*ks,4)}, {vr(V_Q+4*ks,4)}, {c}")
    def s_round(tiles):
        regs = [sslot(t) + r for t in tiles for r in range(4)]
        P = T
        A.nop(4)
        for ph in range(2):
            for i in range(0, len(regs), 2):
                A(f"v_cvt_pk_bf16_f32 {vr(P+i//2)}, {vr(regs[i])}, {vr(regs[i+1])}")
            for i in range(0, len(regs), 2):
                A(f"v_lshlrev_b32 {vr(regs[i])}, 16, {vr(P+i//2)}")
                A(f"v_and_b32 {vr(regs[i+1])}, 0xffff0000, {vr(P+i//2)}")
            if ph == 0:
                for r in regs:
                    A(f"v_mul_f32 {vr(r)}, {SC}, {vr(r)}")
    def qk_burst(tiles):
        k_read(tiles[0])
        for i, t in enumerate(tiles):
            if i + 1 < len(tiles):
                k_read(tiles[i + 1])
                A("s_waitcnt lgkmcnt(4)")
            else:
                A("s_waitcnt lgkmcnt(0)")
            k_mfma(t)
    pend = []
    def qk_one(t):
        k_read(t)
        if pend:
            s_round(list(pend)); pend.clear()
        A("s_waitcnt lgkmcnt(0)")
        k_mfma(t)
        pend.append(t)
    def softmax(tiles, first):
        regs = [sslot(t) + r for t in tiles for r in range(4)]
        P = T
        n = len(regs)
        ch = [regs[i::4] for i in range(4)]
        for i in range(4):
            c = ch[i]
            A(f"v_max3_f32 {vr(P+i)}, {vr(c[0])}, {vr(c[1])}, {vr(c[2])}")
        k = 3
        while k < len(ch[0]):
            for i in range(4):
                c = ch[i]
                if k + 1 < len(c):
                    A(f"v_max3_f32 {vr(P+i)}, {vr(P+i)}, {vr(c[k])}, {vr(c[k+1])}")
                else:
                    A(f"v_max_f32 {vr(P+i)}, {vr(P+i)}, {vr(c[k])}")
            k += 2
        A(f"v_max3_f32 {vr(P+4)}, {vr(P)}, {vr(P+1)}, {vr(P+2)}")
        A(f"v_max_f32 {vr(P+4)}, {vr(P+4)}, {vr(P+3)}")
        xreduce("v_max_f32", [P+4], [P])
        if not first:
            A(f"v_max_f32 {vr(P+4)}, {vr(P+4)}, {vr(V_MW)}")
            A(f"v_sub_f32 {vr(P+5)}, {vr(V_MW)}, {vr(P+4)}")
            A(f"v_mul_f32 {vr(P+5)}, {sr(S_C0)}, {vr(P+5)}")
            A(f"v_exp_f32 {vr(P+5)}, {vr(P+5)}")
        A(f"v_mov_b32 {vr(V_MW)}, {vr(P+4)}")
        A(f"v_mul_f32 {vr(P)}, {hex(f2u(-LOG2E))}, {vr(P+4)}")
        if not first:
            for h in range(4):
                A(f"v_readlane_b32 {sr(S_F+h)}, {vr(P+5)}, {h}")
        A(f"v_mov_b32 {vr(P+6)}, {sr(S_C0)}")
        for r in regs:
            A(f"v_fma_f32 {vr(r)}, {vr(r)}, {vr(P+6)}, {vr(P)}")
        for r in regs:
            A(f"v_exp_f32 {vr(r)}, {vr(r)}")
        for i in range(4):
            A(f"v_add_f32 {vr(P+1+i)}, {vr(ch[i][0])}, {vr(ch[i][1])}")
        for k in range(2, len(ch[0])):
            for i in range(4):
                A(f"v_add_f32 {vr(P+1+i)}, {vr(P+1+i)}, {vr(ch[i][k])}")
        A(f"v_add_f32 {vr(P+1)}, {vr(P+1)}, {vr(P+2)}")
        A(f"v_add_f32 {vr(P+3)}, {vr(P+3)}, {vr(P+4)}")
        A(f"v_add_f32 {vr(P+1)}, {vr(P+1)}, {vr(P+3)}")
        xreduce("v_add_f32", [P+1], [P+2])
        if first:
            A(f"v_mov_b32 {vr(V_LS)}, {vr(P+1)}")
        else:
            A(f"v_fma_f32 {vr(P+3)}, {vr(V_LS)}, {vr(P+5)}, {vr(P+1)}")
            A(f"v_mov_b32 {vr(P+2)}, {vr(V_MW)}")
            A(f"s_lshl_b32 {sr(S_TMP+2)}, {sr(S_SW)}, 5")
            A(f"s_add_u32 {sr(S_TMP+2)}, {sr(S_TMP+2)}, {L_STAT}")
            A(f"v_lshl_add_u32 {vr(P+4)}, v0, 3, {sr(S_TMP+2)}")
            A("s_mov_b64 exec, 15")
            A(f"ds_write_b64 {vr(P+4)}, {vr(P+2,2)}")
            A("s_mov_b64 exec, -1")
            lds_inc(F_ST, P+6)
            for r in range(8):
                A(f"v_mul_f32 {vr(V_ACC+r)}, {sr(S_F+(r&3))}, {vr(V_ACC+r)}")
        for r in regs:
            A(f"v_cvt_pk_bf16_f32 {vr(r)}, {vr(r)}, {vr(r)}")
    flip = [0]
    def pv(t):
        base = vslot(t)
        s_ = sslot(t)
        pv_done.add(t)
        A.wait_vm(ops[("V", t)])
        for u in range(4):
            X = V_XA if flip[0] == 0 else V_XB
            flip[0] ^= 1
            A(f"v_and_b32 {vr(X+2)}, {vr(s_+u)}, {vr(V_M0)}")
            A(f"v_and_b32 {vr(X+3)}, {vr(s_+u)}, {vr(V_M1)}")
            A.nop(2)
            A(f"v_mfma_f32_16x16x32_bf16 {vr(V_ACC,4)}, {vr(X+2,4)}, {vr(base+4*u,4)}, {vr(V_ACC,4)}")
            A(f"v_mfma_f32_16x16x32_bf16 {vr(V_ACC+4,4)}, {vr(X,4)}, {vr(base+4*u,4)}, {vr(V_ACC+4,4)}")
    def q_get():
        A(f"v_and_b32 {vr(T+2)}, 3, {vr(V_J)}")
        A(f"v_lshlrev_b32 {vr(T+2)}, 8, {vr(T+2)}")
        A(f"v_lshl_add_u32 {vr(T+2)}, {vr(V_G)}, 4, {vr(T+2)}")
        A(f"v_add_u32 {vr(T+2)}, {L_Q}, {vr(T+2)}")
        stamp("q_wait")
        lds_wait(F_Q2, 1, T)
        for ks in range(4):
            A(f"ds_read_b128 {vr(V_Q+4*ks,4)}, {vr(T+2)} offset:{64*ks}")
        stamp("q_got")
    qp = o["qpos"]
    quanta = {n: [] for n in range(32)}
    quanta[qp] += [q_get, lambda: qk_burst([0, 1, 2, 3])]
    quanta[qp+1] += [lambda: qk_burst([4, 5, 6, 7]), lambda: s_round([0, 1, 2, 3])]
    K8 = 8 + NV1
    quanta[qp+2] += [lambda: s_round([4, 5, 6, 7]), lambda: softmax(list(range(NV1)), True), lambda: stamp("sm1")]
    assert qp < K8
    for t in range(NV1):
        quanta[max(qp + 3 + t // 2, land_n(8 + t))] += [lambda t=t: pv(t)]
    quanta[32] = []
    for j in range(8):
        quanta[max(land_n(K8 + j), qp + 7)] += [lambda j=j: qk_one(8 + j)]
    nq = max(land_n(K8 + 7), qp + 7)
    def fin_round():
        A.nop(8)
        s_round(list(pend)); pend.clear()
    quanta[nq] += [fin_round, lambda: softmax(list(range(NV1, 16)), False), lambda: stamp("sm2")]
    tail = []
    for t in range(NV1, 16):
        n = max(nq + 1, land_n(16 + t))
        if n <= 31: quanta[n] += [lambda t=t: pv(t)]
        else: tail.append(t)
    assert not quanta[32]
    for n in range(32):
        issue(n)
        if n == D - 1:
            A(f"v_lshrrev_b32 {vr(T)}, 2, {vr(V_J)}")
            A(f"v_and_b32 {vr(T+1)}, 1, {vr(T)}")
            A(f"v_lshlrev_b32 {vr(T+1)}, 4, {vr(T+1)}")
            A(f"v_mov_b32 {vr(T+2)}, 0xffff")
            A(f"v_lshlrev_b32 {vr(T+2)}, {vr(T+1)}, {vr(T+2)}")
            A(f"v_cmp_gt_u32 vcc, 2, {vr(T)}")
            A.nop(2)
            A(f"v_cndmask_b32 {vr(V_M0)}, 0, {vr(T+2)}, vcc")
            A(f"v_cndmask_b32 {vr(V_M1)}, {vr(T+2)}, 0, vcc")
            for r in (V_XA, V_XA+1, V_XA+4, V_XA+5, V_XB, V_XB+1, V_XB+4, V_XB+5):
                A(f"v_mov_b32 {vr(r)}, 0")
            for r in range(8):
                A(f"v_mov_b32 {vr(V_ACC+r)}, 0")
            A(f"s_mov_b32 {sr(S_C0)}, {hex(f2u(LOG2E))}")
            stamp("ln_done")
        if n in (3, 5, 7, 9, 13, 17, 21, 25, 31): stamp(f"iss{n}")
        for f in quanta[n]: f()
    A(f"s_lshl_b32 {sr(S_TMP+2)}, {sr(S_SW)}, 4")
    A(f"s_add_u32 {sr(S_TMP+2)}, {sr(S_TMP+2)}, {L_FAC}")
    A(f"v_mov_b32 {vr(T+2)}, {sr(S_TMP+2)}")
    A(f"v_lshlrev_b32 {vr(T+3)}, 3, v0")
    A(f"v_add_u32 {vr(T+3)}, {sr(S_RING)}, {vr(T+3)}")
    for t in tail[:-1]: pv(t)
    lds_wait(F_FAC, 1, T, sleep=0)
    FAC = T + 4
    A(f"ds_read_b128 {vr(FAC,4)}, {vr(T+2)}")
    stamp("fac_got")
    pv(tail[-1])
    stamp("pv_done")
    A("s_waitcnt lgkmcnt(0)")
    A.nop(10)
    PO = V_KF
    for r in range(4):
        for hf in range(2):
            A(f"v_mul_f32 {vr(PO+2*r+hf)}, {vr(FAC+r)}, {vr(V_ACC+4*hf+r)}")
    for r in range(4):
        A(f"ds_write_b64 {vr(T+3)}, {vr(PO+2*r,2)} offset:{512*r}")
    A("s_waitcnt lgkmcnt(0)")
    A("s_barrier")

    A.label("L_fin")
    if o["debug"]:
        A(f"s_memrealtime s[100:101]")
        A("s_waitcnt lgkmcnt(0)")
        A(f"v_writelane_b32 v{V_STAMP}, s100, 31")
        A(f"s_lshl_b32 {sr(S_TMP+2)}, s2, 3")
        A(f"s_add_u32 {sr(S_TMP+2)}, {sr(S_TMP+2)}, {sr(S_WAVE)}")
        A(f"s_lshl_b32 {sr(S_TMP+2)}, {sr(S_TMP+2)}, 8")
        A(f"s_add_u32 {sr(S_TMP+2)}, {sr(S_TMP+2)}, {WS_DBG}")
        A(f"v_lshlrev_b32 v254, 2, v0")
        A(f"buffer_store_dword v{V_STAMP}, v254, {sr(SWS,4)}, {sr(S_TMP+2)} offen")
    A.label("L_end")
    A("s_endpgm")

    A.L.append('.section .rodata,"a"')
    A.L.append(".p2align 6")
    A.L.append(f".amdhsa_kernel {NAME}_kernel")
    A.L.append("  .amdhsa_next_free_vgpr 256")
    A.L.append("  .amdhsa_next_free_sgpr 102")
    A.L.append("  .amdhsa_accum_offset 256")
    A.L.append("  .amdhsa_group_segment_fixed_size 0")
    A.L.append("  .amdhsa_kernarg_size 104")
    A.L.append("  .amdhsa_user_sgpr_count 2")
    A.L.append("  .amdhsa_user_sgpr_kernarg_segment_ptr 1")
    A.L.append("  .amdhsa_system_sgpr_workgroup_id_x 1")
    A.L.append("  .amdhsa_float_denorm_mode_32 3")
    A.L.append(".end_amdhsa_kernel")
    if opts is not None: opts["stamps"] = stamps
    return "\n".join(A.L) + "\n"

if __name__ == "__main__":
    out = sys.argv[1] if len(sys.argv) > 1 else "k3.s"
    opts = {}
    for a in sys.argv[2:]:
        k, v = a.split("="); opts[k] = eval(v)
    open(out, "w").write(gen(opts))
    if opts.get("debug"):
        open(out + ".stamps", "w").write(" ".join(opts["stamps"]["a"]) + "\n" + " ".join(opts["stamps"]["s"]) + "\n")
    print("wrote", out)
```

```python
import sys, struct, math

NAME = "sequential_preLN__gqa_block_cached__mixer_token_mlp__decode"

def f2u(x):
    return struct.unpack("<I", struct.pack("<f", x))[0]

WS_QM = 0x00000
WS_ST = 0x20000
WS_R1 = 0x40000
WS_GT = 0x80000
WS_R2 = 0x200000
WS_DBG = 0x100000
WS_SIZE = 0x400000

RING = 32768
L_STG = 4 * RING
L_XN = L_STG + 16384
L_GT = L_STG
L_QRED = L_XN + 8192
L_Q = L_QRED + 2048
L_STAT = L_Q + 1024
L_FAC = L_STAT + 128
L_FLAG = L_FAC + 64
L_ORED = L_FLAG + 64
L_H = L_ORED + 2048
LDS_SIZE = L_H + 2048
assert LDS_SIZE <= 163840, LDS_SIZE
F_XN, F_Q1, F_Q2, F_ST, F_FAC, F_NONCE, F_WO, F_WOL = [L_FLAG + 4 * i for i in range(8)]

E0 = 108
NEXP = 24
GT_HALF = NEXP * 128
SPIN_LIMIT = 200000

class Asm:
    def __init__(self):
        self.L = []
        self.vm = 0
        self.lab = 0
    def __call__(self, s):
        self.L.append("  " + s)
    def label(self, n):
        self.L.append(n + ":")
    def newlabel(self, p="L"):
        self.lab += 1
        return f"{p}_{self.lab}"
    def vmem(self, s):
        self(s); self.vm += 1
        return self.vm
    def wait_vm(self, idx, extra=0):
        n = self.vm - idx + extra
        assert 0 <= n <= 63, n
        self(f"s_waitcnt vmcnt({n})")
    def nop(self, n):
        while n > 0:
            k = min(n, 16)
            self(f"s_nop {k-1}")
            n -= k
    def comment(self, s):
        self.L.append("  ; " + s)

def vr(a, n=1):
    return f"v{a}" if n == 1 else f"v[{a}:{a+n-1}]"
def sr(a, n=1):
    return f"s{a}" if n == 1 else f"s[{a}:{a+n-1}]"

DPPM = "row_mask:0xf bank_mask:0xf"
LOG2E = math.log2(math.e)

def gen(opts=None):
    o = dict(debug=False, D=3, qpos=12, wnt=True, pst=2, pg=0, skip='', rot=0, wolate=1, D2=3, nsw=14, nv1=7, kfirst=0, r1sleep=0, nb1=1, nb2=1, r1split=1)
    if opts: o.update(opts)
    A = Asm()
    stamps = {"s": [], "a": []}
    cur = ["c"]
    V_STAMP = 255
    def stamp(name):
        if not o["debug"]: return
        lst = stamps[cur[0]]
        k = len(lst); lst.append(name)
        assert k < 32
        A(f"s_memrealtime s[100:101]")
        A("s_waitcnt lgkmcnt(0)")
        A(f"v_writelane_b32 v{V_STAMP}, s100, {k}")
    S_WAVE = 3
    SK, SV, SWQ, SWO, SWS, SX, SDBG, SOUT, SW1, SB1, SW2 = 8, 12, 16, 20, 24, 28, 32, 36, 40, 44, 48
    S_HKV, S_IDX, S_B, S_S, S_KOFF, S_RING, S_NONCE, S_B2 = 52, 53, 54, 55, 56, 57, 58, 59
    S_RT = 60
    S_SPIN = 63
    S_P = 64
    S_TMP = 90
    S_F = 64
    S_C0 = 68
    V_J, V_G, V_L16 = 12, 13, 1

    A.L.append(f"; @launch grid=(256,1,1) block=(512,1,1) lds={LDS_SIZE}")
    A.L.append('.amdgcn_target "amdgcn-amd-amdhsa--gfx950"')
    A.L.append(".text")
    A.L.append(f".globl {NAME}_kernel")
    A.L.append(".p2align 8")
    A.L.append(f".type {NAME}_kernel,@function")
    A.label(f"{NAME}_kernel")
    A("s_cmp_ge_u32 s2, 256")
    A("s_cbranch_scc1 L_end")
    A(f"s_load_dwordx16 {sr(S_P,16)}, s[0:1], 0")
    A(f"s_load_dwordx8 {sr(S_P+16,8)}, s[0:1], 64")
    A(f"s_load_dwordx2 {sr(S_P+24,2)}, s[0:1], 96")
    A(f"s_memrealtime {sr(S_RT,2)}")
    A("v_lshrrev_b32 v1, 6, v0")
    A("v_and_b32 v0, 63, v0")
    if o["debug"]: A(f"v_mov_b32 v{V_STAMP}, 0")
    A(f"v_readfirstlane_b32 {sr(S_WAVE)}, v1")
    A(f"v_and_b32 {vr(V_J)}, 15, v0")
    A(f"v_lshrrev_b32 {vr(V_G)}, 4, v0")
    A(f"s_and_b32 {sr(S_HKV)}, s2, 7")
    A(f"s_lshr_b32 {sr(S_IDX)}, s2, 3")
    A(f"s_lshr_b32 {sr(S_B)}, {sr(S_IDX)}, 2")
    A(f"s_and_b32 {sr(S_S)}, {sr(S_IDX)}, 3")
    def srd(dst, p, nbytes):
        A(f"s_mov_b32 {sr(dst)}, {sr(S_P+2*p)}")
        A(f"s_and_b32 {sr(dst+1)}, {sr(S_P+2*p+1)}, 0xffff")
        A(f"s_mov_b32 {sr(dst+2)}, {nbytes}")
        A(f"s_mov_b32 {sr(dst+3)}, 0x20000")

    def xreduce(op, regs, tmps, steps=("v_permlane16_swap_b32", "v_permlane32_swap_b32")):
        for pl in steps:
            for r, t in zip(regs, tmps):
                A(f"v_mov_b32 {vr(t)}, {vr(r)}")
            A.nop(2)
            for r, t in zip(regs, tmps):
                A(f"{pl} {vr(r)}, {vr(t)}")
            A.nop(1)
            for r, t in zip(regs, tmps):
                A(f"{op} {vr(r)}, {vr(r)}, {vr(t)}")
    def allreduce(op, regs, tmps):
        for dpp in ("quad_perm:[1,0,3,2]", "quad_perm:[2,3,0,1]", "row_half_mirror", "row_mirror"):
            A.nop(max(0, 2 - (len(regs) - 1)))
            for r in regs:
                A(f"{op}_dpp {vr(r)}, {vr(r)}, {vr(r)} {dpp} {DPPM}")
        xreduce(op, regs, tmps)
    def rne1(dst, src):
        A(f"v_cvt_pk_bf16_f32 {vr(dst)}, {vr(src)}, {vr(src)}")
        A(f"v_lshlrev_b32 {vr(dst)}, 16, {vr(dst)}")
    def rne2(a, b, t):
        A(f"v_cvt_pk_bf16_f32 {vr(t)}, {vr(a)}, {vr(b)}")
        A(f"v_lshlrev_b32 {vr(a)}, 16, {vr(t)}")
        A(f"v_and_b32 {vr(b)}, 0xffff0000, {vr(t)}")
    def unpack(dst, src, n):
        for i in range(n):
            A(f"v_lshlrev_b32 {vr(dst+2*i)}, 16, {vr(src+i)}")
            A(f"v_and_b32 {vr(dst+2*i+1)}, 0xffff0000, {vr(src+i)}")
    def layernorm(x, out, t):
        A(f"v_add_f32 {vr(t)}, {vr(x)}, {vr(x+1)}")
        A(f"v_add_f32 {vr(t+1)}, {vr(x+2)}, {vr(x+3)}")
        A(f"v_add_f32 {vr(t+2)}, {vr(x+4)}, {vr(x+5)}")
        A(f"v_add_f32 {vr(t+3)}, {vr(x+6)}, {vr(x+7)}")
        A(f"v_add_f32 {vr(t)}, {vr(t)}, {vr(t+1)}")
        A(f"v_add_f32 {vr(t+2)}, {vr(t+2)}, {vr(t+3)}")
        A(f"v_add_f32 {vr(t)}, {vr(t)}, {vr(t+2)}")
        allreduce("v_add_f32", [t], [t+1])
        A(f"v_mul_f32 {vr(t)}, {hex(f2u(1/512))}, {vr(t)}")
        for i in range(8):
            A(f"v_sub_f32 {vr(t+4+i)}, {vr(x+i)}, {vr(t)}")
        A(f"v_mul_f32 {vr(t+1)}, {vr(t+4)}, {vr(t+4)}")
        A(f"v_mul_f32 {vr(t+2)}, {vr(t+5)}, {vr(t+5)}")
        for i in range(2, 8, 2):
            A(f"v_fmac_f32 {vr(t+1)}, {vr(t+4+i)}, {vr(t+4+i)}")
            A(f"v_fmac_f32 {vr(t+2)}, {vr(t+5+i)}, {vr(t+5+i)}")
        A(f"v_add_f32 {vr(t+1)}, {vr(t+1)}, {vr(t+2)}")
        allreduce("v_add_f32", [t+1], [t+2])
        A(f"v_mul_f32 {vr(t+1)}, {hex(f2u(1/512))}, {vr(t+1)}")
        rne2(t, t+1, t+2)
        A(f"v_add_f32 {vr(t+1)}, {hex(f2u(1e-5))}, {vr(t+1)}")
        rne1(t+1, t+1)
        A(f"v_sqrt_f32 {vr(t+1)}, {vr(t+1)}")
        A.nop(1)
        rne1(t+1, t+1)
        A(f"v_rcp_f32 {vr(t+2)}, {vr(t+1)}")
        for i in range(8):
            A(f"v_sub_f32 {vr(t+4+i)}, {vr(x+i)}, {vr(t)}")
        for i in range(0, 8, 2):
            rne2(t+4+i, t+5+i, t+3)
        for i in range(8):
            A(f"v_mul_f32 {vr(out+i)}, {vr(t+4+i)}, {vr(t+2)}")
        for i in range(8):
            A(f"v_fma_f32 {vr(t+4+i)}, -{vr(out+i)}, {vr(t+1)}, {vr(t+4+i)}")
        for i in range(8):
            A(f"v_fmac_f32 {vr(out+i)}, {vr(t+4+i)}, {vr(t+2)}")
    def lds_inc(flag, t):
        A(f"v_mov_b32 {vr(t)}, {flag}")
        A(f"v_mov_b32 {vr(t+1)}, 1")
        A("s_waitcnt lgkmcnt(0)")
        A("s_mov_b64 exec, 1")
        A(f"ds_add_u32 {vr(t)}, {vr(t+1)}")
        A("s_mov_b64 exec, -1")
    def lds_wait(flag, target, t, sleep=1):
        lp, dn = A.newlabel("Lw"), A.newlabel("Lwd")
        A(f"v_mov_b32 {vr(t)}, {flag}")
        A(f"s_mov_b32 {sr(S_SPIN)}, {SPIN_LIMIT*4}")
        A.label(lp)
        A(f"ds_read_b32 {vr(t+1)}, {vr(t)}")
        A("s_waitcnt lgkmcnt(0)")
        A(f"v_readfirstlane_b32 {sr(S_TMP+9)}, {vr(t+1)}")
        A.nop(1)
        A(f"s_cmp_ge_u32 {sr(S_TMP+9)}, {target}")
        A(f"s_cbranch_scc1 {dn}")
        if sleep: A(f"s_sleep {sleep}")
        A(f"s_sub_u32 {sr(S_SPIN)}, {sr(S_SPIN)}, 1")
        A(f"s_cbranch_scc0 {lp}")
        A.label(dn)
    def poll_pipe(nsets, nld, issue_fn, check_fn, done_fn):
        lp, fin = A.newlabel("Lpp"), A.newlabel("Lppf")
        dn = [A.newlabel("Lppd") for _ in range(nsets)]
        A(f"s_mov_b32 {sr(S_SPIN)}, {SPIN_LIMIT}")
        for k in range(nsets): issue_fn(k)
        A.label(lp)
        for k in range(nsets):
            A(f"s_waitcnt vmcnt({nld*(nsets-1)})")
            check_fn(k)
            A(f"s_cbranch_vccz {dn[k]}")
            issue_fn(k)
        A(f"s_sub_u32 {sr(S_SPIN)}, {sr(S_SPIN)}, 1")
        A(f"s_cbranch_scc0 {lp}")
        A("s_waitcnt vmcnt(0)")
        for k in range(nsets):
            A.label(dn[k])
            done_fn(k)
            if k + 1 < nsets: A(f"s_branch {fin}")
        A.label(fin)
    def ln_row(op_x, VX, XF, LT, row):
        A.wait_vm(op_x)
        unpack(XF, VX, 4)
        layernorm(XF, XF, LT)
        for i in range(4):
            A(f"v_cvt_pk_bf16_f32 {vr(LT+i)}, {vr(XF+2*i)}, {vr(XF+2*i+1)}")
        A(f"s_lshl_b32 {sr(S_TMP+2)}, {sr(S_WAVE)}, 11")
        A(f"s_add_u32 {sr(S_TMP+2)}, {sr(S_TMP+2)}, {L_XN + 1024*row}")
        A(f"v_lshl_add_u32 {vr(LT+4)}, v0, 4, {sr(S_TMP+2)}")
        A(f"ds_write_b128 {vr(LT+4)}, {vr(LT,4)}")

    A(f"v_lshlrev_b32 {vr(V_L16)}, 4, v0")
    A(f"s_lshl_b32 {sr(S_TMP+2)}, {sr(S_WAVE)}, 11")
    A(f"s_cmp_ge_u32 {sr(S_WAVE)}, 4")
    A("s_cbranch_scc1 L_stream")

    cur[0] = "a"
    A("s_setprio 3")
    T = 208
    V_X = T
    V_SEN = T + 4
    for r in range(4):
        A(f"v_mov_b32 {vr(V_SEN+r)}, -1")
    A(f"v_lshrrev_b32 {vr(T+8)}, 1, v0")
    A(f"v_and_b32 {vr(T+9)}, 1, v0")
    A(f"v_lshlrev_b32 {vr(T+9)}, 4, {vr(T+9)}")
    A(f"v_lshl_add_u32 {vr(T+10)}, {vr(T+8)}, 13, {vr(T+9)}")
    A(f"s_lshl_b32 {sr(S_TMP+3)}, {sr(S_WAVE)}, 20")
    A(f"s_lshl_b32 {sr(S_TMP+4)}, {sr(S_HKV)}, 10")
    A(f"s_add_u32 {sr(S_TMP+3)}, {sr(S_TMP+3)}, {sr(S_TMP+4)}")
    A(f"s_lshl_b32 {sr(S_TMP+4)}, {sr(S_IDX)}, 5")
    A(f"s_add_u32 {sr(S_TMP+3)}, {sr(S_TMP+3)}, {sr(S_TMP+4)}")
    A(f"s_lshl_b32 {sr(S_RING)}, {sr(S_WAVE)}, 12")
    A(f"s_add_u32 {sr(S_RING)}, {sr(S_RING)}, {L_STG}")
    A(f"s_mov_b32 m0, {sr(S_RING)}")
    A("s_waitcnt lgkmcnt(0)")
    srd(SX, 0, 8192)
    op_x = A.vmem(f"buffer_load_dwordx4 {vr(V_X,4)}, {vr(V_L16)}, {sr(SX,4)}, {sr(S_TMP+2)} offen")
    op_x2 = A.vmem(f"buffer_load_dwordx4 {vr(T+24,4)}, {vr(V_L16)}, {sr(SX,4)}, {sr(S_TMP+2)} offen offset:1024")
    srd(SWQ, 3, 4 << 20)
    WNT = " nt" if o["wnt"] else ""
    for u in range(4):
        if u:
            A(f"s_add_u32 {sr(S_TMP+4)}, {sr(S_RING)}, {u*1024}")
            A(f"s_mov_b32 m0, {sr(S_TMP+4)}")
            A(f"s_add_u32 {sr(S_TMP+3)}, {sr(S_TMP+3)}, {32*8192}")
        if 'q' in o['skip']: continue
        op_wq = A.vmem(f"buffer_load_dwordx4 {vr(T+10)}, {sr(SWQ,4)}, {sr(S_TMP+3)} offen{WNT} lds")
    srd(SDBG, 11, 256)
    srd(SWS, 12, WS_SIZE)
    V_NC = T + 12
    A(f"s_cmp_eq_u32 {sr(S_WAVE)}, 0")
    A("s_cbranch_scc0 L_w1")
    A(f"s_or_b32 {sr(S_RT)}, {sr(S_RT)}, 1")
    A(f"v_mov_b32 {vr(V_NC)}, {sr(S_RT)}")
    A(f"v_mov_b32 {vr(V_NC+1)}, 0")
    A(f"s_lshl_b32 {sr(S_TMP+2)}, {sr(S_HKV)}, 5")
    A(f"v_mov_b32 {vr(T+11)}, {sr(S_TMP+2)}")
    A("s_mov_b64 exec, 1")
    A(f"buffer_atomic_cmpswap {vr(V_NC,2)}, {vr(T+11)}, {sr(SDBG,4)}, 0 offen sc0")
    A(f"buffer_load_dword {vr(T+18)}, {vr(T+11)}, {sr(SX,4)}, 0 offen")
    A("s_mov_b64 exec, 0xffff")
    A(f"v_lshlrev_b32 {vr(T+14)}, 2, v0")
    A(f"v_add_u32 {vr(T+14)}, {L_FLAG}, {vr(T+14)}")
    A(f"v_mov_b32 {vr(T+15)}, 0")
    A(f"ds_write_b32 {vr(T+14)}, {vr(T+15)}")
    A("s_mov_b64 exec, -1")
    A("s_waitcnt lgkmcnt(0)")
    A("s_branch L_wdone")
    A.label("L_w1")
    A(f"s_cmp_eq_u32 {sr(S_WAVE)}, 1")
    A("s_cbranch_scc0 L_w2")
    A(f"s_lshl_b32 {sr(S_TMP+2)}, {sr(S_HKV)}, 5")
    A(f"s_add_u32 {sr(S_TMP+2)}, {sr(S_TMP+2)}, {sr(S_IDX)}")
    A(f"s_lshl_b32 {sr(S_TMP+2)}, {sr(S_TMP+2)}, 10")
    A(f"s_add_u32 {sr(S_TMP+2)}, {sr(S_TMP+2)}, {WS_R1}")
    A("s_mov_b32 exec_hi, 0")
    A(f"buffer_store_dwordx4 {vr(V_SEN,4)}, {vr(V_L16)}, {sr(SWS,4)}, {sr(S_TMP+2)} offen sc1")
    A("s_mov_b64 exec, -1")
    A("s_mov_b32 exec_lo, 0")
    A(f"buffer_store_dwordx4 {vr(V_SEN,4)}, {vr(V_L16)}, {sr(SWS,4)}, {sr(S_TMP+2)} offen sc1")
    A("s_mov_b64 exec, -1")
    A("s_branch L_wdone")
    A.label("L_w2")
    A(f"s_cmp_eq_u32 {sr(S_WAVE)}, 2")
    A("s_cbranch_scc0 L_w3")
    A(f"v_lshlrev_b32 {vr(T+11)}, 16, {vr(V_G)}")
    A(f"v_lshl_add_u32 {vr(T+11)}, {vr(V_J)}, 4, {vr(T+11)}")
    A(f"s_lshl_b32 {sr(S_TMP+2)}, {sr(S_HKV)}, 13")
    A(f"s_lshl_b32 {sr(S_TMP+4)}, {sr(S_S)}, 11")
    A(f"s_add_u32 {sr(S_TMP+2)}, {sr(S_TMP+2)}, {sr(S_TMP+4)}")
    A(f"s_lshl_b32 {sr(S_TMP+4)}, {sr(S_B)}, 8")
    A(f"s_add_u32 {sr(S_TMP+2)}, {sr(S_TMP+2)}, {sr(S_TMP+4)}")
    A(f"s_add_u32 {sr(S_TMP+2)}, {sr(S_TMP+2)}, {WS_R2}")
    A(f"s_add_u32 {sr(S_TMP+4)}, {sr(S_TMP+2)}, {4*65536}")
    A(f"buffer_store_dwordx4 {vr(V_SEN,4)}, {vr(T+11)}, {sr(SWS,4)}, {sr(S_TMP+2)} offen sc1")
    A(f"buffer_store_dwordx4 {vr(V_SEN,4)}, {vr(T+11)}, {sr(SWS,4)}, {sr(S_TMP+4)} offen sc1")
    A("s_branch L_wdone")
    A.label("L_w3")
    A(f"s_lshl_b32 {sr(S_TMP+2)}, {sr(S_HKV)}, 5")
    A(f"s_add_u32 {sr(S_TMP+2)}, {sr(S_TMP+2)}, {sr(S_IDX)}")
    A(f"s_lshl_b32 {sr(S_TMP+2)}, {sr(S_TMP+2)}, 5")
    A(f"s_add_u32 {sr(S_TMP+2)}, {sr(S_TMP+2)}, {WS_ST}")
    A("s_mov_b64 exec, 1")
    A(f"buffer_store_dwordx4 {vr(V_SEN,4)}, {vr(V_L16)}, {sr(SWS,4)}, {sr(S_TMP+2)} offen sc1")
    A("s_mov_b64 exec, 2")
    A(f"buffer_store_dwordx4 {vr(V_SEN,4)}, {vr(V_L16)}, {sr(SWS,4)}, {sr(S_TMP+2)} offen sc1")
    A("s_mov_b64 exec, -1")
    A.label("L_wdone")
    A.vm += 2
    A("s_barrier")
    stamp("start")
    if 'A' in o['skip']:
        lds_inc(F_Q2, T+20)
        lds_inc(F_FAC, T+20)
        A("s_barrier")
        A("s_branch L_fin")
    srd(SWO, 4, 4 << 20)
    srd(SW1, 6, 3584)
    srd(SB1, 7, 3584)
    srd(SW2, 8, 3584)
    srd(SOUT, 10, 8192)
    A(f"s_load_dword {sr(S_B2)}, {sr(S_P+18,2)}, 0")
    XF = 176; LT = 184
    ln_row(op_x, V_X, XF, LT, 0)
    ln_row(op_x2, T+24, XF, LT, 1)
    lds_inc(F_XN, LT+5)
    stamp("ln_done")
    V_TRA = 2
    A(f"v_lshlrev_b32 {vr(V_TRA)}, 8, {vr(V_G)}")
    A(f"v_lshl_add_u32 {vr(V_TRA)}, {vr(V_J)}, 3, {vr(V_TRA)}")
    A(f"v_add_u32 {vr(V_TRA)}, {sr(S_RING)}, {vr(V_TRA)}")
    A(f"v_and_b32 {vr(LT)}, 7, {vr(V_J)}")
    A(f"v_lshlrev_b32 {vr(LT)}, 10, {vr(LT)}")
    A(f"v_lshl_add_u32 {vr(LT)}, {vr(V_G)}, 4, {vr(LT)}")
    A(f"s_lshl_b32 {sr(S_TMP+2)}, {sr(S_WAVE)}, 8")
    A(f"s_add_u32 {sr(S_TMP+2)}, {sr(S_TMP+2)}, {L_XN}")
    A(f"v_add_u32 {vr(LT)}, {sr(S_TMP+2)}, {vr(LT)}")
    A(f"v_lshrrev_b32 {vr(T+16)}, 3, v0")
    A(f"v_and_b32 {vr(T+16)}, 1, {vr(T+16)}")
    A(f"v_lshlrev_b32 {vr(T+17)}, 13, {vr(V_G)}")
    A(f"v_lshl_add_u32 {vr(T+17)}, {vr(T+16)}, 12, {vr(T+17)}")
    A(f"v_and_b32 {vr(T+16)}, 7, v0")
    A(f"v_lshl_add_u32 {vr(T+17)}, {vr(T+16)}, 4, {vr(T+17)}")
    A("s_waitcnt vmcnt(2)")
    stamp("wq_landed")
    V_WQ = 144
    for u in range(4):
        for h in range(2):
            A(f"ds_read_b64_tr_b16 {vr(V_WQ+4*u+2*h,2)}, {vr(V_TRA)} offset:{u*1024+h*128}")
    lds_wait(F_XN, 4, LT+8, sleep=0)
    V_XA_ = 16
    for u in range(4):
        A(f"ds_read_b128 {vr(V_XA_+4*u,4)}, {vr(LT)} offset:{64*u}")
    V_QD = LT + 12
    A(f"s_lshl_b32 {sr(S_TMP+2)}, {sr(S_WAVE)}, 9")
    A(f"s_add_u32 {sr(S_TMP+2)}, {sr(S_TMP+2)}, {L_QRED}")
    A(f"v_add_u32 {vr(LT+3)}, {sr(S_TMP+2)}, {vr(V_L16)}")
    A("s_waitcnt lgkmcnt(0)")
    for u in range(4):
        c = "0" if u == 0 else vr(V_QD, 4)
        A(f"v_mfma_f32_16x16x32_bf16 {vr(V_QD,4)}, {vr(V_XA_+4*u,4)}, {vr(V_WQ+4*u,4)}, {c}")
    A(f"s_lshl_b32 {sr(S_TMP+3)}, {sr(S_HKV)}, 9")
    A(f"s_lshl_b32 {sr(S_TMP+4)}, {sr(S_S)}, 7")
    A(f"s_add_u32 {sr(S_TMP+3)}, {sr(S_TMP+3)}, {sr(S_TMP+4)}")
    A(f"s_add_u32 {sr(S_TMP+3)}, {sr(S_TMP+3)}, {sr(S_WAVE)}")
    A(f"s_lshl_b32 {sr(S_TMP+3)}, {sr(S_TMP+3)}, 10")
    A(f"s_lshl_b32 {sr(S_TMP+4)}, {sr(S_B)}, 7")
    A(f"s_add_u32 {sr(S_TMP+3)}, {sr(S_TMP+3)}, {sr(S_TMP+4)}")
    A(f"s_mov_b32 m0, {sr(S_RING)}")
    A.nop(4)
    A("s_mov_b32 exec_hi, 0")
    A(f"ds_write_b128 {vr(LT+3)}, {vr(V_QD,4)}")
    A("s_mov_b64 exec, -1")
    stamp("mfma")
    A("s_waitcnt vmcnt(0)")
    A(f"s_cmp_eq_u32 {sr(S_WAVE)}, 0")
    A("s_cbranch_scc0 L_nonce_done")
    A(f"v_readfirstlane_b32 {sr(S_TMP+2)}, {vr(V_NC)}")
    A.nop(1)
    A(f"s_cmp_eq_u32 {sr(S_TMP+2)}, 0")
    A(f"s_cselect_b32 {sr(S_TMP+2)}, {sr(S_RT)}, {sr(S_TMP+2)}")
    A(f"v_mov_b32 {vr(LT+6)}, {sr(S_TMP+2)}")
    A(f"v_mov_b32 {vr(LT+7)}, {F_NONCE}")
    A(f"ds_write_b32 {vr(LT+7)}, {vr(LT+6)}")
    A.label("L_nonce_done")
    lds_inc(F_Q1, LT+8)
    stamp("qpart")
    A(f"s_lshr_b32 {sr(S_TMP+2)}, {sr(S_WAVE)}, 1")
    A(f"s_lshl_b32 {sr(S_TMP+2)}, {sr(S_TMP+2)}, 8")
    A(f"s_and_b32 {sr(S_TMP+4)}, {sr(S_WAVE)}, 1")
    A(f"s_lshl_b32 {sr(S_TMP+4)}, {sr(S_TMP+4)}, 3")
    A(f"s_add_u32 {sr(S_TMP+2)}, {sr(S_TMP+2)}, {sr(S_TMP+4)}")
    A(f"s_add_u32 {sr(S_TMP+2)}, {sr(S_TMP+2)}, {L_QRED}")
    A(f"v_and_b32 {vr(LT)}, 1, {vr(V_G)}")
    A(f"v_lshlrev_b32 {vr(LT)}, 10, {vr(LT)}")
    A(f"v_lshl_add_u32 {vr(LT)}, {vr(V_J)}, 4, {vr(LT)}")
    A(f"v_lshrrev_b32 {vr(LT+1)}, 1, {vr(V_G)}")
    A(f"v_lshl_add_u32 {vr(LT)}, {vr(LT+1)}, 2, {vr(LT)}")
    A(f"v_add_u32 {vr(LT)}, {sr(S_TMP+2)}, {vr(LT)}")
    A(f"v_lshlrev_b32 {vr(LT+3)}, 14, {vr(LT+1)}")
    A(f"v_lshl_add_u32 {vr(LT+3)}, {vr(V_J)}, 2, {vr(LT+3)}")
    A(f"s_lshl_b32 {sr(S_TMP+5)}, {sr(S_WAVE)}, 15")
    A(f"s_lshl_b32 {sr(S_TMP+4)}, {sr(S_HKV)}, 11")
    A(f"s_add_u32 {sr(S_TMP+5)}, {sr(S_TMP+5)}, {sr(S_TMP+4)}")
    A(f"s_lshl_b32 {sr(S_TMP+4)}, {sr(S_IDX)}, 6")
    A(f"s_add_u32 {sr(S_TMP+5)}, {sr(S_TMP+5)}, {sr(S_TMP+4)}")
    A(f"v_mov_b32 {vr(LT+7)}, {F_NONCE}")
    lds_wait(F_Q1, 4, LT+8, sleep=0)
    A(f"ds_read_b32 {vr(LT+1)}, {vr(LT)}")
    A(f"ds_read_b32 {vr(LT+2)}, {vr(LT)} offset:512")
    A(f"ds_read_b32 {vr(LT+5)}, {vr(LT+7)}")
    A("s_waitcnt lgkmcnt(0)")
    A(f"v_add_f32 {vr(LT+1)}, {vr(LT+1)}, {vr(LT+2)}")
    xreduce("v_add_f32", [LT+1], [LT+2], steps=("v_permlane16_swap_b32",))
    A.nop(2)
    A(f"v_mov_b32_dpp {vr(LT+2)}, {vr(LT+1)} quad_perm:[1,0,3,2] {DPPM}")
    A(f"v_readfirstlane_b32 {sr(S_NONCE)}, {vr(LT+5)}")
    A(f"v_cvt_pk_bf16_f32 {vr(LT+4)}, {vr(LT+1)}, {vr(LT+2)}")
    A("s_mov_b32 exec_lo, 0x5555")
    A("s_mov_b32 exec_hi, 0x5555")
    A.vmem(f"buffer_store_dwordx2 {vr(LT+4,2)}, {vr(LT+3)}, {sr(SWS,4)}, {sr(S_TMP+5)} offen sc1")
    A("s_mov_b64 exec, -1")
    stamp("q_published")
    V_L8 = 3
    A(f"v_lshlrev_b32 {vr(V_L8)}, 3, v0")
    GW1, GB1, GW2 = 16, 44, 72
    RAW1, RAWB = 86, 100
    G_A, G_B, G_P, G_ACC, G_T, G_K0 = 86, 118, 150, 166, 174, 182
    V_WO = 184
    K0 = -2.0 * math.sqrt(2.0 / math.pi) * LOG2E
    K1 = K0 * 0.044715
    S_ONE_LO, S_ONE_HI = S_C0 + 1, S_C0 + 2
    A(f"s_mov_b32 {sr(S_ONE_LO)}, 0x00003f80")
    A(f"s_mov_b32 {sr(S_ONE_HI)}, 0x3f800000")
    A(f"s_mov_b32 {sr(S_C0)}, {hex(f2u(LOG2E))}")
    A(f"s_lshl_b32 {sr(S_B2)}, {sr(S_B2)}, 16")
    A(f"s_cmp_eq_u32 {sr(S_WAVE)}, 0")
    A("s_cbranch_scc0 L_noqpoll")
    A(f"s_lshl_b32 {sr(S_TMP+6)}, {sr(S_B)}, 14")
    A(f"s_lshl_b32 {sr(S_TMP+4)}, {sr(S_HKV)}, 11")
    A(f"s_add_u32 {sr(S_TMP+6)}, {sr(S_TMP+6)}, {sr(S_TMP+4)}")
    QG = G_A
    A(f"v_add_u32 {vr(LT+6)}, {L_Q}, {vr(V_L8)}")
    def q_iss(k):
        A(f"buffer_load_dwordx4 {vr(QG+8*k,4)}, {vr(V_L16)}, {sr(SWS,4)}, {sr(S_TMP+6)} offen sc1")
        A(f"buffer_load_dwordx4 {vr(QG+8*k+4,4)}, {vr(V_L16)}, {sr(SWS,4)}, {sr(S_TMP+6)} offen offset:1024 sc1")
    def q_chk(k):
        for i in range(4):
            A(f"v_xor_b32 {vr(LT+i)}, {sr(S_NONCE)}, {vr(QG+8*k+2*i+1)}")
        A(f"v_or3_b32 {vr(LT)}, {vr(LT)}, {vr(LT+1)}, {vr(LT+2)}")
        A(f"v_or_b32 {vr(LT)}, {vr(LT)}, {vr(LT+3)}")
        A(f"v_cmp_ne_u32 vcc, 0, {vr(LT)}")
    def q_done(k):
        A(f"v_mov_b32 {vr(QG+8*k+1)}, {vr(QG+8*k+2)}")
        A(f"v_mov_b32 {vr(QG+8*k+5)}, {vr(QG+8*k+6)}")
        A(f"ds_write_b64 {vr(LT+6)}, {vr(QG+8*k,2)}")
        A(f"ds_write_b64 {vr(LT+6)}, {vr(QG+8*k+4,2)} offset:512")
    A("s_waitcnt vmcnt(0)")
    poll_pipe(3, 2, q_iss, q_chk, q_done)
    lds_inc(F_Q2, LT+8)
    stamp("q_ok")
    A("s_waitcnt vmcnt(0)")
    A.label("L_noqpoll")
    S_WOS = 5
    A(f"s_mov_b32 {sr(S_WOS)}, {sr(S_TMP+3)}")
    V_XF = 4
    V_CP = 8
    S_RB = 8
    A(f"v_and_b32 {vr(V_CP)}, 31, v0")
    A(f"v_lshlrev_b32 {vr(V_CP)}, 3, {vr(V_CP)}")
    A(f"v_lshrrev_b32 {vr(LT+6)}, 5, v0")
    A(f"v_lshl_add_u32 {vr(V_CP)}, {vr(LT+6)}, 2, {vr(V_CP)}")
    A(f"s_cmp_lt_u32 s2, 8")
    A("s_cbranch_scc0 L_noxf")
    A(f"s_lshl_b32 {sr(S_TMP+2)}, s2, 10")
    A(f"s_lshl_b32 {sr(S_TMP+4)}, {sr(S_WAVE)}, 8")
    A(f"s_add_u32 {sr(S_TMP+2)}, {sr(S_TMP+2)}, {sr(S_TMP+4)}")
    A(f"buffer_load_dword {vr(V_XF)}, {vr(V_CP)}, {sr(SX,4)}, {sr(S_TMP+2)} offen")
    A.label("L_noxf")
    A(f"s_cmp_eq_u32 {sr(S_WAVE)}, 0")
    A("s_cbranch_scc1 L_gskip")
    def gw_load():
        for (srd_, dst) in ((SW1, RAW1), (SB1, RAWB), (SW2, GW2)):
            if 'g' in o['skip']: continue
            for c in range(3):
                A.vmem(f"buffer_load_dwordx4 {vr(dst+4*c,4)}, {vr(V_L16)}, {sr(srd_,4)}, 0 offen offset:{1024*c}")
            A.vmem(f"buffer_load_dwordx2 {vr(dst+12,2)}, {vr(V_L8)}, {sr(srd_,4)}, 0 offen offset:3072")
    def gw_unpack():
        A("s_waitcnt vmcnt(0)")
        unpack(GW1, RAW1, 14)
        unpack(GB1, RAWB, 14)
        A(f"v_mov_b32 {vr(G_K0)}, {hex(f2u(K0))}")
    def wo_dma():
        for u in range(4):
            if u:
                A(f"s_add_u32 {sr(S_TMP+4)}, {sr(S_RING)}, {u*1024}")
                A(f"s_mov_b32 m0, {sr(S_TMP+4)}")
                A(f"s_add_u32 {sr(S_WOS)}, {sr(S_WOS)}, {32*1024}")
            if 'o' in o['skip']: continue
            A.vmem(f"buffer_load_dwordx4 {vr(T+17)}, {sr(SWO,4)}, {sr(S_WOS)} offen{WNT} lds")
    gw_load()
    A(f"s_lshl_b32 {sr(S_TMP+2)}, {sr(S_WAVE)}, 11")
    A(f"s_sub_u32 {sr(S_TMP+2)}, {sr(S_TMP+2)}, 2048")
    A(f"s_add_u32 {sr(S_TMP+8)}, {sr(S_TMP+2)}, s2")
    for k in range(8):
        A(f"s_add_u32 {sr(S_TMP+3)}, {sr(S_TMP+8)}, {256*k}")
        A(f"s_cmp_ge_u32 {sr(S_TMP+3)}, {GT_HALF}")
        A(f"s_cselect_b32 {sr(S_TMP+4)}, {0x8000 - GT_HALF}, 0")
        A(f"s_add_u32 {sr(S_TMP+3)}, {sr(S_TMP+3)}, {sr(S_TMP+4)}")
        A(f"s_add_u32 {sr(S_TMP+3)}, {sr(S_TMP+3)}, {E0*128}")
        A(f"s_lshl_b32 {sr(S_TMP+3)}, {sr(S_TMP+3)}, 16")
        A(f"v_mov_b32 {vr(G_T+k)}, {sr(S_TMP+3)}")
        A(f"v_mov_b32 {vr(G_ACC+k)}, 0")
    A(f"s_setprio {o['pg']}")
    gw_unpack()
    def g_chunk(c, nt):
        n = nt * 4
        E = [(k, f) for k in range(nt) for f in range(4)]
        for i, (k, f) in enumerate(E):
            A(f"v_mul_f32 {vr(G_A+i)}, {vr(G_T+k)}, {vr(GW1+4*c+f)}")
        for i in range(0, n, 2):
            A(f"v_cvt_pk_bf16_f32 {vr(G_P+i//2)}, {vr(G_A+i)}, {vr(G_A+i+1)}")
        for i, (k, f) in enumerate(E):
            one = S_ONE_LO if i % 2 == 0 else S_ONE_HI
            A(f"v_dot2_f32_bf16 {vr(G_A+i)}, {vr(G_P+i//2)}, {sr(one)}, {vr(GB1+4*c+f)}")
        A.nop(max(0, 3 - (n - 2)))
        for i in range(0, n, 2):
            if n == 4 and i == 2: A.nop(2)
            A(f"v_cvt_pk_bf16_f32 {vr(G_P+i//2)}, {vr(G_A+i)}, {vr(G_A+i+1)}")
        for i in range(0, n, 2):
            A(f"v_lshlrev_b32 {vr(G_A+i)}, 16, {vr(G_P+i//2)}")
            A(f"v_and_b32 {vr(G_A+i+1)}, 0xffff0000, {vr(G_P+i//2)}")
        for i in range(n):
            A(f"v_mul_f32 {vr(G_B+i)}, {vr(G_A+i)}, {vr(G_A+i)}")
        for i in range(n):
            A(f"v_fmamk_f32 {vr(G_B+i)}, {vr(G_B+i)}, {hex(f2u(K1))}, {vr(G_K0)}")
        for i in range(n):
            A(f"v_mul_f32 {vr(G_B+i)}, {vr(G_A+i)}, {vr(G_B+i)}")
        for i in range(n):
            A(f"v_exp_f32 {vr(G_B+i)}, {vr(G_B+i)}")
        for i in range(n):
            A(f"v_add_f32 {vr(G_B+i)}, 1.0, {vr(G_B+i)}")
        for i in range(n):
            A(f"v_rcp_f32 {vr(G_B+i)}, {vr(G_B+i)}")
        for i in range(n):
            A(f"v_mul_f32 {vr(G_B+i)}, {vr(G_A+i)}, {vr(G_B+i)}")
        for i in range(0, n, 2):
            A(f"v_cvt_pk_bf16_f32 {vr(G_P+i//2)}, {vr(G_B+i)}, {vr(G_B+i+1)}")
        for i in range(0, n, 2):
            k, f = E[i]
            A(f"v_dot2_f32_bf16 {vr(G_ACC+k)}, {vr(G_P+i//2)}, {vr(GW2+2*c+f//2)}, {vr(G_ACC+k)}")
        A.nop(3)
    def g_finish(nt):
        allreduce("v_add_f32", [G_ACC+k for k in range(nt)], [G_P+k for k in range(nt)])
        for k in range(nt):
            rne1(G_ACC+k, G_ACC+k)
        for k in range(nt):
            A(f"v_add_f32 {vr(G_ACC+k)}, {sr(S_B2)}, {vr(G_ACC+k)}")
        for k in range(nt):
            rne1(G_ACC+k, G_ACC+k)
    for c in range(7 if 'G' not in o['skip'] else 0):
        g_chunk(c, 8)
    g_finish(8)
    A("s_setprio 3")
    A(f"v_mov_b32 {vr(G_P)}, {vr(G_ACC)}")
    for k in range(1, 8):
        A(f"v_cmp_eq_u32 vcc, {k}, v0")
        A.nop(2)
        A(f"v_cndmask_b32 {vr(G_P)}, {vr(G_P)}, {vr(G_ACC+k)}, vcc")
    A(f"v_mov_b32 {vr(G_P+1)}, {sr(S_NONCE)}")
    A(f"v_lshlrev_b32 {vr(G_P+2)}, 11, v0")
    A(f"s_lshl_b32 {sr(S_TMP+2)}, {sr(S_TMP+8)}, 3")
    A(f"s_add_u32 {sr(S_TMP+2)}, {sr(S_TMP+2)}, {WS_GT}")
    A(f"s_mov_b64 exec, 0xff")
    A(f"buffer_store_dwordx2 {vr(G_P,2)}, {vr(G_P+2)}, {sr(SWS,4)}, {sr(S_TMP+2)} offen sc1")
    A("s_mov_b64 exec, -1")
    A.label("L_gskip")
    wo_dma()
    stamp("g_done")
    A("s_waitcnt vmcnt(0)")
    lds_inc(F_WOL, T)
    A(f"v_lshrrev_b32 {vr(T+2)}, 2, {vr(V_J)}")
    A(f"v_lshlrev_b32 {vr(V_TRA)}, 10, {vr(V_G)}")
    A(f"v_lshl_add_u32 {vr(V_TRA)}, {vr(T+2)}, 7, {vr(V_TRA)}")
    A(f"v_and_b32 {vr(T+2)}, 3, {vr(V_J)}")
    A(f"v_lshl_add_u32 {vr(V_TRA)}, {vr(T+2)}, 3, {vr(V_TRA)}")
    A(f"s_lshl_b32 {sr(S_TMP+2)}, {sr(S_WAVE)}, 5")
    A(f"s_add_u32 {sr(S_TMP+2)}, {sr(S_TMP+2)}, {L_STG}")
    A(f"v_add_u32 {vr(V_TRA)}, {sr(S_TMP+2)}, {vr(V_TRA)}")
    V_R1A = 5
    A(f"v_lshlrev_b32 {vr(V_R1A)}, 11, {vr(V_J)}")
    A(f"v_and_b32 {vr(T)}, 1, {vr(V_J)}")
    A(f"v_lshlrev_b32 {vr(T)}, 10, {vr(T)}")
    A(f"v_sub_u32 {vr(V_R1A)}, {vr(V_R1A)}, {vr(T)}")
    A(f"v_lshl_add_u32 {vr(V_R1A)}, {vr(V_G)}, 4, {vr(V_R1A)}")
    S_R1C, S_R1P, S_R2P = 72, 73, 74
    A(f"s_lshl_b32 {sr(S_R1C)}, {sr(S_HKV)}, 15")
    A(f"s_add_u32 {sr(S_R1C)}, {sr(S_R1C)}, {WS_R1}")
    A(f"s_lshl_b32 {sr(S_R1P)}, {sr(S_IDX)}, 10")
    A(f"s_add_u32 {sr(S_R1P)}, {sr(S_R1P)}, {sr(S_R1C)}")
    A(f"s_lshl_b32 {sr(S_TMP+3)}, {sr(S_WAVE)}, 8")
    A(f"s_add_u32 {sr(S_R1P)}, {sr(S_R1P)}, {sr(S_TMP+3)}")
    A(f"s_lshl_b32 {sr(S_TMP+3)}, {sr(S_S)}, 8")
    A(f"s_add_u32 {sr(S_R1C)}, {sr(S_R1C)}, {sr(S_TMP+3)}")
    A(f"s_lshl_b32 {sr(S_R2P)}, {sr(S_HKV)}, 13")
    A(f"s_lshl_b32 {sr(S_TMP+3)}, {sr(S_S)}, 11")
    A(f"s_add_u32 {sr(S_R2P)}, {sr(S_R2P)}, {sr(S_TMP+3)}")
    A(f"s_lshl_b32 {sr(S_TMP+3)}, {sr(S_B)}, 8")
    A(f"s_add_u32 {sr(S_R2P)}, {sr(S_R2P)}, {sr(S_TMP+3)}")
    A(f"s_lshl_b32 {sr(S_TMP+3)}, {sr(S_WAVE)}, 6")
    A(f"s_add_u32 {sr(S_R2P)}, {sr(S_R2P)}, {sr(S_TMP+3)}")
    A(f"s_add_u32 {sr(S_R2P)}, {sr(S_R2P)}, {WS_R2}")
    A(f"s_add_u32 {sr(S_R2P+1)}, {sr(S_R2P)}, 65536")
    S_R1Q = 71
    S_LST, S_LFC, S_STC = 6, 7, 76
    A(f"s_mov_b32 {sr(S_LST)}, {L_STAT}")
    A(f"s_mov_b32 {sr(S_LFC)}, {L_FAC}")
    A(f"s_lshl_b32 {sr(S_STC)}, {sr(S_HKV)}, 10")
    A(f"s_lshl_b32 {sr(S_TMP+3)}, {sr(S_S)}, 3")
    A(f"s_add_u32 {sr(S_STC)}, {sr(S_STC)}, {sr(S_TMP+3)}")
    A(f"s_add_u32 {sr(S_STC)}, {sr(S_STC)}, {WS_ST}")
    V_AXW = 9
    A(f"s_lshr_b32 {sr(S_TMP+3)}, {sr(S_WAVE)}, 1")
    A(f"s_lshl_b32 {sr(S_TMP+3)}, {sr(S_TMP+3)}, 11")
    A(f"s_add_u32 {sr(S_R1Q)}, {sr(S_R1C)}, {sr(S_TMP+3)}")
    A(f"s_and_b32 {sr(S_TMP+3)}, {sr(S_WAVE)}, 1")
    A(f"s_lshl_b32 {sr(S_TMP+3)}, {sr(S_TMP+3)}, 7")
    A(f"s_add_u32 {sr(S_R1Q)}, {sr(S_R1Q)}, {sr(S_TMP+3)}")
    A(f"s_lshl_b32 {sr(S_TMP+3)}, {sr(S_WAVE)}, 11")
    A(f"v_add_u32 {vr(V_AXW)}, {sr(S_TMP+3)}, {vr(V_L16)}")
    V_PR = 6
    V_L4 = 7
    V_R2A = 10
    A(f"s_lshl_b32 {sr(S_TMP+3)}, {sr(S_WAVE)}, 9")
    A(f"v_add_u32 {vr(V_PR)}, {sr(S_TMP+3)}, {vr(V_L8)}")
    A(f"v_add_u32 {vr(V_PR+5)}, {2*RING}, {vr(V_PR)}")
    A(f"v_lshlrev_b32 {vr(V_L4)}, 2, v0")
    A(f"v_lshlrev_b32 {vr(V_R2A)}, 17, {vr(V_G)}")
    A(f"v_lshl_add_u32 {vr(V_R2A)}, {vr(V_J)}, 2, {vr(V_R2A)}")
    def wo_frag():
        lds_wait(F_WOL, 4, T, sleep=2)
        for u in range(4):
            for h in range(2):
                A(f"ds_read_b64_tr_b16 {vr(V_WO+4*u+2*h,2)}, {vr(V_TRA)} offset:{u*4096+h*512}")
        lds_inc(F_WO, T)
    A(f"s_cmp_eq_u32 {sr(S_WAVE)}, 0")
    A("s_cbranch_scc0 L_notstat")
    A(f"s_lshl_b32 {sr(S_TMP+2)}, {sr(S_HKV)}, 5")
    A(f"s_add_u32 {sr(S_TMP+2)}, {sr(S_TMP+2)}, {sr(S_IDX)}")
    A(f"s_lshl_b32 {sr(S_TMP+2)}, {sr(S_TMP+2)}, 5")
    A(f"s_add_u32 {sr(S_TMP+2)}, {sr(S_TMP+2)}, {WS_ST}")
    A(f"v_lshl_add_u32 {vr(T+11)}, {vr(V_J)}, 3, {sr(S_LST)}")
    A(f"v_lshl_add_u32 {vr(T+20)}, {vr(V_J)}, 2, {sr(S_LFC)}")
    lds_wait(F_ST, 4, T)
    A(f"ds_read_b64 {vr(T+12,2)}, {vr(T+11)}")
    A("s_waitcnt lgkmcnt(0)")
    A(f"v_mov_b32 {vr(T)}, {vr(T+12)}")
    for d in (8, 4):
        A.nop(2)
        A(f"v_max_f32_dpp {vr(T)}, {vr(T)}, {vr(T)} row_ror:{d} {DPPM}")
    A(f"v_sub_f32 {vr(T+2)}, {vr(T+12)}, {vr(T)}")
    A(f"v_mul_f32 {vr(T+2)}, {sr(S_C0)}, {vr(T+2)}")
    A(f"v_exp_f32 {vr(T+2)}, {vr(T+2)}")
    A.nop(1)
    A(f"v_mul_f32 {vr(T+1)}, {vr(T+2)}, {vr(T+13)}")
    for d in (8, 4):
        A.nop(2)
        A(f"v_add_f32_dpp {vr(T+1)}, {vr(T+1)}, {vr(T+1)} row_ror:{d} {DPPM}")
    A(f"v_rcp_f32 {vr(T+3)}, {vr(T+1)}")
    A.nop(1)
    A(f"v_mul_f32 {vr(T+2)}, {vr(T+2)}, {vr(T+3)}")
    A(f"ds_write_b32 {vr(T+20)}, {vr(T+2)}")
    lds_inc(F_FAC, T+8)
    A(f"v_min_u32 {vr(T)}, -2, {vr(T)}")
    A(f"v_min_u32 {vr(T+1)}, -2, {vr(T+1)}")
    A("s_mov_b64 exec, 15")
    A(f"buffer_store_dwordx2 {vr(T,2)}, {vr(V_L8)}, {sr(SWS,4)}, {sr(S_TMP+2)} offen sc1")
    A("s_mov_b64 exec, -1")
    stamp("fac_done")
    A("s_waitcnt vmcnt(0)")
    wo_frag()
    A("s_branch L_pre_s4")
    A.label("L_notstat")
    wo_frag()
    A(f"s_cmp_lt_u32 s2, 8")
    A("s_cbranch_scc0 L_pre_s4")
    GG = 86
    V_NA = T + 12
    A(f"s_sub_u32 {sr(S_TMP+2)}, {sr(S_WAVE)}, 1")
    A(f"s_lshl_b32 {sr(S_TMP+3)}, {sr(S_TMP+2)}, 14")
    A(f"s_add_u32 {sr(S_TMP+3)}, {sr(S_TMP+3)}, {WS_GT}")
    for k in range(1, 4):
        A(f"s_add_u32 {sr(S_TMP+3+k)}, {sr(S_TMP+3)}, {4096*k}")
    A(f"v_and_b32 {vr(T+10)}, 3, v0")
    A(f"v_lshlrev_b32 {vr(T+10)}, 6, {vr(T+10)}")
    A(f"s_lshl_b32 {sr(S_TMP+2)}, {sr(S_TMP+2)}, 13")
    A(f"s_add_u32 {sr(S_TMP+2)}, {sr(S_TMP+2)}, {L_GT}")
    A(f"v_add_u32 {vr(T+11)}, {sr(S_TMP+2)}, {vr(V_L8)}")
    lds_wait(F_ST, 1, T+4, sleep=4)
    A(f"s_mov_b32 {sr(S_SPIN)}, {SPIN_LIMIT}")
    A.label("L_gchk")
    for i in range(16):
        A(f"buffer_load_dwordx4 {vr(GG+4*i,4)}, {vr(V_L16)}, {sr(SWS,4)}, {sr(S_TMP+3+(i>>2))} offen offset:{(i&3)*1024} sc1")
    A(f"buffer_load_dword {vr(V_NA)}, {vr(T+10)}, {sr(SDBG,4)}, 0 offen sc1")
    A(f"buffer_load_dword {vr(V_NA+1)}, {vr(T+10)}, {sr(SDBG,4)}, 0 offen offset:32 sc1")
    A("s_waitcnt vmcnt(0)")
    A(f"v_and_b32 {vr(T)}, {vr(V_NA)}, {vr(V_NA+1)}")
    A(f"v_and_b32 {vr(T)}, 1, {vr(T)}")
    A(f"v_xor_b32 {vr(T)}, 1, {vr(T)}")
    for i in range(16):
        A(f"v_xor_b32 {vr(T+1)}, {vr(V_NA)}, {vr(GG+4*i+1)}")
        A(f"v_xor_b32 {vr(T+2)}, {vr(V_NA+1)}, {vr(GG+4*i+3)}")
        A(f"v_or3_b32 {vr(T)}, {vr(T)}, {vr(T+1)}, {vr(T+2)}")
    A(f"v_cmp_ne_u32 vcc, 0, {vr(T)}")
    A("s_cbranch_vccz L_gok")
    A("s_sleep 32")
    A(f"s_sub_u32 {sr(S_SPIN)}, {sr(S_SPIN)}, 1")
    A("s_cbranch_scc0 L_gchk")
    A.label("L_gok")
    lds_wait(F_WO, 4, T+4)
    for i in range(16):
        A(f"v_mov_b32 {vr(GG+4*i+1)}, {vr(GG+4*i+2)}")
    for i in range(16):
        A(f"ds_write_b64 {vr(T+11)}, {vr(GG+4*i,2)} offset:{i*512}")
    stamp("gt_done")
    A.label("L_pre_s4")
    A("s_waitcnt lgkmcnt(0)")
    A("s_barrier")
    stamp("s4")
    if 'T' in o['skip']: A("s_branch L_fin")
    RB = 86
    for w in range(4):
        ad = V_PR if w < 2 else V_PR + 5
        A(f"ds_read_b64 {vr(RB+2*w,2)}, {vr(ad)} offset:{(w&1)*RING}")
    S_M = 80
    for k in range(4):
        A(f"s_mov_b64 {sr(S_M+2*k,2)}, -1")
    A(f"s_mov_b32 {sr(S_SPIN)}, {SPIN_LIMIT}")
    A("s_waitcnt lgkmcnt(2)")
    A(f"v_pk_add_f32 {vr(RB,2)}, {vr(RB,2)}, {vr(RB+2,2)}")
    A("s_waitcnt lgkmcnt(0)")
    A(f"v_pk_add_f32 {vr(RB+4,2)}, {vr(RB+4,2)}, {vr(RB+6,2)}")
    A(f"v_pk_add_f32 {vr(RB,2)}, {vr(RB,2)}, {vr(RB+4,2)}")
    A(f"v_cvt_pk_bf16_f32 {vr(RB+2)}, {vr(RB)}, {vr(RB+1)}")
    A(f"v_min_u32 {vr(RB+2)}, -2, {vr(RB+2)}")
    A(f"buffer_store_dword {vr(RB+2)}, {vr(V_L4)}, {sr(SWS,4)}, {sr(S_R1P)} offen sc1")
    stamp("r1_pub")
    WT = 160
    L_WX = 20480
    A(f"v_and_b32 {vr(T+4)}, 31, v0")
    A(f"v_lshlrev_b32 {vr(T+5)}, 5, {vr(T+4)}")
    A(f"s_lshl_b32 {sr(S_TMP+3)}, {sr(S_WAVE)}, 7")
    A(f"s_add_u32 {sr(S_TMP+3)}, {sr(S_TMP+3)}, {L_WX}")
    A(f"v_lshl_add_u32 {vr(T+6)}, {vr(T+4)}, 2, {sr(S_TMP+3)}")
    A(f"v_lshl_add_u32 {vr(T+7)}, {vr(V_G)}, 5, {sr(S_TMP+3)}")
    A.label("L_stloop")
    A(f"buffer_load_dwordx2 {vr(T+2,2)}, {vr(T+5)}, {sr(SWS,4)}, {sr(S_STC)} offen sc1")
    A("s_waitcnt vmcnt(0)")
    A(f"v_max_u32 {vr(T)}, {vr(T+2)}, {vr(T+3)}")
    A(f"v_cmp_eq_u32 vcc, -1, {vr(T)}")
    A("s_cbranch_vccz L_stok")
    A("s_sleep 2")
    A(f"s_sub_u32 {sr(S_SPIN)}, {sr(S_SPIN)}, 1")
    A("s_cbranch_scc0 L_stloop")
    A.label("L_stok")
    A(f"v_mov_b32 {vr(T)}, {vr(T+2)}")
    for dpp in ("quad_perm:[1,0,3,2]", "quad_perm:[2,3,0,1]"):
        A.nop(2)
        A(f"v_max_f32_dpp {vr(T)}, {vr(T)}, {vr(T)} {dpp} {DPPM}")
    A(f"v_sub_f32 {vr(T+2)}, {vr(T+2)}, {vr(T)}")
    A(f"v_mul_f32 {vr(T+2)}, {sr(S_C0)}, {vr(T+2)}")
    A(f"v_exp_f32 {vr(T+2)}, {vr(T+2)}")
    A.nop(1)
    A(f"v_mul_f32 {vr(T+2)}, {vr(T+2)}, {vr(T+3)}")
    A(f"v_mov_b32 {vr(T+1)}, {vr(T+2)}")
    for dpp in ("quad_perm:[1,0,3,2]", "quad_perm:[2,3,0,1]"):
        A.nop(2)
        A(f"v_add_f32_dpp {vr(T+1)}, {vr(T+1)}, {vr(T+1)} {dpp} {DPPM}")
    A(f"v_rcp_f32 {vr(T+1)}, {vr(T+1)}")
    A.nop(1)
    A(f"v_mul_f32 {vr(T+2)}, {vr(T+2)}, {vr(T+1)}")
    A(f"ds_write_b32 {vr(T+6)}, {vr(T+2)}")
    A("s_waitcnt lgkmcnt(0)")
    A(f"ds_read_b128 {vr(WT,4)}, {vr(T+7)}")
    A(f"ds_read_b128 {vr(WT+4,4)}, {vr(T+7)} offset:16")
    A(f"s_mov_b32 {sr(S_SPIN)}, {SPIN_LIMIT}")
    RA = 96
    if o["r1split"]:
        L_AX = 8192
        RQ = RA + 32
        A.label("L_r1loop")
        A(f"s_mov_b64 exec, {sr(S_M,2)}")
        A(f"buffer_load_dwordx4 {vr(RQ,4)}, {vr(V_R1A)}, {sr(SWS,4)}, {sr(S_R1Q)} offen sc1")
        A(f"buffer_load_dwordx4 {vr(RQ+4,4)}, {vr(V_R1A)}, {sr(SWS,4)}, {sr(S_R1Q)} offen offset:64 sc1")
        A("s_mov_b64 exec, -1")
        A("s_waitcnt vmcnt(0)")
        A(f"v_max3_u32 {vr(T)}, {vr(RQ)}, {vr(RQ+1)}, {vr(RQ+2)}")
        A(f"v_max3_u32 {vr(T+1)}, {vr(RQ+3)}, {vr(RQ+4)}, {vr(RQ+5)}")
        A(f"v_max3_u32 {vr(T)}, {vr(T)}, {vr(RQ+6)}, {vr(RQ+7)}")
        A(f"v_max_u32 {vr(T)}, {vr(T)}, {vr(T+1)}")
        A(f"v_cmp_eq_u32 {sr(S_M,2)}, -1, {vr(T)}")
        A(f"s_cmp_eq_u64 {sr(S_M,2)}, 0")
        A("s_cbranch_scc1 L_r1ok")
        if o["r1sleep"]: A(f"s_sleep {o['r1sleep']}")
        A(f"s_sub_u32 {sr(S_SPIN)}, {sr(S_SPIN)}, 1")
        A("s_cbranch_scc0 L_r1loop")
        A.label("L_r1ok")
        A(f"ds_write_b128 {vr(V_AXW)}, {vr(RQ,4)} offset:{L_AX}")
        A(f"ds_write_b128 {vr(V_AXW)}, {vr(RQ+4,4)} offset:{L_AX+1024}")
        A("s_waitcnt lgkmcnt(0)")
        A("s_barrier")
        for i in range(8):
            A(f"ds_read_b128 {vr(RA+4*i,4)}, {vr(V_L16)} offset:{L_AX+1024*i}")
        A("s_waitcnt lgkmcnt(0)")
    else:
        def r1_batch():
            for k in range(4):
                tau, up = k >> 1, k & 1
                A(f"s_mov_b64 exec, {sr(S_M+2*k,2)}")
                for uu in range(2):
                    u = 2 * up + uu
                    A(f"buffer_load_dwordx4 {vr(RA+8*k+4*uu,4)}, {vr(V_R1A)}, {sr(SWS,4)}, {sr(S_R1C)} offen offset:{tau*2048+u*64} sc1")
            A("s_mov_b64 exec, -1")
        for _ in range(o["nb1"] - 1): r1_batch()
        A.label("L_r1loop")
        r1_batch()
        A(f"s_waitcnt vmcnt({8*(o['nb1']-1)})")
        for k in range(4):
            A(f"v_max3_u32 {vr(T+k)}, {vr(RA+8*k)}, {vr(RA+8*k+1)}, {vr(RA+8*k+2)}")
        for k in range(4):
            A(f"v_max3_u32 {vr(T+k)}, {vr(T+k)}, {vr(RA+8*k+3)}, {vr(RA+8*k+4)}")
        for k in range(4):
            A(f"v_max3_u32 {vr(T+k)}, {vr(T+k)}, {vr(RA+8*k+5)}, {vr(RA+8*k+6)}")
        for k in range(4):
            A(f"v_max_u32 {vr(T+k)}, {vr(T+k)}, {vr(RA+8*k+7)}")
        for k in range(4):
            A(f"v_cmp_eq_u32 {sr(S_M+2*k,2)}, -1, {vr(T+k)}")
        A(f"s_or_b64 {sr(S_TMP,2)}, {sr(S_M,2)}, {sr(S_M+2,2)}")
        A(f"s_or_b64 {sr(S_TMP+2,2)}, {sr(S_M+4,2)}, {sr(S_M+6,2)}")
        A(f"s_or_b64 {sr(S_TMP,2)}, {sr(S_TMP,2)}, {sr(S_TMP+2,2)}")
        A("s_cbranch_scc0 L_r1ok")
        if o["r1sleep"]:
            A(f"s_bcnt1_i32_b64 {sr(S_TMP+2)}, {sr(S_TMP,2)}")
            A(f"s_cmp_lt_u32 {sr(S_TMP+2)}, 17")
            A("s_cbranch_scc1 L_r1ns")
            A(f"s_sleep {o['r1sleep']}")
            A.label("L_r1ns")
        A(f"s_sub_u32 {sr(S_SPIN)}, {sr(S_SPIN)}, 1")
        A("s_cbranch_scc0 L_r1loop")
        A.label("L_r1ok")
    OD = T + 8
    for u in range(4):
        for tau in range(2):
            k, uu = 2 * tau + (u >> 1), u & 1
            od = OD + 4 * tau
            c = "0" if u == 0 else vr(od, 4)
            A(f"v_mfma_f32_16x16x32_bf16 {vr(od,4)}, {vr(RA+8*k+4*uu,4)}, {vr(V_WO+4*u,4)}, {c}")
    stamp("r1_ok")
    A.nop(8)
    A(f"v_mul_f32 {vr(T+1)}, {vr(WT+0)}, {vr(OD+0)}")
    A(f"v_mul_f32 {vr(T+2)}, {vr(WT+4)}, {vr(OD+2)}")
    A(f"v_fmac_f32 {vr(T+1)}, {vr(WT+1)}, {vr(OD+1)}")
    A(f"v_fmac_f32 {vr(T+2)}, {vr(WT+5)}, {vr(OD+3)}")
    A(f"v_fmac_f32 {vr(T+1)}, {vr(WT+2)}, {vr(OD+4)}")
    A(f"v_fmac_f32 {vr(T+2)}, {vr(WT+6)}, {vr(OD+6)}")
    A(f"v_fmac_f32 {vr(T+1)}, {vr(WT+3)}, {vr(OD+5)}")
    A(f"v_fmac_f32 {vr(T+2)}, {vr(WT+7)}, {vr(OD+7)}")
    A(f"v_min_u32 {vr(T+1)}, -2, {vr(T+1)}")
    A(f"v_min_u32 {vr(T+2)}, -2, {vr(T+2)}")
    A(f"buffer_store_dword {vr(T+1)}, {vr(V_R2A)}, {sr(SWS,4)}, {sr(S_R2P)} offen sc1")
    A(f"buffer_store_dword {vr(T+2)}, {vr(V_R2A)}, {sr(SWS,4)}, {sr(S_R2P+1)} offen sc1")
    stamp("r2_pub")
    A(f"s_cmp_lt_u32 s2, 8")
    A("s_cbranch_scc0 L_fin")
    FB = 96
    H = 196
    OWN = 184
    D_ = T + 24
    N1 = T + 32
    LT2 = T
    A(f"s_lshl_b32 {sr(S_TMP+2)}, s2, 16")
    A(f"s_lshl_b32 {sr(S_TMP+6)}, {sr(S_WAVE)}, 9")
    A(f"s_add_u32 {sr(S_TMP+2)}, {sr(S_TMP+2)}, {sr(S_TMP+6)}")
    A(f"s_add_u32 {sr(S_TMP+2)}, {sr(S_TMP+2)}, {WS_R2}")
    A(f"s_add_u32 {sr(S_TMP+6)}, {sr(S_TMP+6)}, {L_H}")
    A(f"v_lshl_add_u32 {vr(OWN+8)}, {vr(V_CP)}, 1, {sr(S_TMP+6)}")
    A(f"v_lshlrev_b32 {vr(OWN+9)}, 5, v0")
    A(f"v_add_u32 {vr(OWN+9)}, {L_H}, {vr(OWN+9)}")
    A(f"v_lshlrev_b32 {vr(OWN+6)}, 16, {vr(V_XF)}")
    A(f"v_and_b32 {vr(OWN+7)}, 0xffff0000, {vr(V_XF)}")
    A(f"v_and_b32 {vr(OWN+10)}, 31, v0")
    A(f"v_lshlrev_b32 {vr(OWN+10)}, 4, {vr(OWN+10)}")
    A(f"v_lshrrev_b32 {vr(OWN+11)}, 5, v0")
    A(f"v_lshl_add_u32 {vr(OWN+10)}, {vr(OWN+11)}, 11, {vr(OWN+10)}")
    A(f"s_mov_b32 {sr(S_SPIN)}, {SPIN_LIMIT}")
    for k in range(4):
        A(f"s_mov_b64 {sr(S_M+2*k,2)}, -1")
    for i in range(16):
        A(f"s_add_u32 {sr(S_RB+i)}, {sr(S_TMP+2)}, {i*4096}")
    A("s_waitcnt vmcnt(0)")
    def r2_batch():
        for k in range(4):
            A(f"s_mov_b64 exec, {sr(S_M+2*k,2)}")
            for pp in range(4):
                i = 4 * k + pp
                A(f"buffer_load_dwordx4 {vr(FB+4*i,4)}, {vr(OWN+10)}, {sr(SWS,4)}, {sr(S_RB+i)} offen sc1")
        A("s_mov_b64 exec, -1")
    for _ in range(o["nb2"] - 1): r2_batch()
    A.label("L_r2loop")
    r2_batch()
    A(f"s_waitcnt vmcnt({16*(o['nb2']-1)})")
    for st in range(8):
        for k in range(4):
            r = FB + 16 * k
            if st == 0:
                A(f"v_max3_u32 {vr(T+k)}, {vr(r)}, {vr(r+1)}, {vr(r+2)}")
            elif st < 7:
                A(f"v_max3_u32 {vr(T+k)}, {vr(T+k)}, {vr(r+1+2*st)}, {vr(r+2+2*st)}")
            else:
                A(f"v_max_u32 {vr(T+k)}, {vr(T+k)}, {vr(r+15)}")
    for k in range(4):
        A(f"v_cmp_eq_u32 {sr(S_M+2*k,2)}, -1, {vr(T+k)}")
    A(f"s_or_b64 {sr(S_TMP,2)}, {sr(S_M,2)}, {sr(S_M+2,2)}")
    A(f"s_or_b64 {sr(S_TMP+4,2)}, {sr(S_M+4,2)}, {sr(S_M+6,2)}")
    A(f"s_or_b64 {sr(S_TMP,2)}, {sr(S_TMP,2)}, {sr(S_TMP+4,2)}")
    A("s_cbranch_scc0 L_r2ok")
    A(f"s_sub_u32 {sr(S_SPIN)}, {sr(S_SPIN)}, 1")
    A("s_cbranch_scc0 L_r2loop")
    A.label("L_r2ok")
    SM = T + 8
    for i in range(4):
        for hh_ in range(2):
            A(f"v_pk_add_f32 {vr(SM+4*i+2*hh_,2)}, {vr(FB+16*i+2*hh_,2)}, {vr(FB+16*i+4+2*hh_,2)}")
    for j in (2, 3):
        for i in range(4):
            for hh_ in range(2):
                A(f"v_pk_add_f32 {vr(SM+4*i+2*hh_,2)}, {vr(SM+4*i+2*hh_,2)}, {vr(FB+16*i+4*j+2*hh_,2)}")
    for hh_ in range(2):
        A(f"v_pk_add_f32 {vr(SM+2*hh_,2)}, {vr(SM+2*hh_,2)}, {vr(SM+4+2*hh_,2)}")
        A(f"v_pk_add_f32 {vr(SM+8+2*hh_,2)}, {vr(SM+8+2*hh_,2)}, {vr(SM+12+2*hh_,2)}")
    for hh_ in range(2):
        A(f"v_pk_add_f32 {vr(SM+2*hh_,2)}, {vr(SM+2*hh_,2)}, {vr(SM+8+2*hh_,2)}")
    A.nop(1)
    A(f"v_permlane32_swap_b32 {vr(SM)}, {vr(SM+2)}")
    A(f"v_permlane32_swap_b32 {vr(SM+1)}, {vr(SM+3)}")
    A.nop(1)
    FB = SM + 4
    A(f"v_pk_add_f32 {vr(FB,2)}, {vr(SM,2)}, {vr(SM+2,2)}")
    rne2(FB, FB+1, T)
    A(f"v_pk_add_f32 {vr(OWN,2)}, {vr(FB,2)}, {vr(OWN+6,2)}")
    rne2(OWN, OWN+1, T)
    A(f"ds_write_b64 {vr(OWN+8)}, {vr(OWN,2)}")
    A("s_waitcnt lgkmcnt(0)")
    A("s_barrier")
    stamp("r2_ok")
    A(f"ds_read_b128 {vr(H,4)}, {vr(OWN+9)}")
    A(f"ds_read_b128 {vr(H+4,4)}, {vr(OWN+9)} offset:16")
    def ln_stats(x, t):
        A(f"v_readfirstlane_b32 {sr(S_TMP+7)}, {vr(x)}")
        A.nop(2)
        A(f"v_mov_b32 {vr(t+2)}, {sr(S_TMP+7)}")
        A(f"v_mov_b32 {vr(t+3)}, {sr(S_TMP+7)}")
        for i in range(0, 8, 2):
            A(f"v_pk_add_f32 {vr(t+4+i,2)}, {vr(x+i,2)}, {vr(t+2,2)} neg_lo:[0,1] neg_hi:[0,1]")
        A(f"v_pk_add_f32 {vr(t,2)}, {vr(t+4,2)}, {vr(t+6,2)}")
        A(f"v_pk_mul_f32 {vr(t+12,2)}, {vr(t+4,2)}, {vr(t+4,2)}")
        A(f"v_pk_add_f32 {vr(t,2)}, {vr(t,2)}, {vr(t+8,2)}")
        A(f"v_pk_fma_f32 {vr(t+12,2)}, {vr(t+6,2)}, {vr(t+6,2)}, {vr(t+12,2)}")
        A(f"v_pk_add_f32 {vr(t,2)}, {vr(t,2)}, {vr(t+10,2)}")
        A(f"v_pk_fma_f32 {vr(t+12,2)}, {vr(t+8,2)}, {vr(t+8,2)}, {vr(t+12,2)}")
        A(f"v_add_f32 {vr(t)}, {vr(t)}, {vr(t+1)}")
        A(f"v_pk_fma_f32 {vr(t+12,2)}, {vr(t+10,2)}, {vr(t+10,2)}, {vr(t+12,2)}")
        A(f"v_add_f32 {vr(t+1)}, {vr(t+12)}, {vr(t+13)}")
        allreduce("v_add_f32", [t, t+1], [t+4, t+5])
        A(f"v_mul_f32 {vr(t)}, {hex(f2u(1/512))}, {vr(t)}")
        A(f"v_mul_f32 {vr(t+1)}, {hex(f2u(1/512))}, {vr(t+1)}")
        A(f"v_fma_f32 {vr(t+1)}, -{vr(t)}, {vr(t)}, {vr(t+1)}")
        A(f"v_add_f32 {vr(t)}, {vr(t)}, {vr(t+2)}")
        A(f"v_max_f32 {vr(t+1)}, 0, {vr(t+1)}")
        rne2(t, t+1, t+4)
        A(f"v_add_f32 {vr(t+1)}, {hex(f2u(1e-5))}, {vr(t+1)}")
        rne1(t+1, t+1)
        A(f"v_sqrt_f32 {vr(t+1)}, {vr(t+1)}")
        A.nop(1)
        rne1(t+1, t+1)
        A(f"v_rcp_f32 {vr(t+2)}, {vr(t+1)}")
        A(f"v_mov_b32 {vr(t+4)}, {vr(t)}")
        A(f"v_mov_b32 {vr(t+5)}, {vr(t)}")
        A(f"v_mov_b32 {vr(t+6)}, {vr(t+1)}")
        A(f"v_mov_b32 {vr(t+7)}, {vr(t+1)}")
        A(f"v_mov_b32 {vr(t+3)}, {vr(t+2)}")
    def ln_apply(pairs, t, pk):
        for (s_, d, n) in pairs:
            A(f"v_pk_add_f32 {vr(d,2)}, {vr(s_,2)}, {vr(t+4,2)} neg_lo:[0,1] neg_hi:[0,1]")
        for i, (s_, d, n) in enumerate(pairs):
            A(f"v_cvt_pk_bf16_f32 {vr(pk+i)}, {vr(d)}, {vr(d+1)}")
        for i, (s_, d, n) in enumerate(pairs):
            A(f"v_lshlrev_b32 {vr(d)}, 16, {vr(pk+i)}")
            A(f"v_and_b32 {vr(d+1)}, 0xffff0000, {vr(pk+i)}")
        for (s_, d, n) in pairs:
            A(f"v_pk_mul_f32 {vr(n,2)}, {vr(d,2)}, {vr(t+2,2)}")
        for (s_, d, n) in pairs:
            A(f"v_pk_fma_f32 {vr(d,2)}, {vr(n,2)}, {vr(t+6,2)}, {vr(d,2)} neg_lo:[1,0,0] neg_hi:[1,0,0]")
        for (s_, d, n) in pairs:
            A(f"v_pk_fma_f32 {vr(n,2)}, {vr(d,2)}, {vr(t+2,2)}, {vr(n,2)}")
        for i, (s_, d, n) in enumerate(pairs):
            A(f"v_cvt_pk_bf16_f32 {vr(pk+i)}, {vr(n)}, {vr(n+1)}")
        for i, (s_, d, n) in enumerate(pairs):
            A(f"v_lshlrev_b32 {vr(n)}, 16, {vr(pk+i)}")
            A(f"v_and_b32 {vr(n+1)}, 0xffff0000, {vr(pk+i)}")
    A("s_waitcnt lgkmcnt(0)")
    ln_stats(H, LT2)
    ln_apply([(H+i, D_+i, N1+i) for i in range(0, 8, 2)] + [(OWN, OWN+4, OWN+2)], LT2, LT2+8)
    ln_stats(N1, LT2)
    ln_apply([(OWN+2, OWN+4, OWN+2)], LT2, LT2+8)
    Y = OWN + 4
    S_MS = 80
    A(f"s_mov_b32 {sr(S_TMP+8)}, {o.get('fbtest', NEXP) * 128}")
    for x in range(2):
        A(f"v_bfe_u32 {vr(LT2+2*x)}, {vr(OWN+2+x)}, 16, 15")
        A(f"v_subrev_u32 {vr(LT2+2*x)}, {E0*128}, {vr(LT2+2*x)}")
        A(f"v_cmp_gt_u32 {sr(S_MS+2*x,2)}, {sr(S_TMP+8)}, {vr(LT2+2*x)}")
        A(f"v_lshrrev_b32 {vr(LT2+2*x+1)}, 31, {vr(OWN+2+x)}")
        A(f"v_mul_u32_u24 {vr(LT2+2*x+1)}, {GT_HALF}, {vr(LT2+2*x+1)}")
        A(f"v_cndmask_b32 {vr(LT2+2*x)}, 0, {vr(LT2+2*x)}, {sr(S_MS+2*x,2)}")
        A(f"v_add_lshl_u32 {vr(LT2+2*x)}, {vr(LT2+2*x)}, {vr(LT2+2*x+1)}, 2")
        A(f"v_add_u32 {vr(LT2+2*x)}, {L_GT}, {vr(LT2+2*x)}")
        A(f"ds_read_b32 {vr(Y+x)}, {vr(LT2+2*x)}")
    A(f"s_and_b64 {sr(S_TMP+4,2)}, {sr(S_MS,2)}, {sr(S_MS+2,2)}")
    A(f"s_lshl_b32 {sr(S_TMP+2)}, s2, 10")
    A(f"s_lshl_b32 {sr(S_TMP+3)}, {sr(S_WAVE)}, 8")
    A(f"s_add_u32 {sr(S_TMP+2)}, {sr(S_TMP+2)}, {sr(S_TMP+3)}")
    A(f"s_cmp_eq_u64 {sr(S_TMP+4,2)}, -1")
    A("s_waitcnt lgkmcnt(0)")
    A("s_cbranch_scc1 L_nofb")
    A("s_waitcnt vmcnt(0)")
    gw_load()
    gw_unpack()
    for x in range(2):
        lp, dn = A.newlabel("Lfb"), A.newlabel("Lfbd")
        A(f"s_not_b64 {sr(S_TMP+4,2)}, {sr(S_MS+2*x,2)}")
        A.label(lp)
        A(f"s_cmp_eq_u64 {sr(S_TMP+4,2)}, 0")
        A(f"s_cbranch_scc1 {dn}")
        A(f"s_ff1_i32_b64 {sr(S_TMP+6)}, {sr(S_TMP+4,2)}")
        A(f"s_bitset0_b64 {sr(S_TMP+4,2)}, {sr(S_TMP+6)}")
        A(f"v_readlane_b32 {sr(S_TMP+7)}, {vr(OWN+2+x)}, {sr(S_TMP+6)}")
        A(f"v_mov_b32 {vr(G_ACC)}, 0")
        A.nop(2)
        A(f"v_mov_b32 {vr(G_T)}, {sr(S_TMP+7)}")
        A(f"v_mov_b32 {vr(G_K0)}, {hex(f2u(K0))}")
        for c in range(7):
            g_chunk(c, 1)
        g_finish(1)
        A(f"s_lshl_b64 exec, 1, {sr(S_TMP+6)}")
        A(f"v_mov_b32 {vr(Y+x)}, {vr(G_ACC)}")
        A("s_mov_b64 exec, -1")
        A(f"s_branch {lp}")
        A.label(dn)
    A.label("L_nofb")
    A(f"v_pk_add_f32 {vr(Y,2)}, {vr(Y,2)}, {vr(OWN,2)}")
    A(f"v_cvt_pk_bf16_f32 {vr(Y)}, {vr(Y)}, {vr(Y+1)}")
    A(f"buffer_store_dword {vr(Y)}, {vr(V_CP)}, {sr(SOUT,4)}, {sr(S_TMP+2)} offen")
    A("s_branch L_fin")

    A.label("L_stream")
    cur[0] = "s"
    A.vm = 0
    A(f"s_setprio {o['pst']}")
    V_KD = 2
    V_KR = 6
    V_VO = 10
    V_M0, V_M1 = 11, 14
    V_MW, V_LS = 15, 236
    V_ACC = 16
    V_XA = 24
    V_XB = 30
    V_Q = 36
    V_S = 52
    V_KF = 92
    V_V = 124
    T = 238
    NVS = 7
    S_SW = 62
    A(f"s_sub_u32 {sr(S_SW)}, {sr(S_WAVE)}, 4")
    A(f"s_lshl_b32 {sr(S_KOFF)}, {sr(S_B)}, 23")
    A(f"s_lshl_b32 {sr(S_TMP+3)}, {sr(S_HKV)}, 20")
    A(f"s_add_u32 {sr(S_KOFF)}, {sr(S_KOFF)}, {sr(S_TMP+3)}")
    A(f"s_lshl_b32 {sr(S_TMP+3)}, {sr(S_S)}, 18")
    A(f"s_add_u32 {sr(S_KOFF)}, {sr(S_KOFF)}, {sr(S_TMP+3)}")
    A(f"s_lshl_b32 {sr(S_TMP+3)}, {sr(S_SW)}, 12")
    A(f"s_add_u32 {sr(S_KOFF)}, {sr(S_KOFF)}, {sr(S_TMP+3)}")
    A(f"s_lshl_b32 {sr(S_RING)}, {sr(S_SW)}, 15")
    S_ROT = 4
    if o["rot"] == 1:
        A(f"s_lshl_b32 {sr(S_ROT)}, {sr(S_HKV)}, 1")
        A(f"s_add_u32 {sr(S_ROT)}, {sr(S_ROT)}, {sr(S_IDX)}")
    elif o["rot"] == 2:
        A(f"s_mul_i32 {sr(S_ROT)}, {sr(S_IDX)}, 5")
        A(f"s_lshl_b32 {sr(S_TMP+3)}, {sr(S_HKV)}, 1")
        A(f"s_add_u32 {sr(S_ROT)}, {sr(S_ROT)}, {sr(S_TMP+3)}")
    A(f"s_lshl_b32 {sr(S_ROT)}, {sr(S_ROT)}, 14")
    A(f"v_xor_b32 {vr(T)}, {vr(V_J)}, {vr(V_G)}")
    A(f"v_lshlrev_b32 {vr(T+1)}, 8, {vr(V_G)}")
    A(f"v_lshlrev_b32 {vr(T+2)}, 8, {vr(V_J)}")
    A(f"v_add_u32 {vr(T+2)}, {sr(S_RING)}, {vr(T+2)}")
    for a in range(4):
        A(f"v_xor_b32 {vr(T+3)}, {4*a}, {vr(T)}")
        A(f"v_lshlrev_b32 {vr(T+3)}, 4, {vr(T+3)}")
        A(f"v_add_u32 {vr(V_KD+a)}, {vr(T+1)}, {vr(T+3)}")
        A(f"v_add_u32 {vr(V_KR+a)}, {vr(T+2)}, {vr(T+3)}")
    A(f"v_lshlrev_b32 {vr(V_VO)}, 10, {vr(V_G)}")
    A(f"v_lshl_add_u32 {vr(V_VO)}, {vr(V_J)}, 4, {vr(V_VO)}")
    A("s_waitcnt lgkmcnt(0)")
    srd(SK, 1, 64 << 20)
    srd(SV, 2, 64 << 20)
    if o["debug"]: srd(SWS, 12, WS_SIZE)
    if not o["kfirst"]: A("s_barrier")
    stamp("start")
    NV1 = o["nv1"]
    seq = [("K", t) for t in range(8)] + [("V", t) for t in range(NV1)] + [("K", t) for t in range(8, 16)] + [("V", t) for t in range(NV1, 16)]
    ops = {}
    qk_done, pv_done = set(), set()
    D = o["D"]
    def Dat(n): return D if n < o["nsw"] else o["D2"]
    def land_n(m):
        for n in range(32):
            if n - Dat(n) >= m: return n
        return 32
    def vslot(t): return V_V + 16 * (t if t < 7 else (t - 7) % 7)
    def sslot(t): return V_S + 4 * (t if t < 8 else (t - 8 if t < 8 + NV1 else t - NV1))
    def issue(n):
        k, t = seq[n]
        if k == "K" and t >= 8: assert (t - 8) in qk_done, (n, t)
        if k == "V" and t >= 7: assert (t - 7) in pv_done, (n, t)
        if n >= Dat(n):
            A.wait_vm(ops[seq[n - Dat(n)]])
        if k == "K":
            A(f"s_add_u32 {sr(S_TMP+4)}, {sr(S_RING)}, {(t&7)*4096}")
            A(f"s_mov_b32 m0, {sr(S_TMP+4)}")
        if o["rot"]:
            A(f"s_add_u32 {sr(S_TMP+5)}, {sr(S_ROT)}, {t*16384}")
            A(f"s_and_b32 {sr(S_TMP+5)}, {sr(S_TMP+5)}, 0x3ffff")
            A(f"s_add_u32 {sr(S_TMP+5)}, {sr(S_TMP+5)}, {sr(S_KOFF)}")
        else:
            A(f"s_add_u32 {sr(S_TMP+5)}, {sr(S_KOFF)}, {t*16384}")
        if k == "K":
            for a in range(4):
                ops[(k, t)] = A.vmem(f"buffer_load_dwordx4 {vr(V_KD+a)}, {sr(SK,4)}, {sr(S_TMP+5)} offen offset:{a*1024} nt lds")
        else:
            base = vslot(t)
            for u in range(4):
                ops[(k, t)] = A.vmem(f"buffer_load_dwordx4 {vr(base+4*u,4)}, {vr(V_VO)}, {sr(SV,4)}, {sr(S_TMP+5)} offen offset:{u*256} nt")
    SC = hex(f2u(128 ** -0.5))
    def k_read(t):
        A.wait_vm(ops[("K", t)])
        for ks in range(4):
            A(f"ds_read_b128 {vr(V_KF+16*(t&1)+4*ks,4)}, {vr(V_KR+ks)} offset:{(t&7)*4096}")
    def k_mfma(t):
        s_ = sslot(t)
        if 8 <= t < 8 + NV1: assert (t - 8) in pv_done, t
        qk_done.add(t)
        for ks in range(4):
            c = "0" if ks == 0 else vr(s_, 4)
            A(f"v_mfma_f32_16x16x32_bf16 {vr(s_,4)}, {vr(V_KF+16*(t&1)+4*ks,4)}, {vr(V_Q+4*ks,4)}, {c}")
    def s_round(tiles):
        regs = [sslot(t) + r for t in tiles for r in range(4)]
        P = T
        A.nop(4)
        for ph in range(2):
            for i in range(0, len(regs), 2):
                A(f"v_cvt_pk_bf16_f32 {vr(P+i//2)}, {vr(regs[i])}, {vr(regs[i+1])}")
            for i in range(0, len(regs), 2):
                A(f"v_lshlrev_b32 {vr(regs[i])}, 16, {vr(P+i//2)}")
                A(f"v_and_b32 {vr(regs[i+1])}, 0xffff0000, {vr(P+i//2)}")
            if ph == 0:
                for r in regs:
                    A(f"v_mul_f32 {vr(r)}, {SC}, {vr(r)}")
    def qk_burst(tiles):
        k_read(tiles[0])
        for i, t in enumerate(tiles):
            if i + 1 < len(tiles):
                k_read(tiles[i + 1])
                A("s_waitcnt lgkmcnt(4)")
            else:
                A("s_waitcnt lgkmcnt(0)")
            k_mfma(t)
    pend = []
    def qk_one(t):
        k_read(t)
        if pend:
            s_round(list(pend)); pend.clear()
        A("s_waitcnt lgkmcnt(0)")
        k_mfma(t)
        pend.append(t)
    def softmax(tiles, first):
        regs = [sslot(t) + r for t in tiles for r in range(4)]
        P = T
        n = len(regs)
        ch = [regs[i::4] for i in range(4)]
        for i in range(4):
            c = ch[i]
            A(f"v_max3_f32 {vr(P+i)}, {vr(c[0])}, {vr(c[1])}, {vr(c[2])}")
        k = 3
        while k < len(ch[0]):
            for i in range(4):
                c = ch[i]
                if k + 1 < len(c):
                    A(f"v_max3_f32 {vr(P+i)}, {vr(P+i)}, {vr(c[k])}, {vr(c[k+1])}")
                else:
                    A(f"v_max_f32 {vr(P+i)}, {vr(P+i)}, {vr(c[k])}")
            k += 2
        A(f"v_max3_f32 {vr(P+4)}, {vr(P)}, {vr(P+1)}, {vr(P+2)}")
        A(f"v_max_f32 {vr(P+4)}, {vr(P+4)}, {vr(P+3)}")
        xreduce("v_max_f32", [P+4], [P])
        if not first:
            A(f"v_max_f32 {vr(P+4)}, {vr(P+4)}, {vr(V_MW)}")
            A(f"v_sub_f32 {vr(P+5)}, {vr(V_MW)}, {vr(P+4)}")
            A(f"v_mul_f32 {vr(P+5)}, {sr(S_C0)}, {vr(P+5)}")
            A(f"v_exp_f32 {vr(P+5)}, {vr(P+5)}")
        A(f"v_mov_b32 {vr(V_MW)}, {vr(P+4)}")
        A(f"v_mul_f32 {vr(P)}, {hex(f2u(-LOG2E))}, {vr(P+4)}")
        if not first:
            for h in range(4):
                A(f"v_readlane_b32 {sr(S_F+h)}, {vr(P+5)}, {h}")
        A(f"v_mov_b32 {vr(P+6)}, {sr(S_C0)}")
        for r in regs:
            A(f"v_fma_f32 {vr(r)}, {vr(r)}, {vr(P+6)}, {vr(P)}")
        for r in regs:
            A(f"v_exp_f32 {vr(r)}, {vr(r)}")
        for i in range(4):
            A(f"v_add_f32 {vr(P+1+i)}, {vr(ch[i][0])}, {vr(ch[i][1])}")
        for k in range(2, len(ch[0])):
            for i in range(4):
                A(f"v_add_f32 {vr(P+1+i)}, {vr(P+1+i)}, {vr(ch[i][k])}")
        A(f"v_add_f32 {vr(P+1)}, {vr(P+1)}, {vr(P+2)}")
        A(f"v_add_f32 {vr(P+3)}, {vr(P+3)}, {vr(P+4)}")
        A(f"v_add_f32 {vr(P+1)}, {vr(P+1)}, {vr(P+3)}")
        xreduce("v_add_f32", [P+1], [P+2])
        if first:
            A(f"v_mov_b32 {vr(V_LS)}, {vr(P+1)}")
        else:
            A(f"v_fma_f32 {vr(P+3)}, {vr(V_LS)}, {vr(P+5)}, {vr(P+1)}")
            A(f"v_mov_b32 {vr(P+2)}, {vr(V_MW)}")
            A(f"s_lshl_b32 {sr(S_TMP+2)}, {sr(S_SW)}, 5")
            A(f"s_add_u32 {sr(S_TMP+2)}, {sr(S_TMP+2)}, {L_STAT}")
            A(f"v_lshl_add_u32 {vr(P+4)}, v0, 3, {sr(S_TMP+2)}")
            A("s_mov_b64 exec, 15")
            A(f"ds_write_b64 {vr(P+4)}, {vr(P+2,2)}")
            A("s_mov_b64 exec, -1")
            lds_inc(F_ST, P+6)
            for r in range(8):
                A(f"v_mul_f32 {vr(V_ACC+r)}, {sr(S_F+(r&3))}, {vr(V_ACC+r)}")
        for r in regs:
            A(f"v_cvt_pk_bf16_f32 {vr(r)}, {vr(r)}, {vr(r)}")
    flip = [0]
    def pv(t):
        base = vslot(t)
        s_ = sslot(t)
        pv_done.add(t)
        A.wait_vm(ops[("V", t)])
        for u in range(4):
            X = V_XA if flip[0] == 0 else V_XB
            flip[0] ^= 1
            A(f"v_and_b32 {vr(X+2)}, {vr(s_+u)}, {vr(V_M0)}")
            A(f"v_and_b32 {vr(X+3)}, {vr(s_+u)}, {vr(V_M1)}")
            A.nop(2)
            A(f"v_mfma_f32_16x16x32_bf16 {vr(V_ACC,4)}, {vr(X+2,4)}, {vr(base+4*u,4)}, {vr(V_ACC,4)}")
            A(f"v_mfma_f32_16x16x32_bf16 {vr(V_ACC+4,4)}, {vr(X,4)}, {vr(base+4*u,4)}, {vr(V_ACC+4,4)}")
    def q_get():
        A(f"v_and_b32 {vr(T+2)}, 3, {vr(V_J)}")
        A(f"v_lshlrev_b32 {vr(T+2)}, 8, {vr(T+2)}")
        A(f"v_lshl_add_u32 {vr(T+2)}, {vr(V_G)}, 4, {vr(T+2)}")
        A(f"v_add_u32 {vr(T+2)}, {L_Q}, {vr(T+2)}")
        stamp("q_wait")
        lds_wait(F_Q2, 1, T)
        for ks in range(4):
            A(f"ds_read_b128 {vr(V_Q+4*ks,4)}, {vr(T+2)} offset:{64*ks}")
        stamp("q_got")
    qp = o["qpos"]
    quanta = {n: [] for n in range(32)}
    quanta[qp] += [q_get, lambda: qk_burst([0, 1, 2, 3])]
    quanta[qp+1] += [lambda: qk_burst([4, 5, 6, 7]), lambda: s_round([0, 1, 2, 3])]
    K8 = 8 + NV1
    quanta[qp+2] += [lambda: s_round([4, 5, 6, 7]), lambda: softmax(list(range(NV1)), True), lambda: stamp("sm1")]
    assert qp < K8
    for t in range(NV1):
        quanta[max(qp + 3 + t // 2, land_n(8 + t))] += [lambda t=t: pv(t)]
    quanta[32] = []
    for j in range(8):
        quanta[max(land_n(K8 + j), qp + 7)] += [lambda j=j: qk_one(8 + j)]
    nq = max(land_n(K8 + 7), qp + 7)
    def fin_round():
        A.nop(8)
        s_round(list(pend)); pend.clear()
    quanta[nq] += [fin_round, lambda: softmax(list(range(NV1, 16)), False), lambda: stamp("sm2")]
    tail = []
    for t in range(NV1, 16):
        n = max(nq + 1, land_n(16 + t))
        if n <= 31: quanta[n] += [lambda t=t: pv(t)]
        else: tail.append(t)
    assert not quanta[32]
    for n in range(32):
        issue(n)
        if o["kfirst"] and n == o["kfirst"] - 1: A("s_barrier")
        if n == D - 1:
            A(f"v_lshrrev_b32 {vr(T)}, 2, {vr(V_J)}")
            A(f"v_and_b32 {vr(T+1)}, 1, {vr(T)}")
            A(f"v_lshlrev_b32 {vr(T+1)}, 4, {vr(T+1)}")
            A(f"v_mov_b32 {vr(T+2)}, 0xffff")
            A(f"v_lshlrev_b32 {vr(T+2)}, {vr(T+1)}, {vr(T+2)}")
            A(f"v_cmp_gt_u32 vcc, 2, {vr(T)}")
            A.nop(2)
            A(f"v_cndmask_b32 {vr(V_M0)}, 0, {vr(T+2)}, vcc")
            A(f"v_cndmask_b32 {vr(V_M1)}, {vr(T+2)}, 0, vcc")
            for r in (V_XA, V_XA+1, V_XA+4, V_XA+5, V_XB, V_XB+1, V_XB+4, V_XB+5):
                A(f"v_mov_b32 {vr(r)}, 0")
            for r in range(8):
                A(f"v_mov_b32 {vr(V_ACC+r)}, 0")
            A(f"s_mov_b32 {sr(S_C0)}, {hex(f2u(LOG2E))}")
            stamp("ln_done")
        if n in (3, 5, 7, 9, 13, 17, 21, 25, 31): stamp(f"iss{n}")
        for f in quanta[n]: f()
    A(f"s_lshl_b32 {sr(S_TMP+2)}, {sr(S_SW)}, 4")
    A(f"s_add_u32 {sr(S_TMP+2)}, {sr(S_TMP+2)}, {L_FAC}")
    A(f"v_mov_b32 {vr(T+2)}, {sr(S_TMP+2)}")
    A(f"v_lshlrev_b32 {vr(T+3)}, 3, v0")
    A(f"v_add_u32 {vr(T+3)}, {sr(S_RING)}, {vr(T+3)}")
    for t in tail[:-1]: pv(t)
    lds_wait(F_FAC, 1, T, sleep=0)
    FAC = T + 4
    A(f"ds_read_b128 {vr(FAC,4)}, {vr(T+2)}")
    stamp("fac_got")
    pv(tail[-1])
    stamp("pv_done")
    A("s_waitcnt lgkmcnt(0)")
    A.nop(10)
    PO = V_KF
    for r in range(4):
        for hf in range(2):
            A(f"v_mul_f32 {vr(PO+2*r+hf)}, {vr(FAC+r)}, {vr(V_ACC+4*hf+r)}")
    for r in range(4):
        A(f"ds_write_b64 {vr(T+3)}, {vr(PO+2*r,2)} offset:{512*r}")
    A("s_waitcnt lgkmcnt(0)")
    A("s_barrier")

    A.label("L_fin")
    if o["debug"]:
        A(f"s_memrealtime s[100:101]")
        A("s_waitcnt lgkmcnt(0)")
        A(f"v_writelane_b32 v{V_STAMP}, s100, 31")
        A(f"s_lshl_b32 {sr(S_TMP+2)}, s2, 3")
        A(f"s_add_u32 {sr(S_TMP+2)}, {sr(S_TMP+2)}, {sr(S_WAVE)}")
        A(f"s_lshl_b32 {sr(S_TMP+2)}, {sr(S_TMP+2)}, 8")
        A(f"s_add_u32 {sr(S_TMP+2)}, {sr(S_TMP+2)}, {WS_DBG}")
        A(f"v_lshlrev_b32 v254, 2, v0")
        A(f"buffer_store_dword v{V_STAMP}, v254, {sr(SWS,4)}, {sr(S_TMP+2)} offen")
    A.label("L_end")
    A("s_endpgm")

    A.L.append('.section .rodata,"a"')
    A.L.append(".p2align 6")
    A.L.append(f".amdhsa_kernel {NAME}_kernel")
    A.L.append("  .amdhsa_next_free_vgpr 256")
    A.L.append("  .amdhsa_next_free_sgpr 102")
    A.L.append("  .amdhsa_accum_offset 256")
    A.L.append("  .amdhsa_group_segment_fixed_size 0")
    A.L.append("  .amdhsa_kernarg_size 104")
    A.L.append("  .amdhsa_user_sgpr_count 2")
    A.L.append("  .amdhsa_user_sgpr_kernarg_segment_ptr 1")
    A.L.append("  .amdhsa_system_sgpr_workgroup_id_x 1")
    A.L.append("  .amdhsa_float_denorm_mode_32 3")
    A.L.append(".end_amdhsa_kernel")
    if opts is not None: opts["stamps"] = stamps
    return "\n".join(A.L) + "\n"

if __name__ == "__main__":
    out = sys.argv[1] if len(sys.argv) > 1 else "k3.s"
    opts = {}
    for a in sys.argv[2:]:
        k, v = a.split("="); opts[k] = eval(v)
    open(out, "w").write(gen(opts))
    if opts.get("debug"):
        open(out + ".stamps", "w").write(" ".join(opts["stamps"]["a"]) + "\n" + " ".join(opts["stamps"]["s"]) + "\n")
    print("wrote", out)
```

```python
import sys, struct, math

NAME = "sequential_preLN__gqa_block_cached__mixer_token_mlp__decode"

def f2u(x):
    return struct.unpack("<I", struct.pack("<f", x))[0]

WS_QM = 0x00000
WS_ST = 0x20000
WS_CNT = 0x28000
WS_R1 = 0x40000
WS_GT = 0x80000
WS_R2 = 0x200000
WS_DBG = 0x100000
WS_SIZE = 0x400000

RING = 32768
L_STG = 4 * RING
L_XN = L_STG + 16384
L_GT = L_STG
L_QRED = L_XN + 8192
L_Q = L_QRED + 2048
L_STAT = L_Q + 1024
L_FAC = L_STAT + 128
L_FLAG = L_FAC + 64
L_ORED = L_FLAG + 64
L_H = L_ORED + 2048
LDS_SIZE = L_H + 2048
assert LDS_SIZE <= 163840, LDS_SIZE
F_XN, F_Q1, F_Q2, F_ST, F_FAC, F_NONCE, F_WO, F_WOL = [L_FLAG + 4 * i for i in range(8)]

E0 = 108
NEXP = 24
GT_HALF = NEXP * 128
SPIN_LIMIT = 200000

class Asm:
    def __init__(self):
        self.L = []
        self.vm = 0
        self.lab = 0
    def __call__(self, s):
        self.L.append("  " + s)
    def label(self, n):
        self.L.append(n + ":")
    def newlabel(self, p="L"):
        self.lab += 1
        return f"{p}_{self.lab}"
    def vmem(self, s):
        self(s); self.vm += 1
        return self.vm
    def wait_vm(self, idx, extra=0):
        n = self.vm - idx + extra
        assert 0 <= n <= 63, n
        self(f"s_waitcnt vmcnt({n})")
    def nop(self, n):
        while n > 0:
            k = min(n, 16)
            self(f"s_nop {k-1}")
            n -= k
    def comment(self, s):
        self.L.append("  ; " + s)

def vr(a, n=1):
    return f"v{a}" if n == 1 else f"v[{a}:{a+n-1}]"
def sr(a, n=1):
    return f"s{a}" if n == 1 else f"s[{a}:{a+n-1}]"

DPPM = "row_mask:0xf bank_mask:0xf"
LOG2E = math.log2(math.e)

def gen(opts=None):
    o = dict(debug=False, D=3, qpos=12, wnt=True, pst=2, pg=0, skip='', rot=0, wolate=1, D2=3, nsw=14, nv1=7, kfirst=0, r1sleep=0, nb1=1, nb2=1, r1split=1, dyn=1, S=12, cap=8, remap=1)
    if opts: o.update(opts)
    A = Asm()
    stamps = {"s": [], "a": []}
    cur = ["c"]
    V_STAMP = 255
    def stamp(name):
        if not o["debug"]: return
        lst = stamps[cur[0]]
        if name in lst: k = lst.index(name)
        else:
            k = len(lst); lst.append(name)
        assert k < 30
        A(f"s_memrealtime s[100:101]")
        A("s_waitcnt lgkmcnt(0)")
        A(f"v_writelane_b32 v{V_STAMP}, s100, {k}")
    S_WAVE = 3
    SK, SV, SWQ, SWO, SWS, SX, SDBG, SOUT, SW1, SB1, SW2 = 8, 12, 16, 20, 24, 28, 32, 36, 40, 44, 48
    S_HKV, S_IDX, S_B, S_S, S_KOFF, S_RING, S_NONCE, S_B2 = 52, 53, 54, 55, 56, 57, 58, 59
    S_RT = 60
    S_SPIN = 63
    S_P = 64
    S_TMP = 90
    S_F = 64
    S_C0 = 68
    V_J, V_G, V_L16 = 12, 13, 1

    A.L.append(f"; @launch grid=(256,1,1) block=(512,1,1) lds={LDS_SIZE}")
    A.L.append('.amdgcn_target "amdgcn-amd-amdhsa--gfx950"')
    A.L.append(".text")
    A.L.append(f".globl {NAME}_kernel")
    A.L.append(".p2align 8")
    A.L.append(f".type {NAME}_kernel,@function")
    A.label(f"{NAME}_kernel")
    A("s_cmp_ge_u32 s2, 256")
    A("s_cbranch_scc1 L_end")
    A(f"s_load_dwordx16 {sr(S_P,16)}, s[0:1], 0")
    A(f"s_load_dwordx8 {sr(S_P+16,8)}, s[0:1], 64")
    A(f"s_load_dwordx2 {sr(S_P+24,2)}, s[0:1], 96")
    A(f"s_memrealtime {sr(S_RT,2)}")
    A("v_lshrrev_b32 v1, 6, v0")
    A("v_and_b32 v0, 63, v0")
    if o["debug"]: A(f"v_mov_b32 v{V_STAMP}, 0")
    A(f"v_readfirstlane_b32 {sr(S_WAVE)}, v1")
    A(f"v_and_b32 {vr(V_J)}, 15, v0")
    A(f"v_lshrrev_b32 {vr(V_G)}, 4, v0")
    A("s_mov_b32 s4, s2")
    if o["remap"]:
        t0, t1, t2, t3 = S_TMP, S_TMP+1, S_TMP+2, S_TMP+3
        A(f"s_lshr_b32 {sr(t0)}, s2, 1")
        A(f"s_xor_b32 {sr(t1)}, {sr(t0)}, s2")
        A(f"s_and_b32 {sr(t1)}, {sr(t1)}, 1")
        A(f"s_and_b32 {sr(t0)}, {sr(t0)}, 3")
        A(f"s_lshr_b32 {sr(t2)}, s2, 3")
        A(f"s_add_u32 {sr(t0)}, {sr(t0)}, {sr(t2)}")
        A(f"s_and_b32 {sr(t0)}, {sr(t0)}, 3")
        A(f"s_lshl_b32 {sr(t2)}, {sr(t2)}, 1")
        A(f"s_or_b32 {sr(t2)}, {sr(t2)}, {sr(t1)}")
        A(f"s_lshr_b32 {sr(t3)}, {sr(t2)}, 3")
        A(f"s_lshl_b32 {sr(t3)}, {sr(t3)}, 2")
        A(f"s_or_b32 {sr(t3)}, {sr(t3)}, {sr(t0)}")
        A(f"s_lshl_b32 {sr(t3)}, {sr(t3)}, 3")
        A(f"s_and_b32 {sr(t2)}, {sr(t2)}, 7")
        A(f"s_or_b32 s2, {sr(t3)}, {sr(t2)}")
    A(f"s_and_b32 {sr(S_HKV)}, s2, 7")
    A(f"s_lshr_b32 {sr(S_IDX)}, s2, 3")
    A(f"s_lshr_b32 {sr(S_B)}, {sr(S_IDX)}, 2")
    A(f"s_and_b32 {sr(S_S)}, {sr(S_IDX)}, 3")
    def srd(dst, p, nbytes):
        A(f"s_mov_b32 {sr(dst)}, {sr(S_P+2*p)}")
        A(f"s_and_b32 {sr(dst+1)}, {sr(S_P+2*p+1)}, 0xffff")
        A(f"s_mov_b32 {sr(dst+2)}, {nbytes}")
        A(f"s_mov_b32 {sr(dst+3)}, 0x20000")

    def xreduce(op, regs, tmps, steps=("v_permlane16_swap_b32", "v_permlane32_swap_b32")):
        for pl in steps:
            for r, t in zip(regs, tmps):
                A(f"v_mov_b32 {vr(t)}, {vr(r)}")
            A.nop(2)
            for r, t in zip(regs, tmps):
                A(f"{pl} {vr(r)}, {vr(t)}")
            A.nop(1)
            for r, t in zip(regs, tmps):
                A(f"{op} {vr(r)}, {vr(r)}, {vr(t)}")
    def allreduce(op, regs, tmps):
        for dpp in ("quad_perm:[1,0,3,2]", "quad_perm:[2,3,0,1]", "row_half_mirror", "row_mirror"):
            A.nop(max(0, 2 - (len(regs) - 1)))
            for r in regs:
                A(f"{op}_dpp {vr(r)}, {vr(r)}, {vr(r)} {dpp} {DPPM}")
        xreduce(op, regs, tmps)
    def rne1(dst, src):
        A(f"v_cvt_pk_bf16_f32 {vr(dst)}, {vr(src)}, {vr(src)}")
        A(f"v_lshlrev_b32 {vr(dst)}, 16, {vr(dst)}")
    def rne2(a, b, t):
        A(f"v_cvt_pk_bf16_f32 {vr(t)}, {vr(a)}, {vr(b)}")
        A(f"v_lshlrev_b32 {vr(a)}, 16, {vr(t)}")
        A(f"v_and_b32 {vr(b)}, 0xffff0000, {vr(t)}")
    def unpack(dst, src, n):
        for i in range(n):
            A(f"v_lshlrev_b32 {vr(dst+2*i)}, 16, {vr(src+i)}")
            A(f"v_and_b32 {vr(dst+2*i+1)}, 0xffff0000, {vr(src+i)}")
    def layernorm(x, out, t):
        A(f"v_add_f32 {vr(t)}, {vr(x)}, {vr(x+1)}")
        A(f"v_add_f32 {vr(t+1)}, {vr(x+2)}, {vr(x+3)}")
        A(f"v_add_f32 {vr(t+2)}, {vr(x+4)}, {vr(x+5)}")
        A(f"v_add_f32 {vr(t+3)}, {vr(x+6)}, {vr(x+7)}")
        A(f"v_add_f32 {vr(t)}, {vr(t)}, {vr(t+1)}")
        A(f"v_add_f32 {vr(t+2)}, {vr(t+2)}, {vr(t+3)}")
        A(f"v_add_f32 {vr(t)}, {vr(t)}, {vr(t+2)}")
        allreduce("v_add_f32", [t], [t+1])
        A(f"v_mul_f32 {vr(t)}, {hex(f2u(1/512))}, {vr(t)}")
        for i in range(8):
            A(f"v_sub_f32 {vr(t+4+i)}, {vr(x+i)}, {vr(t)}")
        A(f"v_mul_f32 {vr(t+1)}, {vr(t+4)}, {vr(t+4)}")
        A(f"v_mul_f32 {vr(t+2)}, {vr(t+5)}, {vr(t+5)}")
        for i in range(2, 8, 2):
            A(f"v_fmac_f32 {vr(t+1)}, {vr(t+4+i)}, {vr(t+4+i)}")
            A(f"v_fmac_f32 {vr(t+2)}, {vr(t+5+i)}, {vr(t+5+i)}")
        A(f"v_add_f32 {vr(t+1)}, {vr(t+1)}, {vr(t+2)}")
        allreduce("v_add_f32", [t+1], [t+2])
        A(f"v_mul_f32 {vr(t+1)}, {hex(f2u(1/512))}, {vr(t+1)}")
        rne2(t, t+1, t+2)
        A(f"v_add_f32 {vr(t+1)}, {hex(f2u(1e-5))}, {vr(t+1)}")
        rne1(t+1, t+1)
        A(f"v_sqrt_f32 {vr(t+1)}, {vr(t+1)}")
        A.nop(1)
        rne1(t+1, t+1)
        A(f"v_rcp_f32 {vr(t+2)}, {vr(t+1)}")
        for i in range(8):
            A(f"v_sub_f32 {vr(t+4+i)}, {vr(x+i)}, {vr(t)}")
        for i in range(0, 8, 2):
            rne2(t+4+i, t+5+i, t+3)
        for i in range(8):
            A(f"v_mul_f32 {vr(out+i)}, {vr(t+4+i)}, {vr(t+2)}")
        for i in range(8):
            A(f"v_fma_f32 {vr(t+4+i)}, -{vr(out+i)}, {vr(t+1)}, {vr(t+4+i)}")
        for i in range(8):
            A(f"v_fmac_f32 {vr(out+i)}, {vr(t+4+i)}, {vr(t+2)}")
    def lds_inc(flag, t):
        A(f"v_mov_b32 {vr(t)}, {flag}")
        A(f"v_mov_b32 {vr(t+1)}, 1")
        A("s_waitcnt lgkmcnt(0)")
        A("s_mov_b64 exec, 1")
        A(f"ds_add_u32 {vr(t)}, {vr(t+1)}")
        A("s_mov_b64 exec, -1")
    def lds_wait(flag, target, t, sleep=1):
        lp, dn = A.newlabel("Lw"), A.newlabel("Lwd")
        A(f"v_mov_b32 {vr(t)}, {flag}")
        A(f"s_mov_b32 {sr(S_SPIN)}, {SPIN_LIMIT*4}")
        A.label(lp)
        A(f"ds_read_b32 {vr(t+1)}, {vr(t)}")
        A("s_waitcnt lgkmcnt(0)")
        A(f"v_readfirstlane_b32 {sr(S_TMP+9)}, {vr(t+1)}")
        A.nop(1)
        A(f"s_cmp_ge_u32 {sr(S_TMP+9)}, {target}")
        A(f"s_cbranch_scc1 {dn}")
        if sleep: A(f"s_sleep {sleep}")
        A(f"s_sub_u32 {sr(S_SPIN)}, {sr(S_SPIN)}, 1")
        A(f"s_cbranch_scc0 {lp}")
        A.label(dn)
    def poll_pipe(nsets, nld, issue_fn, check_fn, done_fn):
        lp, fin = A.newlabel("Lpp"), A.newlabel("Lppf")
        dn = [A.newlabel("Lppd") for _ in range(nsets)]
        A(f"s_mov_b32 {sr(S_SPIN)}, {SPIN_LIMIT}")
        for k in range(nsets): issue_fn(k)
        A.label(lp)
        for k in range(nsets):
            A(f"s_waitcnt vmcnt({nld*(nsets-1)})")
            check_fn(k)
            A(f"s_cbranch_vccz {dn[k]}")
            issue_fn(k)
        A(f"s_sub_u32 {sr(S_SPIN)}, {sr(S_SPIN)}, 1")
        A(f"s_cbranch_scc0 {lp}")
        A("s_waitcnt vmcnt(0)")
        for k in range(nsets):
            A.label(dn[k])
            done_fn(k)
            if k + 1 < nsets: A(f"s_branch {fin}")
        A.label(fin)
    def ln_row(op_x, VX, XF, LT, row):
        A.wait_vm(op_x)
        unpack(XF, VX, 4)
        layernorm(XF, XF, LT)
        for i in range(4):
            A(f"v_cvt_pk_bf16_f32 {vr(LT+i)}, {vr(XF+2*i)}, {vr(XF+2*i+1)}")
        A(f"s_lshl_b32 {sr(S_TMP+2)}, {sr(S_WAVE)}, 11")
        A(f"s_add_u32 {sr(S_TMP+2)}, {sr(S_TMP+2)}, {L_XN + 1024*row}")
        A(f"v_lshl_add_u32 {vr(LT+4)}, v0, 4, {sr(S_TMP+2)}")
        A(f"ds_write_b128 {vr(LT+4)}, {vr(LT,4)}")

    A(f"v_lshlrev_b32 {vr(V_L16)}, 4, v0")
    A(f"s_lshl_b32 {sr(S_TMP+2)}, {sr(S_WAVE)}, 11")
    A(f"s_cmp_ge_u32 {sr(S_WAVE)}, 4")
    A("s_cbranch_scc1 L_stream")

    cur[0] = "a"
    A("s_setprio 3")
    T = 208
    V_X = T
    V_SEN = T + 4
    for r in range(4):
        A(f"v_mov_b32 {vr(V_SEN+r)}, -1")
    A(f"v_lshrrev_b32 {vr(T+8)}, 1, v0")
    A(f"v_and_b32 {vr(T+9)}, 1, v0")
    A(f"v_lshlrev_b32 {vr(T+9)}, 4, {vr(T+9)}")
    A(f"v_lshl_add_u32 {vr(T+10)}, {vr(T+8)}, 13, {vr(T+9)}")
    A(f"s_lshl_b32 {sr(S_TMP+3)}, {sr(S_WAVE)}, 20")
    A(f"s_lshl_b32 {sr(S_TMP+4)}, {sr(S_HKV)}, 10")
    A(f"s_add_u32 {sr(S_TMP+3)}, {sr(S_TMP+3)}, {sr(S_TMP+4)}")
    def iq_shl(dst, sh):
        if o["remap"]:
            A(f"s_lshl_b32 {sr(dst)}, {sr(S_S)}, 3")
            A(f"s_or_b32 {sr(dst)}, {sr(dst)}, {sr(S_B)}")
            A(f"s_lshl_b32 {sr(dst)}, {sr(dst)}, {sh}")
        else:
            A(f"s_lshl_b32 {sr(dst)}, {sr(S_IDX)}, {sh}")
    iq_shl(S_TMP+4, 5)
    A(f"s_add_u32 {sr(S_TMP+3)}, {sr(S_TMP+3)}, {sr(S_TMP+4)}")
    A(f"s_lshl_b32 {sr(S_RING)}, {sr(S_WAVE)}, 12")
    A(f"s_add_u32 {sr(S_RING)}, {sr(S_RING)}, {L_STG}")
    A(f"s_mov_b32 m0, {sr(S_RING)}")
    A("s_waitcnt lgkmcnt(0)")
    srd(SX, 0, 8192)
    op_x = A.vmem(f"buffer_load_dwordx4 {vr(V_X,4)}, {vr(V_L16)}, {sr(SX,4)}, {sr(S_TMP+2)} offen")
    op_x2 = A.vmem(f"buffer_load_dwordx4 {vr(T+24,4)}, {vr(V_L16)}, {sr(SX,4)}, {sr(S_TMP+2)} offen offset:1024")
    srd(SWQ, 3, 4 << 20)
    WNT = " nt" if o["wnt"] else ""
    for u in range(4):
        if u:
            A(f"s_add_u32 {sr(S_TMP+4)}, {sr(S_RING)}, {u*1024}")
            A(f"s_mov_b32 m0, {sr(S_TMP+4)}")
            A(f"s_add_u32 {sr(S_TMP+3)}, {sr(S_TMP+3)}, {32*8192}")
        if 'q' in o['skip']: continue
        op_wq = A.vmem(f"buffer_load_dwordx4 {vr(T+10)}, {sr(SWQ,4)}, {sr(S_TMP+3)} offen{WNT} lds")
    srd(SDBG, 11, 256)
    srd(SWS, 12, WS_SIZE)
    V_NC = T + 12
    A(f"s_cmp_eq_u32 {sr(S_WAVE)}, 0")
    A("s_cbranch_scc0 L_w1")
    A(f"s_or_b32 {sr(S_RT)}, {sr(S_RT)}, 1")
    A(f"v_mov_b32 {vr(V_NC)}, {sr(S_RT)}")
    A(f"v_mov_b32 {vr(V_NC+1)}, 0")
    A(f"s_lshl_b32 {sr(S_TMP+2)}, {sr(S_HKV)}, 5")
    A(f"v_mov_b32 {vr(T+11)}, {sr(S_TMP+2)}")
    A("s_mov_b64 exec, 1")
    A(f"buffer_atomic_cmpswap {vr(V_NC,2)}, {vr(T+11)}, {sr(SDBG,4)}, 0 offen sc0")
    A(f"buffer_load_dword {vr(T+18)}, {vr(T+11)}, {sr(SX,4)}, 0 offen")
    A("s_mov_b64 exec, 0xffff")
    A(f"v_lshlrev_b32 {vr(T+14)}, 2, v0")
    A(f"v_add_u32 {vr(T+14)}, {L_FLAG}, {vr(T+14)}")
    A(f"v_mov_b32 {vr(T+15)}, 0")
    A(f"ds_write_b32 {vr(T+14)}, {vr(T+15)}")
    A("s_mov_b64 exec, -1")
    A("s_waitcnt lgkmcnt(0)")
    A("s_branch L_wdone")
    A.label("L_w1")
    A(f"s_cmp_eq_u32 {sr(S_WAVE)}, 1")
    A("s_cbranch_scc0 L_w2")
    A(f"s_lshl_b32 {sr(S_TMP+2)}, {sr(S_HKV)}, 5")
    A(f"s_add_u32 {sr(S_TMP+2)}, {sr(S_TMP+2)}, {sr(S_IDX)}")
    A(f"s_lshl_b32 {sr(S_TMP+2)}, {sr(S_TMP+2)}, 10")
    A(f"s_add_u32 {sr(S_TMP+2)}, {sr(S_TMP+2)}, {WS_R1}")
    A("s_mov_b32 exec_hi, 0")
    A(f"buffer_store_dwordx4 {vr(V_SEN,4)}, {vr(V_L16)}, {sr(SWS,4)}, {sr(S_TMP+2)} offen sc1")
    A("s_mov_b64 exec, -1")
    A("s_mov_b32 exec_lo, 0")
    A(f"buffer_store_dwordx4 {vr(V_SEN,4)}, {vr(V_L16)}, {sr(SWS,4)}, {sr(S_TMP+2)} offen sc1")
    A("s_mov_b64 exec, -1")
    A("s_branch L_wdone")
    A.label("L_w2")
    A(f"s_cmp_eq_u32 {sr(S_WAVE)}, 2")
    A("s_cbranch_scc0 L_w3")
    A(f"v_lshlrev_b32 {vr(T+11)}, 16, {vr(V_G)}")
    A(f"v_lshl_add_u32 {vr(T+11)}, {vr(V_J)}, 4, {vr(T+11)}")
    A(f"s_lshl_b32 {sr(S_TMP+2)}, {sr(S_HKV)}, 13")
    A(f"s_lshl_b32 {sr(S_TMP+4)}, {sr(S_S)}, 11")
    A(f"s_add_u32 {sr(S_TMP+2)}, {sr(S_TMP+2)}, {sr(S_TMP+4)}")
    A(f"s_lshl_b32 {sr(S_TMP+4)}, {sr(S_B)}, 8")
    A(f"s_add_u32 {sr(S_TMP+2)}, {sr(S_TMP+2)}, {sr(S_TMP+4)}")
    A(f"s_add_u32 {sr(S_TMP+2)}, {sr(S_TMP+2)}, {WS_R2}")
    A(f"s_add_u32 {sr(S_TMP+4)}, {sr(S_TMP+2)}, {4*65536}")
    A(f"buffer_store_dwordx4 {vr(V_SEN,4)}, {vr(T+11)}, {sr(SWS,4)}, {sr(S_TMP+2)} offen sc1")
    A(f"buffer_store_dwordx4 {vr(V_SEN,4)}, {vr(T+11)}, {sr(SWS,4)}, {sr(S_TMP+4)} offen sc1")
    A("s_branch L_wdone")
    A.label("L_w3")
    A(f"s_lshl_b32 {sr(S_TMP+2)}, {sr(S_HKV)}, 5")
    A(f"s_add_u32 {sr(S_TMP+2)}, {sr(S_TMP+2)}, {sr(S_IDX)}")
    A(f"s_lshl_b32 {sr(S_TMP+4)}, {sr(S_TMP+2)}, 7")
    A(f"s_add_u32 {sr(S_TMP+4)}, {sr(S_TMP+4)}, {WS_CNT}")
    A(f"s_lshl_b32 {sr(S_TMP+2)}, {sr(S_TMP+2)}, 5")
    A(f"s_add_u32 {sr(S_TMP+2)}, {sr(S_TMP+2)}, {WS_ST}")
    A(f"v_mov_b32 {vr(T+11)}, 0")
    A("s_mov_b64 exec, 3")
    A(f"buffer_store_dwordx4 {vr(V_SEN,4)}, {vr(V_L16)}, {sr(SWS,4)}, {sr(S_TMP+2)} offen sc1")
    A("s_mov_b64 exec, 1")
    A(f"buffer_atomic_swap {vr(T+11)}, off, {sr(SWS,4)}, {sr(S_TMP+4)} sc0")
    A("s_mov_b64 exec, -1")
    A.label("L_wdone")
    A.vm += 2
    A("s_barrier")
    stamp("start")
    if 'A' in o['skip']:
        lds_inc(F_Q2, T+20)
        lds_inc(F_FAC, T+20)
        A("s_barrier")
        A("s_branch L_fin")
    srd(SWO, 4, 4 << 20)
    srd(SW1, 6, 3584)
    srd(SB1, 7, 3584)
    srd(SW2, 8, 3584)
    srd(SOUT, 10, 8192)
    A(f"s_load_dword {sr(S_B2)}, {sr(S_P+18,2)}, 0")
    XF = 176; LT = 184
    ln_row(op_x, V_X, XF, LT, 0)
    ln_row(op_x2, T+24, XF, LT, 1)
    lds_inc(F_XN, LT+5)
    stamp("ln_done")
    V_TRA = 2
    A(f"v_lshlrev_b32 {vr(V_TRA)}, 8, {vr(V_G)}")
    A(f"v_lshl_add_u32 {vr(V_TRA)}, {vr(V_J)}, 3, {vr(V_TRA)}")
    A(f"v_add_u32 {vr(V_TRA)}, {sr(S_RING)}, {vr(V_TRA)}")
    A(f"v_and_b32 {vr(LT)}, 7, {vr(V_J)}")
    A(f"v_lshlrev_b32 {vr(LT)}, 10, {vr(LT)}")
    A(f"v_lshl_add_u32 {vr(LT)}, {vr(V_G)}, 4, {vr(LT)}")
    A(f"s_lshl_b32 {sr(S_TMP+2)}, {sr(S_WAVE)}, 8")
    A(f"s_add_u32 {sr(S_TMP+2)}, {sr(S_TMP+2)}, {L_XN}")
    A(f"v_add_u32 {vr(LT)}, {sr(S_TMP+2)}, {vr(LT)}")
    A(f"v_lshrrev_b32 {vr(T+16)}, 3, v0")
    A(f"v_and_b32 {vr(T+16)}, 1, {vr(T+16)}")
    A(f"v_lshlrev_b32 {vr(T+17)}, 13, {vr(V_G)}")
    A(f"v_lshl_add_u32 {vr(T+17)}, {vr(T+16)}, 12, {vr(T+17)}")
    A(f"v_and_b32 {vr(T+16)}, 7, v0")
    A(f"v_lshl_add_u32 {vr(T+17)}, {vr(T+16)}, 4, {vr(T+17)}")
    A("s_waitcnt vmcnt(2)")
    stamp("wq_landed")
    V_WQ = 144
    for u in range(4):
        for h in range(2):
            A(f"ds_read_b64_tr_b16 {vr(V_WQ+4*u+2*h,2)}, {vr(V_TRA)} offset:{u*1024+h*128}")
    lds_wait(F_XN, 4, LT+8, sleep=0)
    V_XA_ = 16
    for u in range(4):
        A(f"ds_read_b128 {vr(V_XA_+4*u,4)}, {vr(LT)} offset:{64*u}")
    V_QD = LT + 12
    A(f"s_lshl_b32 {sr(S_TMP+2)}, {sr(S_WAVE)}, 9")
    A(f"s_add_u32 {sr(S_TMP+2)}, {sr(S_TMP+2)}, {L_QRED}")
    A(f"v_add_u32 {vr(LT+3)}, {sr(S_TMP+2)}, {vr(V_L16)}")
    A("s_waitcnt lgkmcnt(0)")
    for u in range(4):
        c = "0" if u == 0 else vr(V_QD, 4)
        A(f"v_mfma_f32_16x16x32_bf16 {vr(V_QD,4)}, {vr(V_XA_+4*u,4)}, {vr(V_WQ+4*u,4)}, {c}")
    A(f"s_lshl_b32 {sr(S_TMP+3)}, {sr(S_HKV)}, 9")
    A(f"s_lshl_b32 {sr(S_TMP+4)}, {sr(S_S)}, 7")
    A(f"s_add_u32 {sr(S_TMP+3)}, {sr(S_TMP+3)}, {sr(S_TMP+4)}")
    A(f"s_add_u32 {sr(S_TMP+3)}, {sr(S_TMP+3)}, {sr(S_WAVE)}")
    A(f"s_lshl_b32 {sr(S_TMP+3)}, {sr(S_TMP+3)}, 10")
    A(f"s_lshl_b32 {sr(S_TMP+4)}, {sr(S_B)}, 7")
    A(f"s_add_u32 {sr(S_TMP+3)}, {sr(S_TMP+3)}, {sr(S_TMP+4)}")
    A(f"s_mov_b32 m0, {sr(S_RING)}")
    A.nop(4)
    A("s_mov_b32 exec_hi, 0")
    A(f"ds_write_b128 {vr(LT+3)}, {vr(V_QD,4)}")
    A("s_mov_b64 exec, -1")
    stamp("mfma")
    A("s_waitcnt vmcnt(0)")
    A(f"s_cmp_eq_u32 {sr(S_WAVE)}, 0")
    A("s_cbranch_scc0 L_nonce_done")
    A(f"v_readfirstlane_b32 {sr(S_TMP+2)}, {vr(V_NC)}")
    A.nop(1)
    A(f"s_cmp_eq_u32 {sr(S_TMP+2)}, 0")
    A(f"s_cselect_b32 {sr(S_TMP+2)}, {sr(S_RT)}, {sr(S_TMP+2)}")
    A(f"v_mov_b32 {vr(LT+6)}, {sr(S_TMP+2)}")
    A(f"v_mov_b32 {vr(LT+7)}, {F_NONCE}")
    A(f"ds_write_b32 {vr(LT+7)}, {vr(LT+6)}")
    A.label("L_nonce_done")
    lds_inc(F_Q1, LT+8)
    stamp("qpart")
    A(f"s_lshr_b32 {sr(S_TMP+2)}, {sr(S_WAVE)}, 1")
    A(f"s_lshl_b32 {sr(S_TMP+2)}, {sr(S_TMP+2)}, 8")
    A(f"s_and_b32 {sr(S_TMP+4)}, {sr(S_WAVE)}, 1")
    A(f"s_lshl_b32 {sr(S_TMP+4)}, {sr(S_TMP+4)}, 3")
    A(f"s_add_u32 {sr(S_TMP+2)}, {sr(S_TMP+2)}, {sr(S_TMP+4)}")
    A(f"s_add_u32 {sr(S_TMP+2)}, {sr(S_TMP+2)}, {L_QRED}")
    A(f"v_and_b32 {vr(LT)}, 1, {vr(V_G)}")
    A(f"v_lshlrev_b32 {vr(LT)}, 10, {vr(LT)}")
    A(f"v_lshl_add_u32 {vr(LT)}, {vr(V_J)}, 4, {vr(LT)}")
    A(f"v_lshrrev_b32 {vr(LT+1)}, 1, {vr(V_G)}")
    A(f"v_lshl_add_u32 {vr(LT)}, {vr(LT+1)}, 2, {vr(LT)}")
    A(f"v_add_u32 {vr(LT)}, {sr(S_TMP+2)}, {vr(LT)}")
    A(f"v_lshlrev_b32 {vr(LT+3)}, 14, {vr(LT+1)}")
    A(f"v_lshl_add_u32 {vr(LT+3)}, {vr(V_J)}, 2, {vr(LT+3)}")
    A(f"s_lshl_b32 {sr(S_TMP+5)}, {sr(S_WAVE)}, 15")
    A(f"s_lshl_b32 {sr(S_TMP+4)}, {sr(S_HKV)}, 11")
    A(f"s_add_u32 {sr(S_TMP+5)}, {sr(S_TMP+5)}, {sr(S_TMP+4)}")
    iq_shl(S_TMP+4, 6)
    A(f"s_add_u32 {sr(S_TMP+5)}, {sr(S_TMP+5)}, {sr(S_TMP+4)}")
    A(f"v_mov_b32 {vr(LT+7)}, {F_NONCE}")
    lds_wait(F_Q1, 4, LT+8, sleep=0)
    A(f"ds_read_b32 {vr(LT+1)}, {vr(LT)}")
    A(f"ds_read_b32 {vr(LT+2)}, {vr(LT)} offset:512")
    A(f"ds_read_b32 {vr(LT+5)}, {vr(LT+7)}")
    A("s_waitcnt lgkmcnt(0)")
    A(f"v_add_f32 {vr(LT+1)}, {vr(LT+1)}, {vr(LT+2)}")
    xreduce("v_add_f32", [LT+1], [LT+2], steps=("v_permlane16_swap_b32",))
    A.nop(2)
    A(f"v_mov_b32_dpp {vr(LT+2)}, {vr(LT+1)} quad_perm:[1,0,3,2] {DPPM}")
    A(f"v_readfirstlane_b32 {sr(S_NONCE)}, {vr(LT+5)}")
    A(f"v_cvt_pk_bf16_f32 {vr(LT+4)}, {vr(LT+1)}, {vr(LT+2)}")
    A("s_mov_b32 exec_lo, 0x5555")
    A("s_mov_b32 exec_hi, 0x5555")
    A.vmem(f"buffer_store_dwordx2 {vr(LT+4,2)}, {vr(LT+3)}, {sr(SWS,4)}, {sr(S_TMP+5)} offen sc1")
    A("s_mov_b64 exec, -1")
    stamp("q_published")
    V_L8 = 3
    A(f"v_lshlrev_b32 {vr(V_L8)}, 3, v0")
    GW1, GB1, GW2 = 16, 44, 72
    RAW1, RAWB = 86, 100
    G_A, G_B, G_P, G_ACC, G_T, G_K0 = 86, 118, 150, 166, 174, 182
    V_WO = 184
    K0 = -2.0 * math.sqrt(2.0 / math.pi) * LOG2E
    K1 = K0 * 0.044715
    S_ONE_LO, S_ONE_HI = S_C0 + 1, S_C0 + 2
    A(f"s_mov_b32 {sr(S_ONE_LO)}, 0x00003f80")
    A(f"s_mov_b32 {sr(S_ONE_HI)}, 0x3f800000")
    A(f"s_mov_b32 {sr(S_C0)}, {hex(f2u(LOG2E))}")
    A(f"s_lshl_b32 {sr(S_B2)}, {sr(S_B2)}, 16")
    A(f"s_cmp_eq_u32 {sr(S_WAVE)}, 0")
    A("s_cbranch_scc0 L_noqpoll")
    A(f"s_lshl_b32 {sr(S_TMP+6)}, {sr(S_B)}, 14")
    A(f"s_lshl_b32 {sr(S_TMP+4)}, {sr(S_HKV)}, 11")
    A(f"s_add_u32 {sr(S_TMP+6)}, {sr(S_TMP+6)}, {sr(S_TMP+4)}")
    QG = G_A
    A(f"v_add_u32 {vr(LT+6)}, {L_Q}, {vr(V_L8)}")
    def q_iss(k):
        A(f"buffer_load_dwordx4 {vr(QG+8*k,4)}, {vr(V_L16)}, {sr(SWS,4)}, {sr(S_TMP+6)} offen sc1")
        A(f"buffer_load_dwordx4 {vr(QG+8*k+4,4)}, {vr(V_L16)}, {sr(SWS,4)}, {sr(S_TMP+6)} offen offset:1024 sc1")
    def q_chk(k):
        for i in range(4):
            A(f"v_xor_b32 {vr(LT+i)}, {sr(S_NONCE)}, {vr(QG+8*k+2*i+1)}")
        A(f"v_or3_b32 {vr(LT)}, {vr(LT)}, {vr(LT+1)}, {vr(LT+2)}")
        A(f"v_or_b32 {vr(LT)}, {vr(LT)}, {vr(LT+3)}")
        A(f"v_cmp_ne_u32 vcc, 0, {vr(LT)}")
    def q_done(k):
        A(f"v_mov_b32 {vr(QG+8*k+1)}, {vr(QG+8*k+2)}")
        A(f"v_mov_b32 {vr(QG+8*k+5)}, {vr(QG+8*k+6)}")
        A(f"ds_write_b64 {vr(LT+6)}, {vr(QG+8*k,2)}")
        A(f"ds_write_b64 {vr(LT+6)}, {vr(QG+8*k+4,2)} offset:512")
    A("s_waitcnt vmcnt(0)")
    poll_pipe(3, 2, q_iss, q_chk, q_done)
    lds_inc(F_Q2, LT+8)
    stamp("q_ok")
    A("s_waitcnt vmcnt(0)")
    A.label("L_noqpoll")
    S_WOS = 5
    A(f"s_mov_b32 {sr(S_WOS)}, {sr(S_TMP+3)}")
    V_XF = 4
    V_CP = 8
    S_RB = 8
    A(f"v_and_b32 {vr(V_CP)}, 31, v0")
    A(f"v_lshlrev_b32 {vr(V_CP)}, 3, {vr(V_CP)}")
    A(f"v_lshrrev_b32 {vr(LT+6)}, 5, v0")
    A(f"v_lshl_add_u32 {vr(V_CP)}, {vr(LT+6)}, 2, {vr(V_CP)}")
    A(f"s_cmp_lt_u32 s2, 8")
    A("s_cbranch_scc0 L_noxf")
    A(f"s_lshl_b32 {sr(S_TMP+2)}, s2, 10")
    A(f"s_lshl_b32 {sr(S_TMP+4)}, {sr(S_WAVE)}, 8")
    A(f"s_add_u32 {sr(S_TMP+2)}, {sr(S_TMP+2)}, {sr(S_TMP+4)}")
    A(f"buffer_load_dword {vr(V_XF)}, {vr(V_CP)}, {sr(SX,4)}, {sr(S_TMP+2)} offen")
    A.label("L_noxf")
    A(f"s_cmp_eq_u32 {sr(S_WAVE)}, 0")
    A("s_cbranch_scc1 L_gskip")
    def gw_load():
        for (srd_, dst) in ((SW1, RAW1), (SB1, RAWB), (SW2, GW2)):
            if 'g' in o['skip']: continue
            for c in range(3):
                A.vmem(f"buffer_load_dwordx4 {vr(dst+4*c,4)}, {vr(V_L16)}, {sr(srd_,4)}, 0 offen offset:{1024*c}")
            A.vmem(f"buffer_load_dwordx2 {vr(dst+12,2)}, {vr(V_L8)}, {sr(srd_,4)}, 0 offen offset:3072")
    def gw_unpack():
        A("s_waitcnt vmcnt(0)")
        unpack(GW1, RAW1, 14)
        unpack(GB1, RAWB, 14)
        A(f"v_mov_b32 {vr(G_K0)}, {hex(f2u(K0))}")
    def wo_dma():
        for u in range(4):
            if u:
                A(f"s_add_u32 {sr(S_TMP+4)}, {sr(S_RING)}, {u*1024}")
                A(f"s_mov_b32 m0, {sr(S_TMP+4)}")
                A(f"s_add_u32 {sr(S_WOS)}, {sr(S_WOS)}, {32*1024}")
            if 'o' in o['skip']: continue
            A.vmem(f"buffer_load_dwordx4 {vr(T+17)}, {sr(SWO,4)}, {sr(S_WOS)} offen{WNT} lds")
    gw_load()
    A(f"s_lshl_b32 {sr(S_TMP+2)}, {sr(S_WAVE)}, 11")
    A(f"s_sub_u32 {sr(S_TMP+2)}, {sr(S_TMP+2)}, 2048")
    A(f"s_add_u32 {sr(S_TMP+8)}, {sr(S_TMP+2)}, s2")
    for k in range(8):
        A(f"s_add_u32 {sr(S_TMP+3)}, {sr(S_TMP+8)}, {256*k}")
        A(f"s_cmp_ge_u32 {sr(S_TMP+3)}, {GT_HALF}")
        A(f"s_cselect_b32 {sr(S_TMP+4)}, {0x8000 - GT_HALF}, 0")
        A(f"s_add_u32 {sr(S_TMP+3)}, {sr(S_TMP+3)}, {sr(S_TMP+4)}")
        A(f"s_add_u32 {sr(S_TMP+3)}, {sr(S_TMP+3)}, {E0*128}")
        A(f"s_lshl_b32 {sr(S_TMP+3)}, {sr(S_TMP+3)}, 16")
        A(f"v_mov_b32 {vr(G_T+k)}, {sr(S_TMP+3)}")
        A(f"v_mov_b32 {vr(G_ACC+k)}, 0")
    A(f"s_setprio {o['pg']}")
    gw_unpack()
    def g_chunk(c, nt):
        n = nt * 4
        E = [(k, f) for k in range(nt) for f in range(4)]
        for i, (k, f) in enumerate(E):
            A(f"v_mul_f32 {vr(G_A+i)}, {vr(G_T+k)}, {vr(GW1+4*c+f)}")
        for i in range(0, n, 2):
            A(f"v_cvt_pk_bf16_f32 {vr(G_P+i//2)}, {vr(G_A+i)}, {vr(G_A+i+1)}")
        for i, (k, f) in enumerate(E):
            one = S_ONE_LO if i % 2 == 0 else S_ONE_HI
            A(f"v_dot2_f32_bf16 {vr(G_A+i)}, {vr(G_P+i//2)}, {sr(one)}, {vr(GB1+4*c+f)}")
        A.nop(max(0, 3 - (n - 2)))
        for i in range(0, n, 2):
            if n == 4 and i == 2: A.nop(2)
            A(f"v_cvt_pk_bf16_f32 {vr(G_P+i//2)}, {vr(G_A+i)}, {vr(G_A+i+1)}")
        for i in range(0, n, 2):
            A(f"v_lshlrev_b32 {vr(G_A+i)}, 16, {vr(G_P+i//2)}")
            A(f"v_and_b32 {vr(G_A+i+1)}, 0xffff0000, {vr(G_P+i//2)}")
        for i in range(n):
            A(f"v_mul_f32 {vr(G_B+i)}, {vr(G_A+i)}, {vr(G_A+i)}")
        for i in range(n):
            A(f"v_fmamk_f32 {vr(G_B+i)}, {vr(G_B+i)}, {hex(f2u(K1))}, {vr(G_K0)}")
        for i in range(n):
            A(f"v_mul_f32 {vr(G_B+i)}, {vr(G_A+i)}, {vr(G_B+i)}")
        for i in range(n):
            A(f"v_exp_f32 {vr(G_B+i)}, {vr(G_B+i)}")
        for i in range(n):
            A(f"v_add_f32 {vr(G_B+i)}, 1.0, {vr(G_B+i)}")
        for i in range(n):
            A(f"v_rcp_f32 {vr(G_B+i)}, {vr(G_B+i)}")
        for i in range(n):
            A(f"v_mul_f32 {vr(G_B+i)}, {vr(G_A+i)}, {vr(G_B+i)}")
        for i in range(0, n, 2):
            A(f"v_cvt_pk_bf16_f32 {vr(G_P+i//2)}, {vr(G_B+i)}, {vr(G_B+i+1)}")
        for i in range(0, n, 2):
            k, f = E[i]
            A(f"v_dot2_f32_bf16 {vr(G_ACC+k)}, {vr(G_P+i//2)}, {vr(GW2+2*c+f//2)}, {vr(G_ACC+k)}")
        A.nop(3)
    def g_finish(nt):
        allreduce("v_add_f32", [G_ACC+k for k in range(nt)], [G_P+k for k in range(nt)])
        for k in range(nt):
            rne1(G_ACC+k, G_ACC+k)
        for k in range(nt):
            A(f"v_add_f32 {vr(G_ACC+k)}, {sr(S_B2)}, {vr(G_ACC+k)}")
        for k in range(nt):
            rne1(G_ACC+k, G_ACC+k)
    for c in range(7 if 'G' not in o['skip'] else 0):
        g_chunk(c, 8)
    g_finish(8)
    A("s_setprio 3")
    A(f"v_mov_b32 {vr(G_P)}, {vr(G_ACC)}")
    for k in range(1, 8):
        A(f"v_cmp_eq_u32 vcc, {k}, v0")
        A.nop(2)
        A(f"v_cndmask_b32 {vr(G_P)}, {vr(G_P)}, {vr(G_ACC+k)}, vcc")
    A(f"v_mov_b32 {vr(G_P+1)}, {sr(S_NONCE)}")
    A(f"v_lshlrev_b32 {vr(G_P+2)}, 11, v0")
    A(f"s_lshl_b32 {sr(S_TMP+2)}, {sr(S_TMP+8)}, 3")
    A(f"s_add_u32 {sr(S_TMP+2)}, {sr(S_TMP+2)}, {WS_GT}")
    A(f"s_mov_b64 exec, 0xff")
    A(f"buffer_store_dwordx2 {vr(G_P,2)}, {vr(G_P+2)}, {sr(SWS,4)}, {sr(S_TMP+2)} offen sc1")
    A("s_mov_b64 exec, -1")
    A.label("L_gskip")
    wo_dma()
    stamp("g_done")
    A("s_waitcnt vmcnt(0)")
    lds_inc(F_WOL, T)
    A(f"v_lshrrev_b32 {vr(T+2)}, 2, {vr(V_J)}")
    A(f"v_lshlrev_b32 {vr(V_TRA)}, 10, {vr(V_G)}")
    A(f"v_lshl_add_u32 {vr(V_TRA)}, {vr(T+2)}, 7, {vr(V_TRA)}")
    A(f"v_and_b32 {vr(T+2)}, 3, {vr(V_J)}")
    A(f"v_lshl_add_u32 {vr(V_TRA)}, {vr(T+2)}, 3, {vr(V_TRA)}")
    A(f"s_lshl_b32 {sr(S_TMP+2)}, {sr(S_WAVE)}, 5")
    A(f"s_add_u32 {sr(S_TMP+2)}, {sr(S_TMP+2)}, {L_STG}")
    A(f"v_add_u32 {vr(V_TRA)}, {sr(S_TMP+2)}, {vr(V_TRA)}")
    V_R1A = 5
    A(f"v_lshlrev_b32 {vr(V_R1A)}, 11, {vr(V_J)}")
    A(f"v_and_b32 {vr(T)}, 1, {vr(V_J)}")
    A(f"v_lshlrev_b32 {vr(T)}, 10, {vr(T)}")
    A(f"v_sub_u32 {vr(V_R1A)}, {vr(V_R1A)}, {vr(T)}")
    A(f"v_lshl_add_u32 {vr(V_R1A)}, {vr(V_G)}, 4, {vr(V_R1A)}")
    S_R1C, S_R1P, S_R2P = 72, 73, 74
    A(f"s_lshl_b32 {sr(S_R1C)}, {sr(S_HKV)}, 15")
    A(f"s_add_u32 {sr(S_R1C)}, {sr(S_R1C)}, {WS_R1}")
    A(f"s_lshl_b32 {sr(S_R1P)}, {sr(S_IDX)}, 10")
    A(f"s_add_u32 {sr(S_R1P)}, {sr(S_R1P)}, {sr(S_R1C)}")
    A(f"s_lshl_b32 {sr(S_TMP+3)}, {sr(S_WAVE)}, 8")
    A(f"s_add_u32 {sr(S_R1P)}, {sr(S_R1P)}, {sr(S_TMP+3)}")
    A(f"s_lshl_b32 {sr(S_TMP+3)}, {sr(S_S)}, 8")
    A(f"s_add_u32 {sr(S_R1C)}, {sr(S_R1C)}, {sr(S_TMP+3)}")
    A(f"s_lshl_b32 {sr(S_R2P)}, {sr(S_HKV)}, 13")
    A(f"s_lshl_b32 {sr(S_TMP+3)}, {sr(S_S)}, 11")
    A(f"s_add_u32 {sr(S_R2P)}, {sr(S_R2P)}, {sr(S_TMP+3)}")
    A(f"s_lshl_b32 {sr(S_TMP+3)}, {sr(S_B)}, 8")
    A(f"s_add_u32 {sr(S_R2P)}, {sr(S_R2P)}, {sr(S_TMP+3)}")
    A(f"s_lshl_b32 {sr(S_TMP+3)}, {sr(S_WAVE)}, 6")
    A(f"s_add_u32 {sr(S_R2P)}, {sr(S_R2P)}, {sr(S_TMP+3)}")
    A(f"s_add_u32 {sr(S_R2P)}, {sr(S_R2P)}, {WS_R2}")
    A(f"s_add_u32 {sr(S_R2P+1)}, {sr(S_R2P)}, 65536")
    S_R1Q = 71
    S_LST, S_LFC, S_STC = 6, 7, 76
    A(f"s_mov_b32 {sr(S_LST)}, {L_STAT}")
    A(f"s_mov_b32 {sr(S_LFC)}, {L_FAC}")
    A(f"s_lshl_b32 {sr(S_STC)}, {sr(S_HKV)}, 10")
    A(f"s_lshl_b32 {sr(S_TMP+3)}, {sr(S_S)}, 3")
    A(f"s_add_u32 {sr(S_STC)}, {sr(S_STC)}, {sr(S_TMP+3)}")
    A(f"s_add_u32 {sr(S_STC)}, {sr(S_STC)}, {WS_ST}")
    V_AXW = 9
    A(f"s_lshr_b32 {sr(S_TMP+3)}, {sr(S_WAVE)}, 1")
    A(f"s_lshl_b32 {sr(S_TMP+3)}, {sr(S_TMP+3)}, 11")
    A(f"s_add_u32 {sr(S_R1Q)}, {sr(S_R1C)}, {sr(S_TMP+3)}")
    A(f"s_and_b32 {sr(S_TMP+3)}, {sr(S_WAVE)}, 1")
    A(f"s_lshl_b32 {sr(S_TMP+3)}, {sr(S_TMP+3)}, 7")
    A(f"s_add_u32 {sr(S_R1Q)}, {sr(S_R1Q)}, {sr(S_TMP+3)}")
    A(f"s_lshl_b32 {sr(S_TMP+3)}, {sr(S_WAVE)}, 11")
    A(f"v_add_u32 {vr(V_AXW)}, {sr(S_TMP+3)}, {vr(V_L16)}")
    V_PR = 6
    V_L4 = 7
    V_R2A = 10
    A(f"s_lshl_b32 {sr(S_TMP+3)}, {sr(S_WAVE)}, 9")
    A(f"v_add_u32 {vr(V_PR)}, {sr(S_TMP+3)}, {vr(V_L8)}")
    A(f"v_add_u32 {vr(V_PR+5)}, {2*RING}, {vr(V_PR)}")
    A(f"v_lshlrev_b32 {vr(V_L4)}, 2, v0")
    A(f"v_lshlrev_b32 {vr(V_R2A)}, 17, {vr(V_G)}")
    A(f"v_lshl_add_u32 {vr(V_R2A)}, {vr(V_J)}, 2, {vr(V_R2A)}")
    def wo_frag():
        lds_wait(F_WOL, 4, T, sleep=2)
        for u in range(4):
            for h in range(2):
                A(f"ds_read_b64_tr_b16 {vr(V_WO+4*u+2*h,2)}, {vr(V_TRA)} offset:{u*4096+h*512}")
        lds_inc(F_WO, T)
    A(f"s_cmp_eq_u32 {sr(S_WAVE)}, 0")
    A("s_cbranch_scc0 L_notstat")
    A(f"s_lshl_b32 {sr(S_TMP+2)}, {sr(S_HKV)}, 5")
    A(f"s_add_u32 {sr(S_TMP+2)}, {sr(S_TMP+2)}, {sr(S_IDX)}")
    A(f"s_lshl_b32 {sr(S_TMP+2)}, {sr(S_TMP+2)}, 5")
    A(f"s_add_u32 {sr(S_TMP+2)}, {sr(S_TMP+2)}, {WS_ST}")
    A(f"v_lshl_add_u32 {vr(T+11)}, {vr(V_J)}, 3, {sr(S_LST)}")
    A(f"v_lshl_add_u32 {vr(T+20)}, {vr(V_J)}, 2, {sr(S_LFC)}")
    lds_wait(F_ST, 4, T)
    A(f"ds_read_b64 {vr(T+12,2)}, {vr(T+11)}")
    A("s_waitcnt lgkmcnt(0)")
    A(f"v_mov_b32 {vr(T)}, {vr(T+12)}")
    for d in (8, 4):
        A.nop(2)
        A(f"v_max_f32_dpp {vr(T)}, {vr(T)}, {vr(T)} row_ror:{d} {DPPM}")
    A(f"v_sub_f32 {vr(T+2)}, {vr(T+12)}, {vr(T)}")
    A(f"v_mul_f32 {vr(T+2)}, {sr(S_C0)}, {vr(T+2)}")
    A(f"v_exp_f32 {vr(T+2)}, {vr(T+2)}")
    A.nop(1)
    A(f"v_mul_f32 {vr(T+1)}, {vr(T+2)}, {vr(T+13)}")
    for d in (8, 4):
        A.nop(2)
        A(f"v_add_f32_dpp {vr(T+1)}, {vr(T+1)}, {vr(T+1)} row_ror:{d} {DPPM}")
    A(f"v_rcp_f32 {vr(T+3)}, {vr(T+1)}")
    A.nop(1)
    A(f"v_mul_f32 {vr(T+2)}, {vr(T+2)}, {vr(T+3)}")
    A(f"ds_write_b32 {vr(T+20)}, {vr(T+2)}")
    lds_inc(F_FAC, T+8)
    A(f"v_min_u32 {vr(T)}, -2, {vr(T)}")
    A(f"v_min_u32 {vr(T+1)}, -2, {vr(T+1)}")
    A("s_mov_b64 exec, 15")
    A(f"buffer_store_dwordx2 {vr(T,2)}, {vr(V_L8)}, {sr(SWS,4)}, {sr(S_TMP+2)} offen sc1")
    A("s_mov_b64 exec, -1")
    stamp("fac_done")
    A("s_waitcnt vmcnt(0)")
    wo_frag()
    A("s_branch L_pre_s4")
    A.label("L_notstat")
    wo_frag()
    A(f"s_cmp_lt_u32 s2, 8")
    A("s_cbranch_scc0 L_pre_s4")
    GG = 86
    V_NA = T + 12
    A(f"s_sub_u32 {sr(S_TMP+2)}, {sr(S_WAVE)}, 1")
    A(f"s_lshl_b32 {sr(S_TMP+3)}, {sr(S_TMP+2)}, 14")
    A(f"s_add_u32 {sr(S_TMP+3)}, {sr(S_TMP+3)}, {WS_GT}")
    for k in range(1, 4):
        A(f"s_add_u32 {sr(S_TMP+3+k)}, {sr(S_TMP+3)}, {4096*k}")
    A(f"v_and_b32 {vr(T+10)}, 3, v0")
    A(f"v_lshlrev_b32 {vr(T+10)}, 6, {vr(T+10)}")
    A(f"s_lshl_b32 {sr(S_TMP+2)}, {sr(S_TMP+2)}, 13")
    A(f"s_add_u32 {sr(S_TMP+2)}, {sr(S_TMP+2)}, {L_GT}")
    A(f"v_add_u32 {vr(T+11)}, {sr(S_TMP+2)}, {vr(V_L8)}")
    lds_wait(F_ST, 1, T+4, sleep=4)
    A(f"s_mov_b32 {sr(S_SPIN)}, {SPIN_LIMIT}")
    A.label("L_gchk")
    for i in range(16):
        A(f"buffer_load_dwordx4 {vr(GG+4*i,4)}, {vr(V_L16)}, {sr(SWS,4)}, {sr(S_TMP+3+(i>>2))} offen offset:{(i&3)*1024} sc1")
    A(f"buffer_load_dword {vr(V_NA)}, {vr(T+10)}, {sr(SDBG,4)}, 0 offen sc1")
    A(f"buffer_load_dword {vr(V_NA+1)}, {vr(T+10)}, {sr(SDBG,4)}, 0 offen offset:32 sc1")
    A("s_waitcnt vmcnt(0)")
    A(f"v_and_b32 {vr(T)}, {vr(V_NA)}, {vr(V_NA+1)}")
    A(f"v_and_b32 {vr(T)}, 1, {vr(T)}")
    A(f"v_xor_b32 {vr(T)}, 1, {vr(T)}")
    for i in range(16):
        A(f"v_xor_b32 {vr(T+1)}, {vr(V_NA)}, {vr(GG+4*i+1)}")
        A(f"v_xor_b32 {vr(T+2)}, {vr(V_NA+1)}, {vr(GG+4*i+3)}")
        A(f"v_or3_b32 {vr(T)}, {vr(T)}, {vr(T+1)}, {vr(T+2)}")
    A(f"v_cmp_ne_u32 vcc, 0, {vr(T)}")
    A("s_cbranch_vccz L_gok")
    A("s_sleep 32")
    A(f"s_sub_u32 {sr(S_SPIN)}, {sr(S_SPIN)}, 1")
    A("s_cbranch_scc0 L_gchk")
    A.label("L_gok")
    lds_wait(F_WO, 4, T+4)
    for i in range(16):
        A(f"v_mov_b32 {vr(GG+4*i+1)}, {vr(GG+4*i+2)}")
    for i in range(16):
        A(f"ds_write_b64 {vr(T+11)}, {vr(GG+4*i,2)} offset:{i*512}")
    stamp("gt_done")
    A.label("L_pre_s4")
    A("s_waitcnt lgkmcnt(0)")
    A("s_barrier")
    stamp("s4")
    if 'T' in o['skip']: A("s_branch L_fin")
    RB = 86
    for w in range(4):
        ad = V_PR if w < 2 else V_PR + 5
        A(f"ds_read_b64 {vr(RB+2*w,2)}, {vr(ad)} offset:{(w&1)*RING}")
    S_M = 80
    for k in range(4):
        A(f"s_mov_b64 {sr(S_M+2*k,2)}, -1")
    A(f"s_mov_b32 {sr(S_SPIN)}, {SPIN_LIMIT}")
    A("s_waitcnt lgkmcnt(2)")
    A(f"v_pk_add_f32 {vr(RB,2)}, {vr(RB,2)}, {vr(RB+2,2)}")
    A("s_waitcnt lgkmcnt(0)")
    A(f"v_pk_add_f32 {vr(RB+4,2)}, {vr(RB+4,2)}, {vr(RB+6,2)}")
    A(f"v_pk_add_f32 {vr(RB,2)}, {vr(RB,2)}, {vr(RB+4,2)}")
    A(f"v_cvt_pk_bf16_f32 {vr(RB+2)}, {vr(RB)}, {vr(RB+1)}")
    A(f"v_min_u32 {vr(RB+2)}, -2, {vr(RB+2)}")
    A(f"buffer_store_dword {vr(RB+2)}, {vr(V_L4)}, {sr(SWS,4)}, {sr(S_R1P)} offen sc1")
    stamp("r1_pub")
    WT = 160
    L_WX = 20480
    A(f"v_and_b32 {vr(T+4)}, 31, v0")
    A(f"v_lshlrev_b32 {vr(T+5)}, 5, {vr(T+4)}")
    A(f"s_lshl_b32 {sr(S_TMP+3)}, {sr(S_WAVE)}, 7")
    A(f"s_add_u32 {sr(S_TMP+3)}, {sr(S_TMP+3)}, {L_WX}")
    A(f"v_lshl_add_u32 {vr(T+6)}, {vr(T+4)}, 2, {sr(S_TMP+3)}")
    A(f"v_lshl_add_u32 {vr(T+7)}, {vr(V_G)}, 5, {sr(S_TMP+3)}")
    A.label("L_stloop")
    A(f"buffer_load_dwordx2 {vr(T+2,2)}, {vr(T+5)}, {sr(SWS,4)}, {sr(S_STC)} offen sc1")
    A("s_waitcnt vmcnt(0)")
    A(f"v_max_u32 {vr(T)}, {vr(T+2)}, {vr(T+3)}")
    A(f"v_cmp_eq_u32 vcc, -1, {vr(T)}")
    A("s_cbranch_vccz L_stok")
    A("s_sleep 2")
    A(f"s_sub_u32 {sr(S_SPIN)}, {sr(S_SPIN)}, 1")
    A("s_cbranch_scc0 L_stloop")
    A.label("L_stok")
    A(f"v_mov_b32 {vr(T)}, {vr(T+2)}")
    for dpp in ("quad_perm:[1,0,3,2]", "quad_perm:[2,3,0,1]"):
        A.nop(2)
        A(f"v_max_f32_dpp {vr(T)}, {vr(T)}, {vr(T)} {dpp} {DPPM}")
    A(f"v_sub_f32 {vr(T+2)}, {vr(T+2)}, {vr(T)}")
    A(f"v_mul_f32 {vr(T+2)}, {sr(S_C0)}, {vr(T+2)}")
    A(f"v_exp_f32 {vr(T+2)}, {vr(T+2)}")
    A.nop(1)
    A(f"v_mul_f32 {vr(T+2)}, {vr(T+2)}, {vr(T+3)}")
    A(f"v_mov_b32 {vr(T+1)}, {vr(T+2)}")
    for dpp in ("quad_perm:[1,0,3,2]", "quad_perm:[2,3,0,1]"):
        A.nop(2)
        A(f"v_add_f32_dpp {vr(T+1)}, {vr(T+1)}, {vr(T+1)} {dpp} {DPPM}")
    A(f"v_rcp_f32 {vr(T+1)}, {vr(T+1)}")
    A.nop(1)
    A(f"v_mul_f32 {vr(T+2)}, {vr(T+2)}, {vr(T+1)}")
    A(f"ds_write_b32 {vr(T+6)}, {vr(T+2)}")
    A("s_waitcnt lgkmcnt(0)")
    A(f"ds_read_b128 {vr(WT,4)}, {vr(T+7)}")
    A(f"ds_read_b128 {vr(WT+4,4)}, {vr(T+7)} offset:16")
    A(f"s_mov_b32 {sr(S_SPIN)}, {SPIN_LIMIT}")
    RA = 96
    if o["r1split"]:
        L_AX = 8192
        RQ = RA + 32
        A.label("L_r1loop")
        A(f"s_mov_b64 exec, {sr(S_M,2)}")
        A(f"buffer_load_dwordx4 {vr(RQ,4)}, {vr(V_R1A)}, {sr(SWS,4)}, {sr(S_R1Q)} offen sc1")
        A(f"buffer_load_dwordx4 {vr(RQ+4,4)}, {vr(V_R1A)}, {sr(SWS,4)}, {sr(S_R1Q)} offen offset:64 sc1")
        A("s_mov_b64 exec, -1")
        A("s_waitcnt vmcnt(0)")
        A(f"v_max3_u32 {vr(T)}, {vr(RQ)}, {vr(RQ+1)}, {vr(RQ+2)}")
        A(f"v_max3_u32 {vr(T+1)}, {vr(RQ+3)}, {vr(RQ+4)}, {vr(RQ+5)}")
        A(f"v_max3_u32 {vr(T)}, {vr(T)}, {vr(RQ+6)}, {vr(RQ+7)}")
        A(f"v_max_u32 {vr(T)}, {vr(T)}, {vr(T+1)}")
        A(f"v_cmp_eq_u32 {sr(S_M,2)}, -1, {vr(T)}")
        A(f"s_cmp_eq_u64 {sr(S_M,2)}, 0")
        A("s_cbranch_scc1 L_r1ok")
        if o["r1sleep"]: A(f"s_sleep {o['r1sleep']}")
        A(f"s_sub_u32 {sr(S_SPIN)}, {sr(S_SPIN)}, 1")
        A("s_cbranch_scc0 L_r1loop")
        A.label("L_r1ok")
        A(f"ds_write_b128 {vr(V_AXW)}, {vr(RQ,4)} offset:{L_AX}")
        A(f"ds_write_b128 {vr(V_AXW)}, {vr(RQ+4,4)} offset:{L_AX+1024}")
        A("s_waitcnt lgkmcnt(0)")
        A("s_barrier")
        for i in range(8):
            A(f"ds_read_b128 {vr(RA+4*i,4)}, {vr(V_L16)} offset:{L_AX+1024*i}")
        A("s_waitcnt lgkmcnt(0)")
    else:
        def r1_batch():
            for k in range(4):
                tau, up = k >> 1, k & 1
                A(f"s_mov_b64 exec, {sr(S_M+2*k,2)}")
                for uu in range(2):
                    u = 2 * up + uu
                    A(f"buffer_load_dwordx4 {vr(RA+8*k+4*uu,4)}, {vr(V_R1A)}, {sr(SWS,4)}, {sr(S_R1C)} offen offset:{tau*2048+u*64} sc1")
            A("s_mov_b64 exec, -1")
        for _ in range(o["nb1"] - 1): r1_batch()
        A.label("L_r1loop")
        r1_batch()
        A(f"s_waitcnt vmcnt({8*(o['nb1']-1)})")
        for k in range(4):
            A(f"v_max3_u32 {vr(T+k)}, {vr(RA+8*k)}, {vr(RA+8*k+1)}, {vr(RA+8*k+2)}")
        for k in range(4):
            A(f"v_max3_u32 {vr(T+k)}, {vr(T+k)}, {vr(RA+8*k+3)}, {vr(RA+8*k+4)}")
        for k in range(4):
            A(f"v_max3_u32 {vr(T+k)}, {vr(T+k)}, {vr(RA+8*k+5)}, {vr(RA+8*k+6)}")
        for k in range(4):
            A(f"v_max_u32 {vr(T+k)}, {vr(T+k)}, {vr(RA+8*k+7)}")
        for k in range(4):
            A(f"v_cmp_eq_u32 {sr(S_M+2*k,2)}, -1, {vr(T+k)}")
        A(f"s_or_b64 {sr(S_TMP,2)}, {sr(S_M,2)}, {sr(S_M+2,2)}")
        A(f"s_or_b64 {sr(S_TMP+2,2)}, {sr(S_M+4,2)}, {sr(S_M+6,2)}")
        A(f"s_or_b64 {sr(S_TMP,2)}, {sr(S_TMP,2)}, {sr(S_TMP+2,2)}")
        A("s_cbranch_scc0 L_r1ok")
        if o["r1sleep"]:
            A(f"s_bcnt1_i32_b64 {sr(S_TMP+2)}, {sr(S_TMP,2)}")
            A(f"s_cmp_lt_u32 {sr(S_TMP+2)}, 17")
            A("s_cbranch_scc1 L_r1ns")
            A(f"s_sleep {o['r1sleep']}")
            A.label("L_r1ns")
        A(f"s_sub_u32 {sr(S_SPIN)}, {sr(S_SPIN)}, 1")
        A("s_cbranch_scc0 L_r1loop")
        A.label("L_r1ok")
    OD = T + 8
    for u in range(4):
        for tau in range(2):
            k, uu = 2 * tau + (u >> 1), u & 1
            od = OD + 4 * tau
            c = "0" if u == 0 else vr(od, 4)
            A(f"v_mfma_f32_16x16x32_bf16 {vr(od,4)}, {vr(RA+8*k+4*uu,4)}, {vr(V_WO+4*u,4)}, {c}")
    stamp("r1_ok")
    A.nop(8)
    A(f"v_mul_f32 {vr(T+1)}, {vr(WT+0)}, {vr(OD+0)}")
    A(f"v_mul_f32 {vr(T+2)}, {vr(WT+4)}, {vr(OD+2)}")
    A(f"v_fmac_f32 {vr(T+1)}, {vr(WT+1)}, {vr(OD+1)}")
    A(f"v_fmac_f32 {vr(T+2)}, {vr(WT+5)}, {vr(OD+3)}")
    A(f"v_fmac_f32 {vr(T+1)}, {vr(WT+2)}, {vr(OD+4)}")
    A(f"v_fmac_f32 {vr(T+2)}, {vr(WT+6)}, {vr(OD+6)}")
    A(f"v_fmac_f32 {vr(T+1)}, {vr(WT+3)}, {vr(OD+5)}")
    A(f"v_fmac_f32 {vr(T+2)}, {vr(WT+7)}, {vr(OD+7)}")
    A(f"v_min_u32 {vr(T+1)}, -2, {vr(T+1)}")
    A(f"v_min_u32 {vr(T+2)}, -2, {vr(T+2)}")
    A(f"buffer_store_dword {vr(T+1)}, {vr(V_R2A)}, {sr(SWS,4)}, {sr(S_R2P)} offen sc1")
    A(f"buffer_store_dword {vr(T+2)}, {vr(V_R2A)}, {sr(SWS,4)}, {sr(S_R2P+1)} offen sc1")
    stamp("r2_pub")
    A(f"s_cmp_lt_u32 s2, 8")
    A("s_cbranch_scc0 L_fin")
    FB = 96
    H = 196
    OWN = 184
    D_ = T + 24
    N1 = T + 32
    LT2 = T
    A(f"s_lshl_b32 {sr(S_TMP+2)}, s2, 16")
    A(f"s_lshl_b32 {sr(S_TMP+6)}, {sr(S_WAVE)}, 9")
    A(f"s_add_u32 {sr(S_TMP+2)}, {sr(S_TMP+2)}, {sr(S_TMP+6)}")
    A(f"s_add_u32 {sr(S_TMP+2)}, {sr(S_TMP+2)}, {WS_R2}")
    A(f"s_add_u32 {sr(S_TMP+6)}, {sr(S_TMP+6)}, {L_H}")
    A(f"v_lshl_add_u32 {vr(OWN+8)}, {vr(V_CP)}, 1, {sr(S_TMP+6)}")
    A(f"v_lshlrev_b32 {vr(OWN+9)}, 5, v0")
    A(f"v_add_u32 {vr(OWN+9)}, {L_H}, {vr(OWN+9)}")
    A(f"v_lshlrev_b32 {vr(OWN+6)}, 16, {vr(V_XF)}")
    A(f"v_and_b32 {vr(OWN+7)}, 0xffff0000, {vr(V_XF)}")
    A(f"v_and_b32 {vr(OWN+10)}, 31, v0")
    A(f"v_lshlrev_b32 {vr(OWN+10)}, 4, {vr(OWN+10)}")
    A(f"v_lshrrev_b32 {vr(OWN+11)}, 5, v0")
    A(f"v_lshl_add_u32 {vr(OWN+10)}, {vr(OWN+11)}, 11, {vr(OWN+10)}")
    A(f"s_mov_b32 {sr(S_SPIN)}, {SPIN_LIMIT}")
    for k in range(4):
        A(f"s_mov_b64 {sr(S_M+2*k,2)}, -1")
    for i in range(16):
        A(f"s_add_u32 {sr(S_RB+i)}, {sr(S_TMP+2)}, {i*4096}")
    A("s_waitcnt vmcnt(0)")
    def r2_batch():
        for k in range(4):
            A(f"s_mov_b64 exec, {sr(S_M+2*k,2)}")
            for pp in range(4):
                i = 4 * k + pp
                A(f"buffer_load_dwordx4 {vr(FB+4*i,4)}, {vr(OWN+10)}, {sr(SWS,4)}, {sr(S_RB+i)} offen sc1")
        A("s_mov_b64 exec, -1")
    for _ in range(o["nb2"] - 1): r2_batch()
    A.label("L_r2loop")
    r2_batch()
    A(f"s_waitcnt vmcnt({16*(o['nb2']-1)})")
    for st in range(8):
        for k in range(4):
            r = FB + 16 * k
            if st == 0:
                A(f"v_max3_u32 {vr(T+k)}, {vr(r)}, {vr(r+1)}, {vr(r+2)}")
            elif st < 7:
                A(f"v_max3_u32 {vr(T+k)}, {vr(T+k)}, {vr(r+1+2*st)}, {vr(r+2+2*st)}")
            else:
                A(f"v_max_u32 {vr(T+k)}, {vr(T+k)}, {vr(r+15)}")
    for k in range(4):
        A(f"v_cmp_eq_u32 {sr(S_M+2*k,2)}, -1, {vr(T+k)}")
    A(f"s_or_b64 {sr(S_TMP,2)}, {sr(S_M,2)}, {sr(S_M+2,2)}")
    A(f"s_or_b64 {sr(S_TMP+4,2)}, {sr(S_M+4,2)}, {sr(S_M+6,2)}")
    A(f"s_or_b64 {sr(S_TMP,2)}, {sr(S_TMP,2)}, {sr(S_TMP+4,2)}")
    A("s_cbranch_scc0 L_r2ok")
    A(f"s_sub_u32 {sr(S_SPIN)}, {sr(S_SPIN)}, 1")
    A("s_cbranch_scc0 L_r2loop")
    A.label("L_r2ok")
    SM = T + 8
    for i in range(4):
        for hh_ in range(2):
            A(f"v_pk_add_f32 {vr(SM+4*i+2*hh_,2)}, {vr(FB+16*i+2*hh_,2)}, {vr(FB+16*i+4+2*hh_,2)}")
    for j in (2, 3):
        for i in range(4):
            for hh_ in range(2):
                A(f"v_pk_add_f32 {vr(SM+4*i+2*hh_,2)}, {vr(SM+4*i+2*hh_,2)}, {vr(FB+16*i+4*j+2*hh_,2)}")
    for hh_ in range(2):
        A(f"v_pk_add_f32 {vr(SM+2*hh_,2)}, {vr(SM+2*hh_,2)}, {vr(SM+4+2*hh_,2)}")
        A(f"v_pk_add_f32 {vr(SM+8+2*hh_,2)}, {vr(SM+8+2*hh_,2)}, {vr(SM+12+2*hh_,2)}")
    for hh_ in range(2):
        A(f"v_pk_add_f32 {vr(SM+2*hh_,2)}, {vr(SM+2*hh_,2)}, {vr(SM+8+2*hh_,2)}")
    A.nop(1)
    A(f"v_permlane32_swap_b32 {vr(SM)}, {vr(SM+2)}")
    A(f"v_permlane32_swap_b32 {vr(SM+1)}, {vr(SM+3)}")
    A.nop(1)
    FB = SM + 4
    A(f"v_pk_add_f32 {vr(FB,2)}, {vr(SM,2)}, {vr(SM+2,2)}")
    rne2(FB, FB+1, T)
    A(f"v_pk_add_f32 {vr(OWN,2)}, {vr(FB,2)}, {vr(OWN+6,2)}")
    rne2(OWN, OWN+1, T)
    A(f"ds_write_b64 {vr(OWN+8)}, {vr(OWN,2)}")
    A("s_waitcnt lgkmcnt(0)")
    A("s_barrier")
    stamp("r2_ok")
    A(f"ds_read_b128 {vr(H,4)}, {vr(OWN+9)}")
    A(f"ds_read_b128 {vr(H+4,4)}, {vr(OWN+9)} offset:16")
    def ln_stats(x, t):
        A(f"v_readfirstlane_b32 {sr(S_TMP+7)}, {vr(x)}")
        A.nop(2)
        A(f"v_mov_b32 {vr(t+2)}, {sr(S_TMP+7)}")
        A(f"v_mov_b32 {vr(t+3)}, {sr(S_TMP+7)}")
        for i in range(0, 8, 2):
            A(f"v_pk_add_f32 {vr(t+4+i,2)}, {vr(x+i,2)}, {vr(t+2,2)} neg_lo:[0,1] neg_hi:[0,1]")
        A(f"v_pk_add_f32 {vr(t,2)}, {vr(t+4,2)}, {vr(t+6,2)}")
        A(f"v_pk_mul_f32 {vr(t+12,2)}, {vr(t+4,2)}, {vr(t+4,2)}")
        A(f"v_pk_add_f32 {vr(t,2)}, {vr(t,2)}, {vr(t+8,2)}")
        A(f"v_pk_fma_f32 {vr(t+12,2)}, {vr(t+6,2)}, {vr(t+6,2)}, {vr(t+12,2)}")
        A(f"v_pk_add_f32 {vr(t,2)}, {vr(t,2)}, {vr(t+10,2)}")
        A(f"v_pk_fma_f32 {vr(t+12,2)}, {vr(t+8,2)}, {vr(t+8,2)}, {vr(t+12,2)}")
        A(f"v_add_f32 {vr(t)}, {vr(t)}, {vr(t+1)}")
        A(f"v_pk_fma_f32 {vr(t+12,2)}, {vr(t+10,2)}, {vr(t+10,2)}, {vr(t+12,2)}")
        A(f"v_add_f32 {vr(t+1)}, {vr(t+12)}, {vr(t+13)}")
        allreduce("v_add_f32", [t, t+1], [t+4, t+5])
        A(f"v_mul_f32 {vr(t)}, {hex(f2u(1/512))}, {vr(t)}")
        A(f"v_mul_f32 {vr(t+1)}, {hex(f2u(1/512))}, {vr(t+1)}")
        A(f"v_fma_f32 {vr(t+1)}, -{vr(t)}, {vr(t)}, {vr(t+1)}")
        A(f"v_add_f32 {vr(t)}, {vr(t)}, {vr(t+2)}")
        A(f"v_max_f32 {vr(t+1)}, 0, {vr(t+1)}")
        rne2(t, t+1, t+4)
        A(f"v_add_f32 {vr(t+1)}, {hex(f2u(1e-5))}, {vr(t+1)}")
        rne1(t+1, t+1)
        A(f"v_sqrt_f32 {vr(t+1)}, {vr(t+1)}")
        A.nop(1)
        rne1(t+1, t+1)
        A(f"v_rcp_f32 {vr(t+2)}, {vr(t+1)}")
        A(f"v_mov_b32 {vr(t+4)}, {vr(t)}")
        A(f"v_mov_b32 {vr(t+5)}, {vr(t)}")
        A(f"v_mov_b32 {vr(t+6)}, {vr(t+1)}")
        A(f"v_mov_b32 {vr(t+7)}, {vr(t+1)}")
        A(f"v_mov_b32 {vr(t+3)}, {vr(t+2)}")
    def ln_apply(pairs, t, pk):
        for (s_, d, n) in pairs:
            A(f"v_pk_add_f32 {vr(d,2)}, {vr(s_,2)}, {vr(t+4,2)} neg_lo:[0,1] neg_hi:[0,1]")
        for i, (s_, d, n) in enumerate(pairs):
            A(f"v_cvt_pk_bf16_f32 {vr(pk+i)}, {vr(d)}, {vr(d+1)}")
        for i, (s_, d, n) in enumerate(pairs):
            A(f"v_lshlrev_b32 {vr(d)}, 16, {vr(pk+i)}")
            A(f"v_and_b32 {vr(d+1)}, 0xffff0000, {vr(pk+i)}")
        for (s_, d, n) in pairs:
            A(f"v_pk_mul_f32 {vr(n,2)}, {vr(d,2)}, {vr(t+2,2)}")
        for (s_, d, n) in pairs:
            A(f"v_pk_fma_f32 {vr(d,2)}, {vr(n,2)}, {vr(t+6,2)}, {vr(d,2)} neg_lo:[1,0,0] neg_hi:[1,0,0]")
        for (s_, d, n) in pairs:
            A(f"v_pk_fma_f32 {vr(n,2)}, {vr(d,2)}, {vr(t+2,2)}, {vr(n,2)}")
        for i, (s_, d, n) in enumerate(pairs):
            A(f"v_cvt_pk_bf16_f32 {vr(pk+i)}, {vr(n)}, {vr(n+1)}")
        for i, (s_, d, n) in enumerate(pairs):
            A(f"v_lshlrev_b32 {vr(n)}, 16, {vr(pk+i)}")
            A(f"v_and_b32 {vr(n+1)}, 0xffff0000, {vr(pk+i)}")
    A("s_waitcnt lgkmcnt(0)")
    ln_stats(H, LT2)
    ln_apply([(H+i, D_+i, N1+i) for i in range(0, 8, 2)] + [(OWN, OWN+4, OWN+2)], LT2, LT2+8)
    ln_stats(N1, LT2)
    ln_apply([(OWN+2, OWN+4, OWN+2)], LT2, LT2+8)
    Y = OWN + 4
    S_MS = 80
    A(f"s_mov_b32 {sr(S_TMP+8)}, {o.get('fbtest', NEXP) * 128}")
    for x in range(2):
        A(f"v_bfe_u32 {vr(LT2+2*x)}, {vr(OWN+2+x)}, 16, 15")
        A(f"v_subrev_u32 {vr(LT2+2*x)}, {E0*128}, {vr(LT2+2*x)}")
        A(f"v_cmp_gt_u32 {sr(S_MS+2*x,2)}, {sr(S_TMP+8)}, {vr(LT2+2*x)}")
        A(f"v_lshrrev_b32 {vr(LT2+2*x+1)}, 31, {vr(OWN+2+x)}")
        A(f"v_mul_u32_u24 {vr(LT2+2*x+1)}, {GT_HALF}, {vr(LT2+2*x+1)}")
        A(f"v_cndmask_b32 {vr(LT2+2*x)}, 0, {vr(LT2+2*x)}, {sr(S_MS+2*x,2)}")
        A(f"v_add_lshl_u32 {vr(LT2+2*x)}, {vr(LT2+2*x)}, {vr(LT2+2*x+1)}, 2")
        A(f"v_add_u32 {vr(LT2+2*x)}, {L_GT}, {vr(LT2+2*x)}")
        A(f"ds_read_b32 {vr(Y+x)}, {vr(LT2+2*x)}")
    A(f"s_and_b64 {sr(S_TMP+4,2)}, {sr(S_MS,2)}, {sr(S_MS+2,2)}")
    A(f"s_lshl_b32 {sr(S_TMP+2)}, s2, 10")
    A(f"s_lshl_b32 {sr(S_TMP+3)}, {sr(S_WAVE)}, 8")
    A(f"s_add_u32 {sr(S_TMP+2)}, {sr(S_TMP+2)}, {sr(S_TMP+3)}")
    A(f"s_cmp_eq_u64 {sr(S_TMP+4,2)}, -1")
    A("s_waitcnt lgkmcnt(0)")
    A("s_cbranch_scc1 L_nofb")
    A("s_waitcnt vmcnt(0)")
    gw_load()
    gw_unpack()
    for x in range(2):
        lp, dn = A.newlabel("Lfb"), A.newlabel("Lfbd")
        A(f"s_not_b64 {sr(S_TMP+4,2)}, {sr(S_MS+2*x,2)}")
        A.label(lp)
        A(f"s_cmp_eq_u64 {sr(S_TMP+4,2)}, 0")
        A(f"s_cbranch_scc1 {dn}")
        A(f"s_ff1_i32_b64 {sr(S_TMP+6)}, {sr(S_TMP+4,2)}")
        A(f"s_bitset0_b64 {sr(S_TMP+4,2)}, {sr(S_TMP+6)}")
        A(f"v_readlane_b32 {sr(S_TMP+7)}, {vr(OWN+2+x)}, {sr(S_TMP+6)}")
        A(f"v_mov_b32 {vr(G_ACC)}, 0")
        A.nop(2)
        A(f"v_mov_b32 {vr(G_T)}, {sr(S_TMP+7)}")
        A(f"v_mov_b32 {vr(G_K0)}, {hex(f2u(K0))}")
        for c in range(7):
            g_chunk(c, 1)
        g_finish(1)
        A(f"s_lshl_b64 exec, 1, {sr(S_TMP+6)}")
        A(f"v_mov_b32 {vr(Y+x)}, {vr(G_ACC)}")
        A("s_mov_b64 exec, -1")
        A(f"s_branch {lp}")
        A.label(dn)
    A.label("L_nofb")
    A(f"v_pk_add_f32 {vr(Y,2)}, {vr(Y,2)}, {vr(OWN,2)}")
    A(f"v_cvt_pk_bf16_f32 {vr(Y)}, {vr(Y)}, {vr(Y+1)}")
    A(f"buffer_store_dword {vr(Y)}, {vr(V_CP)}, {sr(SOUT,4)}, {sr(S_TMP+2)} offen")
    A("s_branch L_fin")

    A.label("L_stream")
    cur[0] = "s"
    A.vm = 0
    A(f"s_setprio {o['pst']}")
    V_KD = 2
    V_KR = 6
    V_VO = 10
    V_M0, V_M1 = 11, 14
    V_MW, V_LS = 15, 236
    V_ACC = 16
    V_XA = 24
    V_XB = 30
    V_Q = 36
    V_S = 52
    V_KF = 92
    V_V = 124
    T = 238
    NVS = 7
    S_SW = 62
    A(f"s_sub_u32 {sr(S_SW)}, {sr(S_WAVE)}, 4")
    A(f"s_lshl_b32 {sr(S_KOFF)}, {sr(S_B)}, 23")
    A(f"s_lshl_b32 {sr(S_TMP+3)}, {sr(S_HKV)}, 20")
    A(f"s_add_u32 {sr(S_KOFF)}, {sr(S_KOFF)}, {sr(S_TMP+3)}")
    A(f"s_lshl_b32 {sr(S_TMP+3)}, {sr(S_SW)}, 12")
    A(f"s_add_u32 {sr(S_KOFF)}, {sr(S_KOFF)}, {sr(S_TMP+3)}")
    DYN, NS, CAP = o["dyn"], o["S"], o["cap"]
    POOL = 64 - 4 * NS
    S_NR, S_OFF, S_DYN, S_CNT, S_CL, S_FD = 28, 32, 36, 37, 38, 76
    V_CLM = V_S + 36
    if DYN:
        assert 4 * CAP >= POOL and 8 < NS <= 13
        A(f"s_add_u32 {sr(S_DYN)}, {sr(S_KOFF)}, {4*NS*16384}")
        A(f"s_mul_i32 {sr(S_TMP+3)}, {sr(S_S)}, {NS*16384}")
        A(f"s_lshl_b32 {sr(S_CNT)}, {sr(S_HKV)}, 3")
        A(f"s_add_u32 {sr(S_CNT)}, {sr(S_CNT)}, {sr(S_B)}")
        A(f"s_lshl_b32 {sr(S_CNT)}, {sr(S_CNT)}, 2")
        A(f"s_add_u32 {sr(S_CNT)}, {sr(S_CNT)}, {sr(S_SW)}")
        A(f"s_lshl_b32 {sr(S_CNT)}, {sr(S_CNT)}, 7")
        A(f"s_add_u32 {sr(S_CNT)}, {sr(S_CNT)}, {WS_CNT}")
    else:
        A(f"s_lshl_b32 {sr(S_TMP+3)}, {sr(S_S)}, 18")
    A(f"s_add_u32 {sr(S_KOFF)}, {sr(S_KOFF)}, {sr(S_TMP+3)}")
    A(f"s_lshl_b32 {sr(S_RING)}, {sr(S_SW)}, 15")
    S_ROT = 4
    if o["rot"] == 1:
        A(f"s_lshl_b32 {sr(S_ROT)}, {sr(S_HKV)}, 1")
        A(f"s_add_u32 {sr(S_ROT)}, {sr(S_ROT)}, {sr(S_IDX)}")
    elif o["rot"] == 2:
        A(f"s_mul_i32 {sr(S_ROT)}, {sr(S_IDX)}, 5")
        A(f"s_lshl_b32 {sr(S_TMP+3)}, {sr(S_HKV)}, 1")
        A(f"s_add_u32 {sr(S_ROT)}, {sr(S_ROT)}, {sr(S_TMP+3)}")
    if o["rot"]: A(f"s_lshl_b32 {sr(S_ROT)}, {sr(S_ROT)}, 14")
    A(f"v_xor_b32 {vr(T)}, {vr(V_J)}, {vr(V_G)}")
    A(f"v_lshlrev_b32 {vr(T+1)}, 8, {vr(V_G)}")
    A(f"v_lshlrev_b32 {vr(T+2)}, 8, {vr(V_J)}")
    A(f"v_add_u32 {vr(T+2)}, {sr(S_RING)}, {vr(T+2)}")
    for a in range(4):
        A(f"v_xor_b32 {vr(T+3)}, {4*a}, {vr(T)}")
        A(f"v_lshlrev_b32 {vr(T+3)}, 4, {vr(T+3)}")
        A(f"v_add_u32 {vr(V_KD+a)}, {vr(T+1)}, {vr(T+3)}")
        A(f"v_add_u32 {vr(V_KR+a)}, {vr(T+2)}, {vr(T+3)}")
    A(f"v_lshlrev_b32 {vr(V_VO)}, 10, {vr(V_G)}")
    A(f"v_lshl_add_u32 {vr(V_VO)}, {vr(V_J)}, 4, {vr(V_VO)}")
    A("s_waitcnt lgkmcnt(0)")
    srd(SK, 1, 64 << 20)
    srd(SV, 2, 64 << 20)
    if o["debug"] or DYN: srd(SWS, 12, WS_SIZE)
    if not o["kfirst"]: A("s_barrier")
    stamp("start")
    NV1 = o["nv1"]
    seq = [("K", t) for t in range(8)] + [("V", t) for t in range(NV1)] + [("K", t) for t in range(8, 16)] + [("V", t) for t in range(NV1, 16)]
    if DYN:
        seq = [("K", t) for t in range(8)] + [("V", t) for t in range(NV1)] + [("K", t) for t in range(8, NS)] + [("V", t) for t in range(NV1, NS - 1)]
        for j in range(CAP): seq += [("K", NS + j), ("V", NS + j - 1)]
        seq += [("V", NS + CAP - 1)]
    NSEQ = len(seq)
    pos = {k: n for n, k in enumerate(seq)}
    ops = {}
    qk_done, pv_done = set(), set()
    D = o["D"]
    def Dat(n): return D if n < o["nsw"] else o["D2"]
    def land_n(m):
        for n in range(NSEQ):
            if n - Dat(n) >= m: return n
        return NSEQ
    def vslot(t): return V_V + 16 * (t if t < 7 else (t - 7) % 7)
    def sslot(t):
        if DYN and t >= NS: return V_S + 4 * (5, 6, 8)[(t - NS) % 3]
        return V_S + 4 * (t if t < 8 else (t - 8 if t < 8 + NV1 else t - NV1))
    def nr(j): return S_NR + j % 4
    known = [-1]
    def issue(n):
        k, t = seq[n]
        if k == "K" and t >= 8: assert (t - 8) in qk_done, (n, t)
        if k == "V" and t >= 7: assert (t - 7) in pv_done, (n, t)
        dj = t - NS if DYN and t >= NS else -1
        if dj >= 0 and k == "K":
            A.wait_vm(max(ops[("C", dj)], ops[seq[n - Dat(n)]]))
            A(f"v_readfirstlane_b32 {sr(S_CL)}, {vr(V_CLM + dj % 3)}")
            A(f"s_add_u32 {sr(S_TMP+4)}, {sr(S_RING)}, {(t&7)*4096}")
            A(f"s_mov_b32 m0, {sr(S_TMP+4)}")
            A(f"s_cmp_lt_u32 {sr(S_CL)}, {POOL}")
            A(f"s_cselect_b32 {sr(nr(dj))}, {sr(nr(dj-1)) if dj else hex(64 << 20)}, 0")
            A(f"s_min_u32 {sr(S_CL)}, {sr(S_CL)}, {POOL-1}")
            A(f"s_lshl_b32 {sr(S_CL)}, {sr(S_CL)}, 14")
            A(f"s_add_u32 {sr(S_OFF + dj % 4)}, {sr(S_DYN)}, {sr(S_CL)}")
            A(f"s_mov_b32 {sr(SK+2)}, {sr(nr(dj))}")
            known[0] = dj
            so = S_OFF + dj % 4
        else:
            if n >= Dat(n):
                A.wait_vm(ops[seq[n - Dat(n)]])
            if k == "K":
                A(f"s_add_u32 {sr(S_TMP+4)}, {sr(S_RING)}, {(t&7)*4096}")
                A(f"s_mov_b32 m0, {sr(S_TMP+4)}")
            so = S_TMP + 5
            if dj >= 0:
                A(f"s_mov_b32 {sr(SV+2)}, {sr(nr(dj))}")
                so = S_OFF + dj % 4
            elif o["rot"]:
                A(f"s_add_u32 {sr(S_TMP+5)}, {sr(S_ROT)}, {t*16384}")
                A(f"s_and_b32 {sr(S_TMP+5)}, {sr(S_TMP+5)}, 0x3ffff")
                A(f"s_add_u32 {sr(S_TMP+5)}, {sr(S_TMP+5)}, {sr(S_KOFF)}")
            else:
                A(f"s_add_u32 {sr(S_TMP+5)}, {sr(S_KOFF)}, {t*16384}")
        if k == "K":
            for a in range(4):
                ops[(k, t)] = A.vmem(f"buffer_load_dwordx4 {vr(V_KD+a)}, {sr(SK,4)}, {sr(so)} offen offset:{a*1024} nt lds")
        else:
            base = vslot(t)
            for u in range(4):
                ops[(k, t)] = A.vmem(f"buffer_load_dwordx4 {vr(base+4*u,4)}, {vr(V_VO)}, {sr(SV,4)}, {sr(so)} offen offset:{u*256} nt")
        if DYN:
            for j in range(CAP):
                nk = pos[("K", NS + j)]
                if nk - Dat(nk) - o.get("cearly", 0) == n:
                    assert n > o["qpos"] and known[0] >= j - 3
                    A(f"v_mov_b32 {vr(V_CLM + j % 3)}, 1")
                    if known[0] >= 0: A(f"s_mov_b32 {sr(SWS+2)}, {sr(nr(known[0]))}")
                    A("s_mov_b64 exec, 1")
                    ops[("C", j)] = A.vmem(f"buffer_atomic_add {vr(V_CLM + j % 3)}, off, {sr(SWS,4)}, {sr(S_CNT)} sc0")
                    A("s_mov_b64 exec, -1")
    SC = hex(f2u(128 ** -0.5))
    def k_read(t):
        A.wait_vm(ops[("K", t)])
        for ks in range(4):
            A(f"ds_read_b128 {vr(V_KF+16*(t&1)+4*ks,4)}, {vr(V_KR+ks)} offset:{(t&7)*4096}")
    def k_mfma(t):
        s_ = sslot(t)
        if 8 <= t < 8 + NV1: assert (t - 8) in pv_done, t
        qk_done.add(t)
        for ks in range(4):
            c = "0" if ks == 0 else vr(s_, 4)
            A(f"v_mfma_f32_16x16x32_bf16 {vr(s_,4)}, {vr(V_KF+16*(t&1)+4*ks,4)}, {vr(V_Q+4*ks,4)}, {c}")
    def s_round(tiles):
        regs = [sslot(t) + r for t in tiles for r in range(4)]
        P = T
        A.nop(4)
        for ph in range(2):
            for i in range(0, len(regs), 2):
                A(f"v_cvt_pk_bf16_f32 {vr(P+i//2)}, {vr(regs[i])}, {vr(regs[i+1])}")
            for i in range(0, len(regs), 2):
                A(f"v_lshlrev_b32 {vr(regs[i])}, 16, {vr(P+i//2)}")
                A(f"v_and_b32 {vr(regs[i+1])}, 0xffff0000, {vr(P+i//2)}")
            if ph == 0:
                for r in regs:
                    A(f"v_mul_f32 {vr(r)}, {SC}, {vr(r)}")
    def qk_burst(tiles):
        k_read(tiles[0])
        for i, t in enumerate(tiles):
            if i + 1 < len(tiles):
                k_read(tiles[i + 1])
                A("s_waitcnt lgkmcnt(4)")
            else:
                A("s_waitcnt lgkmcnt(0)")
            k_mfma(t)
    pend = []
    def qk_one(t):
        k_read(t)
        if pend:
            s_round(list(pend)); pend.clear()
        A("s_waitcnt lgkmcnt(0)")
        k_mfma(t)
        pend.append(t)
    def softmax(tiles, first):
        regs = [sslot(t) + r for t in tiles for r in range(4)]
        P = T
        n = len(regs)
        ch = [regs[i::4] for i in range(4)]
        for i in range(4):
            c = ch[i]
            A(f"v_max3_f32 {vr(P+i)}, {vr(c[0])}, {vr(c[1])}, {vr(c[2])}")
        k = 3
        while k < len(ch[0]):
            for i in range(4):
                c = ch[i]
                if k + 1 < len(c):
                    A(f"v_max3_f32 {vr(P+i)}, {vr(P+i)}, {vr(c[k])}, {vr(c[k+1])}")
                else:
                    A(f"v_max_f32 {vr(P+i)}, {vr(P+i)}, {vr(c[k])}")
            k += 2
        A(f"v_max3_f32 {vr(P+4)}, {vr(P)}, {vr(P+1)}, {vr(P+2)}")
        A(f"v_max_f32 {vr(P+4)}, {vr(P+4)}, {vr(P+3)}")
        xreduce("v_max_f32", [P+4], [P])
        if not first:
            A(f"v_max_f32 {vr(P+4)}, {vr(P+4)}, {vr(V_MW)}")
            A(f"v_sub_f32 {vr(P+5)}, {vr(V_MW)}, {vr(P+4)}")
            A(f"v_mul_f32 {vr(P+5)}, {sr(S_C0)}, {vr(P+5)}")
            A(f"v_exp_f32 {vr(P+5)}, {vr(P+5)}")
        A(f"v_mov_b32 {vr(V_MW)}, {vr(P+4)}")
        A(f"v_mul_f32 {vr(P)}, {hex(f2u(-LOG2E))}, {vr(P+4)}")
        if not first:
            for h in range(4):
                A(f"v_readlane_b32 {sr(S_F+h)}, {vr(P+5)}, {h}")
        A(f"v_mov_b32 {vr(P+6)}, {sr(S_C0)}")
        for r in regs:
            A(f"v_fma_f32 {vr(r)}, {vr(r)}, {vr(P+6)}, {vr(P)}")
        for r in regs:
            A(f"v_exp_f32 {vr(r)}, {vr(r)}")
        for i in range(4):
            A(f"v_add_f32 {vr(P+1+i)}, {vr(ch[i][0])}, {vr(ch[i][1])}")
        for k in range(2, len(ch[0])):
            for i in range(4):
                A(f"v_add_f32 {vr(P+1+i)}, {vr(P+1+i)}, {vr(ch[i][k])}")
        A(f"v_add_f32 {vr(P+1)}, {vr(P+1)}, {vr(P+2)}")
        A(f"v_add_f32 {vr(P+3)}, {vr(P+3)}, {vr(P+4)}")
        A(f"v_add_f32 {vr(P+1)}, {vr(P+1)}, {vr(P+3)}")
        if not DYN: xreduce("v_add_f32", [P+1], [P+2])
        if first:
            A(f"v_mov_b32 {vr(V_LS)}, {vr(P+1)}")
        else:
            A(f"v_fma_f32 {vr(V_LS)}, {vr(V_LS)}, {vr(P+5)}, {vr(P+1)}")
            if not DYN: publish()
            for r in range(8):
                A(f"v_mul_f32 {vr(V_ACC+r)}, {sr(S_F+(r&3))}, {vr(V_ACC+r)}")
        for r in regs:
            A(f"v_cvt_pk_bf16_f32 {vr(r)}, {vr(r)}, {vr(r)}")
    def publish():
        P = T
        A(f"v_mov_b32 {vr(P+3)}, {vr(V_LS)}")
        A(f"s_lshl_b32 {sr(S_TMP+2)}, {sr(S_SW)}, 5")
        A(f"s_add_u32 {sr(S_TMP+2)}, {sr(S_TMP+2)}, {L_STAT}")
        A(f"v_lshl_add_u32 {vr(P+4)}, v0, 3, {sr(S_TMP+2)}")
        if DYN: xreduce("v_add_f32", [P+3], [P+2])
        A(f"v_mov_b32 {vr(P+2)}, {vr(V_MW)}")
        A("s_mov_b64 exec, 15")
        A(f"ds_write_b64 {vr(P+4)}, {vr(P+2,2)}")
        A("s_mov_b64 exec, -1")
        lds_inc(F_ST, P+6)
        stamp("pub")
    def dyn_qk(j):
        t = NS + j
        assert known[0] >= min(j + 1, CAP - 1) and (t - 3 in pv_done)
        sk = A.newlabel("Ldq")
        A(f"s_cmp_eq_u32 {sr(nr(j))}, 0")
        A(f"s_cbranch_scc1 {sk}")
        k_read(t)
        A("s_waitcnt lgkmcnt(0)")
        k_mfma(t)
        A.nop(8)
        s_round([t])
        r = [sslot(t) + i for i in range(4)]
        P = T
        A(f"v_max3_f32 {vr(P+4)}, {vr(r[0])}, {vr(r[1])}, {vr(r[2])}")
        A(f"v_max3_f32 {vr(P+4)}, {vr(P+4)}, {vr(r[3])}, {vr(V_MW)}")
        xreduce("v_max_f32", [P+4], [P])
        A(f"v_sub_f32 {vr(P+5)}, {vr(V_MW)}, {vr(P+4)}")
        A(f"v_mul_f32 {vr(P+5)}, {sr(S_C0)}, {vr(P+5)}")
        A(f"v_exp_f32 {vr(P+5)}, {vr(P+5)}")
        A(f"v_mov_b32 {vr(V_MW)}, {vr(P+4)}")
        A(f"v_mul_f32 {vr(P)}, {hex(f2u(-LOG2E))}, {vr(P+4)}")
        A(f"v_mov_b32 {vr(P+6)}, {sr(S_C0)}")
        for x in r: A(f"v_fma_f32 {vr(x)}, {vr(x)}, {vr(P+6)}, {vr(P)}")
        for x in r: A(f"v_exp_f32 {vr(x)}, {vr(x)}")
        for h in range(4):
            A(f"v_readlane_b32 {sr(S_FD + 4*(j%3) + h)}, {vr(P+5)}, {h}")
        A(f"v_add_f32 {vr(P+1)}, {vr(r[0])}, {vr(r[1])}")
        A(f"v_add_f32 {vr(P+2)}, {vr(r[2])}, {vr(r[3])}")
        A(f"v_add_f32 {vr(P+1)}, {vr(P+1)}, {vr(P+2)}")
        A(f"v_fma_f32 {vr(V_LS)}, {vr(V_LS)}, {vr(P+5)}, {vr(P+1)}")
        for x in r: A(f"v_cvt_pk_bf16_f32 {vr(x)}, {vr(x)}, {vr(x)}")
        if j + 1 < CAP:
            A(f"s_cmp_lg_u32 {sr(nr(j+1))}, 0")
            A(f"s_cbranch_scc1 {sk}")
        publish()
        A.label(sk)
    def dyn_pub0():
        sk = A.newlabel("Ldp")
        assert known[0] >= 0
        A(f"s_cmp_lg_u32 {sr(nr(0))}, 0")
        A(f"s_cbranch_scc1 {sk}")
        publish()
        A.label(sk)
    def dyn_pv(t):
        j = t - NS
        if j >= 0:
            for r in range(8):
                A(f"v_mul_f32 {vr(V_ACC+r)}, {sr(S_FD + 4*(j%3) + (r&3))}, {vr(V_ACC+r)}")
        pv(t)
        if o["debug"] and j >= -1: A(f"v_writelane_b32 v{V_STAMP}, {j+2}, 30")
        if -1 <= j < CAP - 1:
            assert known[0] >= j + 1
            A(f"s_cmp_eq_u32 {sr(nr(j+1))}, 0")
            A("s_cbranch_scc1 L_epi")
    flip = [0]
    def pv(t):
        base = vslot(t)
        s_ = sslot(t)
        pv_done.add(t)
        A.wait_vm(ops[("V", t)])
        for u in range(4):
            X = V_XA if flip[0] == 0 else V_XB
            flip[0] ^= 1
            A(f"v_and_b32 {vr(X+2)}, {vr(s_+u)}, {vr(V_M0)}")
            A(f"v_and_b32 {vr(X+3)}, {vr(s_+u)}, {vr(V_M1)}")
            A.nop(2)
            A(f"v_mfma_f32_16x16x32_bf16 {vr(V_ACC,4)}, {vr(X+2,4)}, {vr(base+4*u,4)}, {vr(V_ACC,4)}")
            A(f"v_mfma_f32_16x16x32_bf16 {vr(V_ACC+4,4)}, {vr(X,4)}, {vr(base+4*u,4)}, {vr(V_ACC+4,4)}")
    def q_get():
        A(f"v_and_b32 {vr(T+2)}, 3, {vr(V_J)}")
        A(f"v_lshlrev_b32 {vr(T+2)}, 8, {vr(T+2)}")
        A(f"v_lshl_add_u32 {vr(T+2)}, {vr(V_G)}, 4, {vr(T+2)}")
        A(f"v_add_u32 {vr(T+2)}, {L_Q}, {vr(T+2)}")
        stamp("q_wait")
        lds_wait(F_Q2, 1, T)
        for ks in range(4):
            A(f"ds_read_b128 {vr(V_Q+4*ks,4)}, {vr(T+2)} offset:{64*ks}")
        stamp("q_got")
    qp = o["qpos"]
    quanta = {n: [] for n in range(NSEQ + 1)}
    quanta[qp] += [q_get, lambda: qk_burst([0, 1, 2, 3])]
    quanta[qp+1] += [lambda: qk_burst([4, 5, 6, 7]), lambda: s_round([0, 1, 2, 3])]
    K8 = 8 + NV1
    NST = NS if DYN else 16
    quanta[qp+2] += [lambda: s_round([4, 5, 6, 7]), lambda: softmax(list(range(NV1)), True), lambda: stamp("sm1")]
    assert qp < K8
    for t in range(NV1):
        quanta[max(qp + 3 + t // 2, land_n(8 + t))] += [lambda t=t: pv(t)]
    for j in range(NST - 8):
        quanta[max(land_n(K8 + j), qp + 7)] += [lambda j=j: qk_one(8 + j)]
    nq = max(land_n(K8 + NST - 9), qp + 7)
    def fin_round():
        A.nop(8)
        s_round(list(pend)); pend.clear()
    quanta[nq] += [fin_round, lambda: softmax(list(range(NV1, NST)), False), lambda: stamp("sm2")]
    tail = []
    if DYN:
        quanta[max(nq, pos[("K", NS)])] += [dyn_pub0]
        ev = []
        for t in range(NV1, NS + CAP):
            ev.append((max(nq + 1, pos[("V", t)] + D), 1, t, lambda t=t: dyn_pv(t)))
        for j in range(CAP):
            ev.append((pos[("K", NS + j)] + D, 0, j, lambda j=j: dyn_qk(j)))
        for n, _, _, f in sorted(ev, key=lambda e: e[:3]):
            quanta[min(n, NSEQ)] += [f]
    else:
        for t in range(NV1, 16):
            n = max(nq + 1, land_n(16 + t))
            if n <= 31: quanta[n] += [lambda t=t: pv(t)]
            else: tail.append(t)
        assert not quanta[32]
    for n in range(NSEQ):
        issue(n)
        if o["kfirst"] and n == o["kfirst"] - 1: A("s_barrier")
        if n == D - 1:
            A(f"v_lshrrev_b32 {vr(T)}, 2, {vr(V_J)}")
            A(f"v_and_b32 {vr(T+1)}, 1, {vr(T)}")
            A(f"v_lshlrev_b32 {vr(T+1)}, 4, {vr(T+1)}")
            A(f"v_mov_b32 {vr(T+2)}, 0xffff")
            A(f"v_lshlrev_b32 {vr(T+2)}, {vr(T+1)}, {vr(T+2)}")
            A(f"v_cmp_gt_u32 vcc, 2, {vr(T)}")
            A.nop(2)
            A(f"v_cndmask_b32 {vr(V_M0)}, 0, {vr(T+2)}, vcc")
            A(f"v_cndmask_b32 {vr(V_M1)}, {vr(T+2)}, 0, vcc")
            for r in (V_XA, V_XA+1, V_XA+4, V_XA+5, V_XB, V_XB+1, V_XB+4, V_XB+5):
                A(f"v_mov_b32 {vr(r)}, 0")
            for r in range(8):
                A(f"v_mov_b32 {vr(V_ACC+r)}, 0")
            A(f"s_mov_b32 {sr(S_C0)}, {hex(f2u(LOG2E))}")
            stamp("ln_done")
        if n in (3, 5, 7, 9, 13, 17, 21, 25, 31): stamp(f"iss{n}")
        for f in quanta[n]: f()
    if DYN:
        for f in quanta[NSEQ]: f()
        A.label("L_epi")
        stamp("pv_done")
    A(f"s_lshl_b32 {sr(S_TMP+2)}, {sr(S_SW)}, 4")
    A(f"s_add_u32 {sr(S_TMP+2)}, {sr(S_TMP+2)}, {L_FAC}")
    A(f"v_mov_b32 {vr(T+2)}, {sr(S_TMP+2)}")
    A(f"v_lshlrev_b32 {vr(T+3)}, 3, v0")
    A(f"v_add_u32 {vr(T+3)}, {sr(S_RING)}, {vr(T+3)}")
    for t in tail[:-1]: pv(t)
    lds_wait(F_FAC, 1, T, sleep=0)
    FAC = T + 4
    A(f"ds_read_b128 {vr(FAC,4)}, {vr(T+2)}")
    stamp("fac_got")
    if DYN:
        A("s_waitcnt vmcnt(0)")
    else:
        pv(tail[-1])
        stamp("pv_done")
    A("s_waitcnt lgkmcnt(0)")
    A.nop(10)
    PO = V_KF
    for r in range(4):
        for hf in range(2):
            A(f"v_mul_f32 {vr(PO+2*r+hf)}, {vr(FAC+r)}, {vr(V_ACC+4*hf+r)}")
    for r in range(4):
        A(f"ds_write_b64 {vr(T+3)}, {vr(PO+2*r,2)} offset:{512*r}")
    A("s_waitcnt lgkmcnt(0)")
    A("s_barrier")

    A.label("L_fin")
    if o["debug"]:
        A(f"s_memrealtime s[100:101]")
        A("s_waitcnt lgkmcnt(0)")
        A(f"v_writelane_b32 v{V_STAMP}, s100, 31")
        A(f"s_mov_b32 {sr(SWS+2)}, {WS_SIZE}")
        A(f"s_lshl_b32 {sr(S_TMP+2)}, s4, 3")
        A(f"s_add_u32 {sr(S_TMP+2)}, {sr(S_TMP+2)}, {sr(S_WAVE)}")
        A(f"s_lshl_b32 {sr(S_TMP+2)}, {sr(S_TMP+2)}, 8")
        A(f"s_add_u32 {sr(S_TMP+2)}, {sr(S_TMP+2)}, {WS_DBG}")
        A(f"v_lshlrev_b32 v254, 2, v0")
        A(f"buffer_store_dword v{V_STAMP}, v254, {sr(SWS,4)}, {sr(S_TMP+2)} offen")
    A.label("L_end")
    A("s_endpgm")

    A.L.append('.section .rodata,"a"')
    A.L.append(".p2align 6")
    A.L.append(f".amdhsa_kernel {NAME}_kernel")
    A.L.append("  .amdhsa_next_free_vgpr 256")
    A.L.append("  .amdhsa_next_free_sgpr 102")
    A.L.append("  .amdhsa_accum_offset 256")
    A.L.append("  .amdhsa_group_segment_fixed_size 0")
    A.L.append("  .amdhsa_kernarg_size 104")
    A.L.append("  .amdhsa_user_sgpr_count 2")
    A.L.append("  .amdhsa_user_sgpr_kernarg_segment_ptr 1")
    A.L.append("  .amdhsa_system_sgpr_workgroup_id_x 1")
    A.L.append("  .amdhsa_float_denorm_mode_32 3")
    A.L.append(".end_amdhsa_kernel")
    if opts is not None: opts["stamps"] = stamps
    return "\n".join(A.L) + "\n"

if __name__ == "__main__":
    out = sys.argv[1] if len(sys.argv) > 1 else "k3.s"
    opts = {}
    for a in sys.argv[2:]:
        k, v = a.split("="); opts[k] = eval(v)
    open(out, "w").write(gen(opts))
    if opts.get("debug"):
        open(out + ".stamps", "w").write(" ".join(opts["stamps"]["a"]) + "\n" + " ".join(opts["stamps"]["s"]) + "\n")
    print("wrote", out)
```

```python
import sys, struct, math

NAME = "sequential_preLN__gqa_block_cached__mixer_token_mlp__decode"

def f2u(x):
    return struct.unpack("<I", struct.pack("<f", x))[0]

WS_QM = 0x00000
WS_ST = 0x20000
WS_CNT = 0x28000
WS_R1 = 0x40000
WS_GT = 0x80000
WS_R2 = 0x200000
WS_DBG = 0x100000
WS_SIZE = 0x400000

RING = 32768
L_STG = 4 * RING
L_XN = L_STG + 16384
L_GT = L_STG
L_QRED = L_XN + 8192
L_Q = L_QRED + 2048
L_STAT = L_Q + 1024
L_FAC = L_STAT + 128
L_FLAG = L_FAC + 64
L_ORED = L_FLAG + 64
L_H = L_ORED + 2048
L_W = L_H + 2048
LDS_SIZE = L_W + 128
assert LDS_SIZE <= 163840, LDS_SIZE
F_XN, F_Q1, F_Q2, F_ST, F_FAC, F_NONCE, F_WO, F_WOL, F_W, F_SD = [L_FLAG + 4 * i for i in range(10)]

E0 = 108
NEXP = 24
GT_HALF = NEXP * 128
SPIN_LIMIT = 200000

class Asm:
    def __init__(self):
        self.L = []
        self.vm = 0
        self.lab = 0
    def __call__(self, s):
        self.L.append("  " + s)
    def label(self, n):
        self.L.append(n + ":")
    def newlabel(self, p="L"):
        self.lab += 1
        return f"{p}_{self.lab}"
    def vmem(self, s):
        self(s); self.vm += 1
        return self.vm
    def wait_vm(self, idx, extra=0):
        n = self.vm - idx + extra
        assert 0 <= n <= 63, n
        self(f"s_waitcnt vmcnt({n})")
    def nop(self, n):
        while n > 0:
            k = min(n, 16)
            self(f"s_nop {k-1}")
            n -= k
    def comment(self, s):
        self.L.append("  ; " + s)

def vr(a, n=1):
    return f"v{a}" if n == 1 else f"v[{a}:{a+n-1}]"
def sr(a, n=1):
    return f"s{a}" if n == 1 else f"s[{a}:{a+n-1}]"

DPPM = "row_mask:0xf bank_mask:0xf"
LOG2E = math.log2(math.e)

def gen(opts=None):
    o = dict(debug=False, D=3, qpos=12, wnt=True, pst=2, pg=0, skip='', rot=0, wolate=1, D2=3, nsw=14, nv1=7, kfirst=0, r1sleep=0, nb1=1, nb2=1, r1split=1, dyn=0, S=12, cap=8, remap=5, il=1, stpre=0, r2nw=0, stag1=0, stag2=0, stsleep=20, r1ad=(8, 20), qmask=4, qdelay=16)
    if opts: o.update(opts)
    A = Asm()
    stamps = {"s": [], "a": []}
    cur = ["c"]
    V_STAMP = 255
    def stamp(name):
        if not o["debug"]: return
        lst = stamps[cur[0]]
        if name in lst: k = lst.index(name)
        else:
            k = len(lst); lst.append(name)
        assert k < 30
        A(f"s_memrealtime s[100:101]")
        A("s_waitcnt lgkmcnt(0)")
        A(f"v_writelane_b32 v{V_STAMP}, s100, {k}")
    S_WAVE = 3
    SK, SV, SWQ, SWO, SWS, SX, SDBG, SOUT, SW1, SB1, SW2 = 8, 12, 16, 20, 24, 28, 32, 36, 40, 44, 48
    S_HKV, S_IDX, S_B, S_S, S_KOFF, S_RING, S_NONCE, S_B2 = 52, 53, 54, 55, 56, 57, 58, 59
    S_RT = 60
    S_SPIN = 63
    S_P = 64
    S_TMP = 90
    S_F = 64
    S_C0 = 68
    V_J, V_G, V_L16 = 12, 13, 1

    A.L.append(f"; @launch grid=(256,1,1) block=(512,1,1) lds={LDS_SIZE}")
    A.L.append('.amdgcn_target "amdgcn-amd-amdhsa--gfx950"')
    A.L.append(".text")
    A.L.append(f".globl {NAME}_kernel")
    A.L.append(".p2align 8")
    A.L.append(f".type {NAME}_kernel,@function")
    A.label(f"{NAME}_kernel")
    A("s_cmp_ge_u32 s2, 256")
    A("s_cbranch_scc1 L_end")
    A(f"s_load_dwordx16 {sr(S_P,16)}, s[0:1], 0")
    A(f"s_load_dwordx8 {sr(S_P+16,8)}, s[0:1], 64")
    A(f"s_load_dwordx2 {sr(S_P+24,2)}, s[0:1], 96")
    A(f"s_memrealtime {sr(S_RT,2)}")
    A("v_lshrrev_b32 v1, 6, v0")
    A("v_and_b32 v0, 63, v0")
    if o["debug"]: A(f"v_mov_b32 v{V_STAMP}, 0")
    A(f"v_readfirstlane_b32 {sr(S_WAVE)}, v1")
    A(f"v_and_b32 {vr(V_J)}, 15, v0")
    A(f"v_lshrrev_b32 {vr(V_G)}, 4, v0")
    A("s_mov_b32 s4, s2")
    if o["remap"] in (2, 3, 5):
        t0, t1, t2, t3 = S_TMP, S_TMP+1, S_TMP+2, S_TMP+3
        A(f"s_and_b32 {sr(t0)}, s2, 7")
        if o["remap"] == 5:
            A(f"s_lshr_b32 {sr(t1)}, s2, 5")
            A(f"s_lshr_b32 {sr(t2)}, s2, 3")
            A(f"s_and_b32 {sr(t2)}, {sr(t2)}, 3")
        else:
            A(f"s_lshr_b32 {sr(t1)}, s2, 3")
            A(f"s_and_b32 {sr(t1)}, {sr(t1)}, 7")
            A(f"s_lshr_b32 {sr(t2)}, s2, 6")
        if o["remap"] == 2: A(f"s_xor_b32 {sr(t0)}, {sr(t0)}, {sr(t1)}")
        A(f"s_lshl_b32 {sr(t0)}, {sr(t0)}, 2")
        A(f"s_or_b32 {sr(t0)}, {sr(t0)}, {sr(t2)}")
        A(f"s_lshl_b32 {sr(t0)}, {sr(t0)}, 3")
        A(f"s_or_b32 s2, {sr(t0)}, {sr(t1)}")
    elif o["remap"] == 4:
        t0, t1, t2, t3 = S_TMP, S_TMP+1, S_TMP+2, S_TMP+3
        A(f"s_lshr_b32 {sr(t1)}, s2, 2")
        A(f"s_and_b32 {sr(t1)}, {sr(t1)}, 1")
        A(f"s_lshr_b32 {sr(t2)}, s2, 3")
        A(f"s_add_u32 {sr(t0)}, s2, {sr(t2)}")
        A(f"s_and_b32 {sr(t0)}, {sr(t0)}, 3")
        A(f"s_lshl_b32 {sr(t2)}, {sr(t2)}, 1")
        A(f"s_or_b32 {sr(t2)}, {sr(t2)}, {sr(t1)}")
        A(f"s_lshr_b32 {sr(t3)}, {sr(t2)}, 3")
        A(f"s_lshl_b32 {sr(t3)}, {sr(t3)}, 2")
        A(f"s_or_b32 {sr(t3)}, {sr(t3)}, {sr(t0)}")
        A(f"s_lshl_b32 {sr(t3)}, {sr(t3)}, 3")
        A(f"s_and_b32 {sr(t2)}, {sr(t2)}, 7")
        A(f"s_or_b32 s2, {sr(t3)}, {sr(t2)}")
    elif o["remap"]:
        t0, t1, t2, t3 = S_TMP, S_TMP+1, S_TMP+2, S_TMP+3
        A(f"s_lshr_b32 {sr(t0)}, s2, 1")
        A(f"s_xor_b32 {sr(t1)}, {sr(t0)}, s2")
        A(f"s_and_b32 {sr(t1)}, {sr(t1)}, 1")
        A(f"s_and_b32 {sr(t0)}, {sr(t0)}, 3")
        A(f"s_lshr_b32 {sr(t2)}, s2, 3")
        A(f"s_add_u32 {sr(t0)}, {sr(t0)}, {sr(t2)}")
        A(f"s_and_b32 {sr(t0)}, {sr(t0)}, 3")
        A(f"s_lshl_b32 {sr(t2)}, {sr(t2)}, 1")
        A(f"s_or_b32 {sr(t2)}, {sr(t2)}, {sr(t1)}")
        A(f"s_lshr_b32 {sr(t3)}, {sr(t2)}, 3")
        A(f"s_lshl_b32 {sr(t3)}, {sr(t3)}, 2")
        A(f"s_or_b32 {sr(t3)}, {sr(t3)}, {sr(t0)}")
        A(f"s_lshl_b32 {sr(t3)}, {sr(t3)}, 3")
        A(f"s_and_b32 {sr(t2)}, {sr(t2)}, 7")
        A(f"s_or_b32 s2, {sr(t3)}, {sr(t2)}")
    A(f"s_and_b32 {sr(S_HKV)}, s2, 7")
    A(f"s_lshr_b32 {sr(S_IDX)}, s2, 3")
    A(f"s_lshr_b32 {sr(S_B)}, {sr(S_IDX)}, 2")
    A(f"s_and_b32 {sr(S_S)}, {sr(S_IDX)}, 3")
    def srd(dst, p, nbytes):
        A(f"s_mov_b32 {sr(dst)}, {sr(S_P+2*p)}")
        A(f"s_and_b32 {sr(dst+1)}, {sr(S_P+2*p+1)}, 0xffff")
        A(f"s_mov_b32 {sr(dst+2)}, {nbytes}")
        A(f"s_mov_b32 {sr(dst+3)}, 0x20000")

    def xreduce(op, regs, tmps, steps=("v_permlane16_swap_b32", "v_permlane32_swap_b32")):
        for pl in steps:
            for r, t in zip(regs, tmps):
                A(f"v_mov_b32 {vr(t)}, {vr(r)}")
            A.nop(2)
            for r, t in zip(regs, tmps):
                A(f"{pl} {vr(r)}, {vr(t)}")
            A.nop(1)
            for r, t in zip(regs, tmps):
                A(f"{op} {vr(r)}, {vr(r)}, {vr(t)}")
    def allreduce(op, regs, tmps):
        for dpp in ("quad_perm:[1,0,3,2]", "quad_perm:[2,3,0,1]", "row_half_mirror", "row_mirror"):
            A.nop(max(0, 2 - (len(regs) - 1)))
            for r in regs:
                A(f"{op}_dpp {vr(r)}, {vr(r)}, {vr(r)} {dpp} {DPPM}")
        xreduce(op, regs, tmps)
    def rne1(dst, src):
        A(f"v_cvt_pk_bf16_f32 {vr(dst)}, {vr(src)}, {vr(src)}")
        A(f"v_lshlrev_b32 {vr(dst)}, 16, {vr(dst)}")
    def rne2(a, b, t):
        A(f"v_cvt_pk_bf16_f32 {vr(t)}, {vr(a)}, {vr(b)}")
        A(f"v_lshlrev_b32 {vr(a)}, 16, {vr(t)}")
        A(f"v_and_b32 {vr(b)}, 0xffff0000, {vr(t)}")
    def unpack(dst, src, n):
        for i in range(n):
            A(f"v_lshlrev_b32 {vr(dst+2*i)}, 16, {vr(src+i)}")
            A(f"v_and_b32 {vr(dst+2*i+1)}, 0xffff0000, {vr(src+i)}")
    def layernorm(x, out, t):
        A(f"v_add_f32 {vr(t)}, {vr(x)}, {vr(x+1)}")
        A(f"v_add_f32 {vr(t+1)}, {vr(x+2)}, {vr(x+3)}")
        A(f"v_add_f32 {vr(t+2)}, {vr(x+4)}, {vr(x+5)}")
        A(f"v_add_f32 {vr(t+3)}, {vr(x+6)}, {vr(x+7)}")
        A(f"v_add_f32 {vr(t)}, {vr(t)}, {vr(t+1)}")
        A(f"v_add_f32 {vr(t+2)}, {vr(t+2)}, {vr(t+3)}")
        A(f"v_add_f32 {vr(t)}, {vr(t)}, {vr(t+2)}")
        allreduce("v_add_f32", [t], [t+1])
        A(f"v_mul_f32 {vr(t)}, {hex(f2u(1/512))}, {vr(t)}")
        for i in range(8):
            A(f"v_sub_f32 {vr(t+4+i)}, {vr(x+i)}, {vr(t)}")
        A(f"v_mul_f32 {vr(t+1)}, {vr(t+4)}, {vr(t+4)}")
        A(f"v_mul_f32 {vr(t+2)}, {vr(t+5)}, {vr(t+5)}")
        for i in range(2, 8, 2):
            A(f"v_fmac_f32 {vr(t+1)}, {vr(t+4+i)}, {vr(t+4+i)}")
            A(f"v_fmac_f32 {vr(t+2)}, {vr(t+5+i)}, {vr(t+5+i)}")
        A(f"v_add_f32 {vr(t+1)}, {vr(t+1)}, {vr(t+2)}")
        allreduce("v_add_f32", [t+1], [t+2])
        A(f"v_mul_f32 {vr(t+1)}, {hex(f2u(1/512))}, {vr(t+1)}")
        rne2(t, t+1, t+2)
        A(f"v_add_f32 {vr(t+1)}, {hex(f2u(1e-5))}, {vr(t+1)}")
        rne1(t+1, t+1)
        A(f"v_sqrt_f32 {vr(t+1)}, {vr(t+1)}")
        A.nop(1)
        rne1(t+1, t+1)
        A(f"v_rcp_f32 {vr(t+2)}, {vr(t+1)}")
        for i in range(8):
            A(f"v_sub_f32 {vr(t+4+i)}, {vr(x+i)}, {vr(t)}")
        for i in range(0, 8, 2):
            rne2(t+4+i, t+5+i, t+3)
        for i in range(8):
            A(f"v_mul_f32 {vr(out+i)}, {vr(t+4+i)}, {vr(t+2)}")
        for i in range(8):
            A(f"v_fma_f32 {vr(t+4+i)}, -{vr(out+i)}, {vr(t+1)}, {vr(t+4+i)}")
        for i in range(8):
            A(f"v_fmac_f32 {vr(out+i)}, {vr(t+4+i)}, {vr(t+2)}")
    def lds_inc(flag, t):
        A(f"v_mov_b32 {vr(t)}, {flag}")
        A(f"v_mov_b32 {vr(t+1)}, 1")
        A("s_waitcnt lgkmcnt(0)")
        A("s_mov_b64 exec, 1")
        A(f"ds_add_u32 {vr(t)}, {vr(t+1)}")
        A("s_mov_b64 exec, -1")
    def lds_wait(flag, target, t, sleep=1):
        lp, dn = A.newlabel("Lw"), A.newlabel("Lwd")
        A(f"v_mov_b32 {vr(t)}, {flag}")
        A(f"s_mov_b32 {sr(S_SPIN)}, {SPIN_LIMIT*4}")
        A.label(lp)
        A(f"ds_read_b32 {vr(t+1)}, {vr(t)}")
        A("s_waitcnt lgkmcnt(0)")
        A(f"v_readfirstlane_b32 {sr(S_TMP+9)}, {vr(t+1)}")
        A.nop(1)
        A(f"s_cmp_ge_u32 {sr(S_TMP+9)}, {target}")
        A(f"s_cbranch_scc1 {dn}")
        if sleep: A(f"s_sleep {sleep}")
        A(f"s_sub_u32 {sr(S_SPIN)}, {sr(S_SPIN)}, 1")
        A(f"s_cbranch_scc0 {lp}")
        A.label(dn)
    def poll_pipe(nsets, nld, issue_fn, check_fn, done_fn):
        lp, fin = A.newlabel("Lpp"), A.newlabel("Lppf")
        dn = [A.newlabel("Lppd") for _ in range(nsets)]
        A(f"s_mov_b32 {sr(S_SPIN)}, {SPIN_LIMIT}")
        for k in range(nsets): issue_fn(k)
        A.label(lp)
        for k in range(nsets):
            A(f"s_waitcnt vmcnt({nld*(nsets-1)})")
            check_fn(k)
            A(f"s_cbranch_vccz {dn[k]}")
            issue_fn(k)
        A(f"s_sub_u32 {sr(S_SPIN)}, {sr(S_SPIN)}, 1")
        A(f"s_cbranch_scc0 {lp}")
        A("s_waitcnt vmcnt(0)")
        for k in range(nsets):
            A.label(dn[k])
            done_fn(k)
            if k + 1 < nsets: A(f"s_branch {fin}")
        A.label(fin)
    def ln_row(op_x, VX, XF, LT, row):
        A.wait_vm(op_x)
        unpack(XF, VX, 4)
        layernorm(XF, XF, LT)
        for i in range(4):
            A(f"v_cvt_pk_bf16_f32 {vr(LT+i)}, {vr(XF+2*i)}, {vr(XF+2*i+1)}")
        A(f"s_lshl_b32 {sr(S_TMP+2)}, {sr(S_WAVE)}, 11")
        A(f"s_add_u32 {sr(S_TMP+2)}, {sr(S_TMP+2)}, {L_XN + 1024*row}")
        A(f"v_lshl_add_u32 {vr(LT+4)}, v0, 4, {sr(S_TMP+2)}")
        A(f"ds_write_b128 {vr(LT+4)}, {vr(LT,4)}")

    A(f"v_lshlrev_b32 {vr(V_L16)}, 4, v0")
    A(f"s_lshl_b32 {sr(S_TMP+2)}, {sr(S_WAVE)}, 11")
    A(f"s_cmp_ge_u32 {sr(S_WAVE)}, 4")
    A("s_cbranch_scc1 L_stream")

    cur[0] = "a"
    A("s_setprio 3")
    T = 208
    V_X = T
    V_SEN = T + 4
    for r in range(4):
        A(f"v_mov_b32 {vr(V_SEN+r)}, -1")
    A(f"v_lshrrev_b32 {vr(T+8)}, 1, v0")
    A(f"v_and_b32 {vr(T+9)}, 1, v0")
    A(f"v_lshlrev_b32 {vr(T+9)}, 4, {vr(T+9)}")
    A(f"v_lshl_add_u32 {vr(T+10)}, {vr(T+8)}, 13, {vr(T+9)}")
    A(f"s_lshl_b32 {sr(S_TMP+3)}, {sr(S_WAVE)}, 20")
    A(f"s_lshl_b32 {sr(S_TMP+4)}, {sr(S_HKV)}, 10")
    A(f"s_add_u32 {sr(S_TMP+3)}, {sr(S_TMP+3)}, {sr(S_TMP+4)}")
    def iq_shl(dst, sh):
        if o["remap"] in (1, 4):
            A(f"s_lshl_b32 {sr(dst)}, {sr(S_S)}, 3")
            A(f"s_or_b32 {sr(dst)}, {sr(dst)}, {sr(S_B)}")
            A(f"s_lshl_b32 {sr(dst)}, {sr(dst)}, {sh}")
        else:
            A(f"s_lshl_b32 {sr(dst)}, {sr(S_IDX)}, {sh}")
    iq_shl(S_TMP+4, 5)
    A(f"s_add_u32 {sr(S_TMP+3)}, {sr(S_TMP+3)}, {sr(S_TMP+4)}")
    A(f"s_lshl_b32 {sr(S_RING)}, {sr(S_WAVE)}, 12")
    A(f"s_add_u32 {sr(S_RING)}, {sr(S_RING)}, {L_STG}")
    A(f"s_mov_b32 m0, {sr(S_RING)}")
    A("s_waitcnt lgkmcnt(0)")
    srd(SX, 0, 8192)
    op_x = A.vmem(f"buffer_load_dwordx4 {vr(V_X,4)}, {vr(V_L16)}, {sr(SX,4)}, {sr(S_TMP+2)} offen")
    op_x2 = A.vmem(f"buffer_load_dwordx4 {vr(T+24,4)}, {vr(V_L16)}, {sr(SX,4)}, {sr(S_TMP+2)} offen offset:1024")
    srd(SWQ, 3, 4 << 20)
    WNT = " nt" if o["wnt"] else ""
    for u in range(4):
        if u:
            A(f"s_add_u32 {sr(S_TMP+4)}, {sr(S_RING)}, {u*1024}")
            A(f"s_mov_b32 m0, {sr(S_TMP+4)}")
            A(f"s_add_u32 {sr(S_TMP+3)}, {sr(S_TMP+3)}, {32*8192}")
        if 'q' in o['skip']: continue
        op_wq = A.vmem(f"buffer_load_dwordx4 {vr(T+10)}, {sr(SWQ,4)}, {sr(S_TMP+3)} offen{WNT} lds")
    srd(SDBG, 11, 256)
    srd(SWS, 12, WS_SIZE)
    V_NC = T + 12
    A(f"s_cmp_eq_u32 {sr(S_WAVE)}, 0")
    A("s_cbranch_scc0 L_w1")
    A(f"s_or_b32 {sr(S_RT)}, {sr(S_RT)}, 1")
    A(f"v_mov_b32 {vr(V_NC)}, {sr(S_RT)}")
    A(f"v_mov_b32 {vr(V_NC+1)}, 0")
    A(f"s_lshl_b32 {sr(S_TMP+2)}, {sr(S_HKV)}, 5")
    A(f"v_mov_b32 {vr(T+11)}, {sr(S_TMP+2)}")
    A("s_mov_b64 exec, 1")
    A(f"buffer_atomic_cmpswap {vr(V_NC,2)}, {vr(T+11)}, {sr(SDBG,4)}, 0 offen sc0")
    A(f"buffer_load_dword {vr(T+18)}, {vr(T+11)}, {sr(SX,4)}, 0 offen")
    A("s_mov_b64 exec, 0xffff")
    A(f"v_lshlrev_b32 {vr(T+14)}, 2, v0")
    A(f"v_add_u32 {vr(T+14)}, {L_FLAG}, {vr(T+14)}")
    A(f"v_mov_b32 {vr(T+15)}, 0")
    A(f"ds_write_b32 {vr(T+14)}, {vr(T+15)}")
    A("s_mov_b64 exec, -1")
    A("s_waitcnt lgkmcnt(0)")
    A("s_branch L_wdone")
    A.label("L_w1")
    A(f"s_cmp_eq_u32 {sr(S_WAVE)}, 1")
    A("s_cbranch_scc0 L_w2")
    A(f"s_lshl_b32 {sr(S_TMP+2)}, {sr(S_HKV)}, 5")
    A(f"s_add_u32 {sr(S_TMP+2)}, {sr(S_TMP+2)}, {sr(S_IDX)}")
    A(f"s_lshl_b32 {sr(S_TMP+2)}, {sr(S_TMP+2)}, 10")
    A(f"s_add_u32 {sr(S_TMP+2)}, {sr(S_TMP+2)}, {WS_R1}")
    A("s_mov_b32 exec_hi, 0")
    A(f"buffer_store_dwordx4 {vr(V_SEN,4)}, {vr(V_L16)}, {sr(SWS,4)}, {sr(S_TMP+2)} offen sc1")
    A("s_mov_b64 exec, -1")
    A("s_mov_b32 exec_lo, 0")
    A(f"buffer_store_dwordx4 {vr(V_SEN,4)}, {vr(V_L16)}, {sr(SWS,4)}, {sr(S_TMP+2)} offen sc1")
    A("s_mov_b64 exec, -1")
    A("s_branch L_wdone")
    A.label("L_w2")
    A(f"s_cmp_eq_u32 {sr(S_WAVE)}, 2")
    A("s_cbranch_scc0 L_w3")
    A(f"v_lshlrev_b32 {vr(T+11)}, 16, {vr(V_G)}")
    A(f"v_lshl_add_u32 {vr(T+11)}, {vr(V_J)}, 4, {vr(T+11)}")
    A(f"s_lshl_b32 {sr(S_TMP+2)}, {sr(S_HKV)}, 13")
    A(f"s_lshl_b32 {sr(S_TMP+4)}, {sr(S_S)}, 11")
    A(f"s_add_u32 {sr(S_TMP+2)}, {sr(S_TMP+2)}, {sr(S_TMP+4)}")
    A(f"s_lshl_b32 {sr(S_TMP+4)}, {sr(S_B)}, 8")
    A(f"s_add_u32 {sr(S_TMP+2)}, {sr(S_TMP+2)}, {sr(S_TMP+4)}")
    A(f"s_add_u32 {sr(S_TMP+2)}, {sr(S_TMP+2)}, {WS_R2}")
    A(f"s_add_u32 {sr(S_TMP+4)}, {sr(S_TMP+2)}, {4*65536}")
    A(f"buffer_store_dwordx4 {vr(V_SEN,4)}, {vr(T+11)}, {sr(SWS,4)}, {sr(S_TMP+2)} offen sc1")
    A(f"buffer_store_dwordx4 {vr(V_SEN,4)}, {vr(T+11)}, {sr(SWS,4)}, {sr(S_TMP+4)} offen sc1")
    A("s_branch L_wdone")
    A.label("L_w3")
    A(f"s_lshl_b32 {sr(S_TMP+2)}, {sr(S_HKV)}, 5")
    A(f"s_add_u32 {sr(S_TMP+2)}, {sr(S_TMP+2)}, {sr(S_IDX)}")
    A(f"s_lshl_b32 {sr(S_TMP+4)}, {sr(S_TMP+2)}, 7")
    A(f"s_add_u32 {sr(S_TMP+4)}, {sr(S_TMP+4)}, {WS_CNT}")
    A(f"s_lshl_b32 {sr(S_TMP+2)}, {sr(S_TMP+2)}, 5")
    A(f"s_add_u32 {sr(S_TMP+2)}, {sr(S_TMP+2)}, {WS_ST}")
    A(f"v_mov_b32 {vr(T+11)}, 0")
    A("s_mov_b64 exec, 3")
    A(f"buffer_store_dwordx4 {vr(V_SEN,4)}, {vr(V_L16)}, {sr(SWS,4)}, {sr(S_TMP+2)} offen sc1")
    A("s_mov_b64 exec, 1")
    A(f"buffer_atomic_swap {vr(T+11)}, off, {sr(SWS,4)}, {sr(S_TMP+4)} sc0")
    A("s_mov_b64 exec, -1")
    A.label("L_wdone")
    A.vm += 2
    A("s_barrier")
    stamp("start")
    if 'A' in o['skip']:
        lds_inc(F_Q2, T+20)
        lds_inc(F_FAC, T+20)
        A("s_barrier")
        A("s_branch L_fin")
    srd(SWO, 4, 4 << 20)
    srd(SW1, 6, 3584)
    srd(SB1, 7, 3584)
    srd(SW2, 8, 3584)
    srd(SOUT, 10, 8192)
    A(f"s_load_dword {sr(S_B2)}, {sr(S_P+18,2)}, 0")
    XF = 176; LT = 184
    ln_row(op_x, V_X, XF, LT, 0)
    ln_row(op_x2, T+24, XF, LT, 1)
    lds_inc(F_XN, LT+5)
    stamp("ln_done")
    V_TRA = 2
    A(f"v_lshlrev_b32 {vr(V_TRA)}, 8, {vr(V_G)}")
    A(f"v_lshl_add_u32 {vr(V_TRA)}, {vr(V_J)}, 3, {vr(V_TRA)}")
    A(f"v_add_u32 {vr(V_TRA)}, {sr(S_RING)}, {vr(V_TRA)}")
    A(f"v_and_b32 {vr(LT)}, 7, {vr(V_J)}")
    A(f"v_lshlrev_b32 {vr(LT)}, 10, {vr(LT)}")
    A(f"v_lshl_add_u32 {vr(LT)}, {vr(V_G)}, 4, {vr(LT)}")
    A(f"s_lshl_b32 {sr(S_TMP+2)}, {sr(S_WAVE)}, 8")
    A(f"s_add_u32 {sr(S_TMP+2)}, {sr(S_TMP+2)}, {L_XN}")
    A(f"v_add_u32 {vr(LT)}, {sr(S_TMP+2)}, {vr(LT)}")
    A(f"v_lshrrev_b32 {vr(T+16)}, 3, v0")
    A(f"v_and_b32 {vr(T+16)}, 1, {vr(T+16)}")
    A(f"v_lshlrev_b32 {vr(T+17)}, 13, {vr(V_G)}")
    A(f"v_lshl_add_u32 {vr(T+17)}, {vr(T+16)}, 12, {vr(T+17)}")
    A(f"v_and_b32 {vr(T+16)}, 7, v0")
    A(f"v_lshl_add_u32 {vr(T+17)}, {vr(T+16)}, 4, {vr(T+17)}")
    A("s_waitcnt vmcnt(2)")
    stamp("wq_landed")
    V_WQ = 144
    for u in range(4):
        for h in range(2):
            A(f"ds_read_b64_tr_b16 {vr(V_WQ+4*u+2*h,2)}, {vr(V_TRA)} offset:{u*1024+h*128}")
    lds_wait(F_XN, 4, LT+8, sleep=0)
    V_XA_ = 16
    for u in range(4):
        A(f"ds_read_b128 {vr(V_XA_+4*u,4)}, {vr(LT)} offset:{64*u}")
    V_QD = LT + 12
    A(f"s_lshl_b32 {sr(S_TMP+2)}, {sr(S_WAVE)}, 9")
    A(f"s_add_u32 {sr(S_TMP+2)}, {sr(S_TMP+2)}, {L_QRED}")
    A(f"v_add_u32 {vr(LT+3)}, {sr(S_TMP+2)}, {vr(V_L16)}")
    A("s_waitcnt lgkmcnt(0)")
    for u in range(4):
        c = "0" if u == 0 else vr(V_QD, 4)
        A(f"v_mfma_f32_16x16x32_bf16 {vr(V_QD,4)}, {vr(V_XA_+4*u,4)}, {vr(V_WQ+4*u,4)}, {c}")
    A(f"s_lshl_b32 {sr(S_TMP+3)}, {sr(S_HKV)}, 9")
    A(f"s_lshl_b32 {sr(S_TMP+4)}, {sr(S_S)}, 7")
    A(f"s_add_u32 {sr(S_TMP+3)}, {sr(S_TMP+3)}, {sr(S_TMP+4)}")
    A(f"s_add_u32 {sr(S_TMP+3)}, {sr(S_TMP+3)}, {sr(S_WAVE)}")
    A(f"s_lshl_b32 {sr(S_TMP+3)}, {sr(S_TMP+3)}, 10")
    A(f"s_lshl_b32 {sr(S_TMP+4)}, {sr(S_B)}, 7")
    A(f"s_add_u32 {sr(S_TMP+3)}, {sr(S_TMP+3)}, {sr(S_TMP+4)}")
    A(f"s_mov_b32 m0, {sr(S_RING)}")
    A.nop(4)
    A("s_mov_b32 exec_hi, 0")
    A(f"ds_write_b128 {vr(LT+3)}, {vr(V_QD,4)}")
    A("s_mov_b64 exec, -1")
    stamp("mfma")
    A("s_waitcnt vmcnt(0)")
    A(f"s_cmp_eq_u32 {sr(S_WAVE)}, 0")
    A("s_cbranch_scc0 L_nonce_done")
    A(f"v_readfirstlane_b32 {sr(S_TMP+2)}, {vr(V_NC)}")
    A.nop(1)
    A(f"s_cmp_eq_u32 {sr(S_TMP+2)}, 0")
    A(f"s_cselect_b32 {sr(S_TMP+2)}, {sr(S_RT)}, {sr(S_TMP+2)}")
    A(f"v_mov_b32 {vr(LT+6)}, {sr(S_TMP+2)}")
    A(f"v_mov_b32 {vr(LT+7)}, {F_NONCE}")
    A(f"ds_write_b32 {vr(LT+7)}, {vr(LT+6)}")
    A.label("L_nonce_done")
    lds_inc(F_Q1, LT+8)
    stamp("qpart")
    A(f"s_lshr_b32 {sr(S_TMP+2)}, {sr(S_WAVE)}, 1")
    A(f"s_lshl_b32 {sr(S_TMP+2)}, {sr(S_TMP+2)}, 8")
    A(f"s_and_b32 {sr(S_TMP+4)}, {sr(S_WAVE)}, 1")
    A(f"s_lshl_b32 {sr(S_TMP+4)}, {sr(S_TMP+4)}, 3")
    A(f"s_add_u32 {sr(S_TMP+2)}, {sr(S_TMP+2)}, {sr(S_TMP+4)}")
    A(f"s_add_u32 {sr(S_TMP+2)}, {sr(S_TMP+2)}, {L_QRED}")
    A(f"v_and_b32 {vr(LT)}, 1, {vr(V_G)}")
    A(f"v_lshlrev_b32 {vr(LT)}, 10, {vr(LT)}")
    A(f"v_lshl_add_u32 {vr(LT)}, {vr(V_J)}, 4, {vr(LT)}")
    A(f"v_lshrrev_b32 {vr(LT+1)}, 1, {vr(V_G)}")
    A(f"v_lshl_add_u32 {vr(LT)}, {vr(LT+1)}, 2, {vr(LT)}")
    A(f"v_add_u32 {vr(LT)}, {sr(S_TMP+2)}, {vr(LT)}")
    A(f"v_lshlrev_b32 {vr(LT+3)}, 14, {vr(LT+1)}")
    A(f"v_lshl_add_u32 {vr(LT+3)}, {vr(V_J)}, 2, {vr(LT+3)}")
    A(f"s_lshl_b32 {sr(S_TMP+5)}, {sr(S_WAVE)}, 15")
    A(f"s_lshl_b32 {sr(S_TMP+4)}, {sr(S_HKV)}, 11")
    A(f"s_add_u32 {sr(S_TMP+5)}, {sr(S_TMP+5)}, {sr(S_TMP+4)}")
    iq_shl(S_TMP+4, 6)
    A(f"s_add_u32 {sr(S_TMP+5)}, {sr(S_TMP+5)}, {sr(S_TMP+4)}")
    A(f"v_mov_b32 {vr(LT+7)}, {F_NONCE}")
    lds_wait(F_Q1, 4, LT+8, sleep=0)
    A(f"ds_read_b32 {vr(LT+1)}, {vr(LT)}")
    A(f"ds_read_b32 {vr(LT+2)}, {vr(LT)} offset:512")
    A(f"ds_read_b32 {vr(LT+5)}, {vr(LT+7)}")
    A("s_waitcnt lgkmcnt(0)")
    A(f"v_add_f32 {vr(LT+1)}, {vr(LT+1)}, {vr(LT+2)}")
    xreduce("v_add_f32", [LT+1], [LT+2], steps=("v_permlane16_swap_b32",))
    A.nop(2)
    A(f"v_mov_b32_dpp {vr(LT+2)}, {vr(LT+1)} quad_perm:[1,0,3,2] {DPPM}")
    A(f"v_readfirstlane_b32 {sr(S_NONCE)}, {vr(LT+5)}")
    A(f"v_cvt_pk_bf16_f32 {vr(LT+4)}, {vr(LT+1)}, {vr(LT+2)}")
    A("s_mov_b32 exec_lo, 0x5555")
    A("s_mov_b32 exec_hi, 0x5555")
    A.vmem(f"buffer_store_dwordx2 {vr(LT+4,2)}, {vr(LT+3)}, {sr(SWS,4)}, {sr(S_TMP+5)} offen sc1")
    A("s_mov_b64 exec, -1")
    stamp("q_published")
    V_L8 = 3
    A(f"v_lshlrev_b32 {vr(V_L8)}, 3, v0")
    GW1, GB1, GW2 = 16, 44, 72
    RAW1, RAWB = 86, 100
    G_A, G_B, G_P, G_ACC, G_T, G_K0 = 86, 118, 150, 166, 174, 182
    V_WO = 184
    K0 = -2.0 * math.sqrt(2.0 / math.pi) * LOG2E
    K1 = K0 * 0.044715
    S_ONE_LO, S_ONE_HI = S_C0 + 1, S_C0 + 2
    A(f"s_mov_b32 {sr(S_ONE_LO)}, 0x00003f80")
    A(f"s_mov_b32 {sr(S_ONE_HI)}, 0x3f800000")
    A(f"s_mov_b32 {sr(S_C0)}, {hex(f2u(LOG2E))}")
    A(f"s_lshl_b32 {sr(S_B2)}, {sr(S_B2)}, 16")
    A(f"s_cmp_eq_u32 {sr(S_WAVE)}, 0")
    A("s_cbranch_scc0 L_noqpoll")
    A(f"s_lshl_b32 {sr(S_TMP+6)}, {sr(S_B)}, 14")
    A(f"s_lshl_b32 {sr(S_TMP+4)}, {sr(S_HKV)}, 11")
    A(f"s_add_u32 {sr(S_TMP+6)}, {sr(S_TMP+6)}, {sr(S_TMP+4)}")
    QG = G_A
    A(f"v_add_u32 {vr(LT+6)}, {L_Q}, {vr(V_L8)}")
    def q_iss(k):
        A(f"buffer_load_dwordx4 {vr(QG+8*k,4)}, {vr(V_L16)}, {sr(SWS,4)}, {sr(S_TMP+6)} offen sc1")
        A(f"buffer_load_dwordx4 {vr(QG+8*k+4,4)}, {vr(V_L16)}, {sr(SWS,4)}, {sr(S_TMP+6)} offen offset:1024 sc1")
    def q_chk(k):
        for i in range(4):
            A(f"v_xor_b32 {vr(LT+i)}, {sr(S_NONCE)}, {vr(QG+8*k+2*i+1)}")
        A(f"v_or3_b32 {vr(LT)}, {vr(LT)}, {vr(LT+1)}, {vr(LT+2)}")
        A(f"v_or_b32 {vr(LT)}, {vr(LT)}, {vr(LT+3)}")
        A(f"v_cmp_ne_u32 vcc, 0, {vr(LT)}")
    def q_done(k):
        A(f"v_mov_b32 {vr(QG+8*k+1)}, {vr(QG+8*k+2)}")
        A(f"v_mov_b32 {vr(QG+8*k+5)}, {vr(QG+8*k+6)}")
        A(f"ds_write_b64 {vr(LT+6)}, {vr(QG+8*k,2)}")
        A(f"ds_write_b64 {vr(LT+6)}, {vr(QG+8*k+4,2)} offset:512")
    A("s_waitcnt vmcnt(0)")
    if o.get("qdelay"): A(f"s_sleep {o['qdelay']}")
    if o.get("qmask"):
        A(f"s_mov_b32 {sr(S_SPIN)}, {SPIN_LIMIT}")
        A("s_mov_b64 vcc, -1")
        A.label("L_qml")
        A("s_mov_b64 exec, vcc")
        q_iss(0)
        A("s_mov_b64 exec, -1")
        A("s_waitcnt vmcnt(0)")
        q_chk(0)
        A("s_cbranch_vccz L_qmd")
        A(f"s_sleep {o['qmask']}")
        A(f"s_sub_u32 {sr(S_SPIN)}, {sr(S_SPIN)}, 1")
        A("s_cbranch_scc0 L_qml")
        A.label("L_qmd")
        q_done(0)
    else:
        poll_pipe(o.get("qsets", 3), 2, q_iss, q_chk, q_done)
    lds_inc(F_Q2, LT+8)
    stamp("q_ok")
    A("s_waitcnt vmcnt(0)")
    A.label("L_noqpoll")
    S_WOS = 5
    A(f"s_mov_b32 {sr(S_WOS)}, {sr(S_TMP+3)}")
    V_XF = 4
    V_CP = 8
    S_RB = 8
    A(f"v_and_b32 {vr(V_CP)}, 31, v0")
    A(f"v_lshlrev_b32 {vr(V_CP)}, 3, {vr(V_CP)}")
    A(f"v_lshrrev_b32 {vr(LT+6)}, 5, v0")
    A(f"v_lshl_add_u32 {vr(V_CP)}, {vr(LT+6)}, 2, {vr(V_CP)}")
    A(f"s_cmp_lt_u32 s2, 8")
    A("s_cbranch_scc0 L_noxf")
    A(f"s_lshl_b32 {sr(S_TMP+2)}, s2, 10")
    A(f"s_lshl_b32 {sr(S_TMP+4)}, {sr(S_WAVE)}, 8")
    A(f"s_add_u32 {sr(S_TMP+2)}, {sr(S_TMP+2)}, {sr(S_TMP+4)}")
    A(f"buffer_load_dword {vr(V_XF)}, {vr(V_CP)}, {sr(SX,4)}, {sr(S_TMP+2)} offen")
    A.label("L_noxf")
    A(f"s_cmp_eq_u32 {sr(S_WAVE)}, 0")
    A("s_cbranch_scc1 L_gskip")
    def gw_load():
        for (srd_, dst) in ((SW1, RAW1), (SB1, RAWB), (SW2, GW2)):
            if 'g' in o['skip']: continue
            for c in range(3):
                A.vmem(f"buffer_load_dwordx4 {vr(dst+4*c,4)}, {vr(V_L16)}, {sr(srd_,4)}, 0 offen offset:{1024*c}")
            A.vmem(f"buffer_load_dwordx2 {vr(dst+12,2)}, {vr(V_L8)}, {sr(srd_,4)}, 0 offen offset:3072")
    def gw_unpack():
        A("s_waitcnt vmcnt(0)")
        unpack(GW1, RAW1, 14)
        unpack(GB1, RAWB, 14)
        A(f"v_mov_b32 {vr(G_K0)}, {hex(f2u(K0))}")
    def wo_dma():
        for u in range(4):
            if u:
                A(f"s_add_u32 {sr(S_TMP+4)}, {sr(S_RING)}, {u*1024}")
                A(f"s_mov_b32 m0, {sr(S_TMP+4)}")
                A(f"s_add_u32 {sr(S_WOS)}, {sr(S_WOS)}, {32*1024}")
            if 'o' in o['skip']: continue
            A.vmem(f"buffer_load_dwordx4 {vr(T+17)}, {sr(SWO,4)}, {sr(S_WOS)} offen{WNT} lds")
    gw_load()
    A(f"s_lshl_b32 {sr(S_TMP+2)}, {sr(S_WAVE)}, 11")
    A(f"s_sub_u32 {sr(S_TMP+2)}, {sr(S_TMP+2)}, 2048")
    A(f"s_add_u32 {sr(S_TMP+8)}, {sr(S_TMP+2)}, s2")
    for k in range(8):
        A(f"s_add_u32 {sr(S_TMP+3)}, {sr(S_TMP+8)}, {256*k}")
        A(f"s_cmp_ge_u32 {sr(S_TMP+3)}, {GT_HALF}")
        A(f"s_cselect_b32 {sr(S_TMP+4)}, {0x8000 - GT_HALF}, 0")
        A(f"s_add_u32 {sr(S_TMP+3)}, {sr(S_TMP+3)}, {sr(S_TMP+4)}")
        A(f"s_add_u32 {sr(S_TMP+3)}, {sr(S_TMP+3)}, {E0*128}")
        A(f"s_lshl_b32 {sr(S_TMP+3)}, {sr(S_TMP+3)}, 16")
        A(f"v_mov_b32 {vr(G_T+k)}, {sr(S_TMP+3)}")
        A(f"v_mov_b32 {vr(G_ACC+k)}, 0")
    A(f"s_setprio {o['pg']}")
    gw_unpack()
    def g_chunk(c, nt):
        n = nt * 4
        E = [(k, f) for k in range(nt) for f in range(4)]
        for i, (k, f) in enumerate(E):
            A(f"v_mul_f32 {vr(G_A+i)}, {vr(G_T+k)}, {vr(GW1+4*c+f)}")
        for i in range(0, n, 2):
            A(f"v_cvt_pk_bf16_f32 {vr(G_P+i//2)}, {vr(G_A+i)}, {vr(G_A+i+1)}")
        for i, (k, f) in enumerate(E):
            one = S_ONE_LO if i % 2 == 0 else S_ONE_HI
            A(f"v_dot2_f32_bf16 {vr(G_A+i)}, {vr(G_P+i//2)}, {sr(one)}, {vr(GB1+4*c+f)}")
        A.nop(max(0, 3 - (n - 2)))
        for i in range(0, n, 2):
            if n == 4 and i == 2: A.nop(2)
            A(f"v_cvt_pk_bf16_f32 {vr(G_P+i//2)}, {vr(G_A+i)}, {vr(G_A+i+1)}")
        for i in range(0, n, 2):
            A(f"v_lshlrev_b32 {vr(G_A+i)}, 16, {vr(G_P+i//2)}")
            A(f"v_and_b32 {vr(G_A+i+1)}, 0xffff0000, {vr(G_P+i//2)}")
        for i in range(n):
            A(f"v_mul_f32 {vr(G_B+i)}, {vr(G_A+i)}, {vr(G_A+i)}")
        for i in range(n):
            A(f"v_fmamk_f32 {vr(G_B+i)}, {vr(G_B+i)}, {hex(f2u(K1))}, {vr(G_K0)}")
        for i in range(n):
            A(f"v_mul_f32 {vr(G_B+i)}, {vr(G_A+i)}, {vr(G_B+i)}")
        for i in range(n):
            A(f"v_exp_f32 {vr(G_B+i)}, {vr(G_B+i)}")
        for i in range(n):
            A(f"v_add_f32 {vr(G_B+i)}, 1.0, {vr(G_B+i)}")
        for i in range(n):
            A(f"v_rcp_f32 {vr(G_B+i)}, {vr(G_B+i)}")
        for i in range(n):
            A(f"v_mul_f32 {vr(G_B+i)}, {vr(G_A+i)}, {vr(G_B+i)}")
        for i in range(0, n, 2):
            A(f"v_cvt_pk_bf16_f32 {vr(G_P+i//2)}, {vr(G_B+i)}, {vr(G_B+i+1)}")
        for i in range(0, n, 2):
            k, f = E[i]
            A(f"v_dot2_f32_bf16 {vr(G_ACC+k)}, {vr(G_P+i//2)}, {vr(GW2+2*c+f//2)}, {vr(G_ACC+k)}")
        A.nop(3)
    def g_finish(nt):
        allreduce("v_add_f32", [G_ACC+k for k in range(nt)], [G_P+k for k in range(nt)])
        for k in range(nt):
            rne1(G_ACC+k, G_ACC+k)
        for k in range(nt):
            A(f"v_add_f32 {vr(G_ACC+k)}, {sr(S_B2)}, {vr(G_ACC+k)}")
        for k in range(nt):
            rne1(G_ACC+k, G_ACC+k)
    for c in range(7 if 'G' not in o['skip'] else 0):
        g_chunk(c, 8)
    g_finish(8)
    A("s_setprio 3")
    A(f"v_mov_b32 {vr(G_P)}, {vr(G_ACC)}")
    for k in range(1, 8):
        A(f"v_cmp_eq_u32 vcc, {k}, v0")
        A.nop(2)
        A(f"v_cndmask_b32 {vr(G_P)}, {vr(G_P)}, {vr(G_ACC+k)}, vcc")
    A(f"v_mov_b32 {vr(G_P+1)}, {sr(S_NONCE)}")
    A(f"v_lshlrev_b32 {vr(G_P+2)}, 11, v0")
    A(f"s_lshl_b32 {sr(S_TMP+2)}, {sr(S_TMP+8)}, 3")
    A(f"s_add_u32 {sr(S_TMP+2)}, {sr(S_TMP+2)}, {WS_GT}")
    A(f"s_mov_b64 exec, 0xff")
    A(f"buffer_store_dwordx2 {vr(G_P,2)}, {vr(G_P+2)}, {sr(SWS,4)}, {sr(S_TMP+2)} offen sc1")
    A("s_mov_b64 exec, -1")
    A.label("L_gskip")
    wo_dma()
    stamp("g_done")
    A("s_waitcnt vmcnt(0)")
    lds_inc(F_WOL, T)
    A(f"v_lshrrev_b32 {vr(T+2)}, 2, {vr(V_J)}")
    A(f"v_lshlrev_b32 {vr(V_TRA)}, 10, {vr(V_G)}")
    A(f"v_lshl_add_u32 {vr(V_TRA)}, {vr(T+2)}, 7, {vr(V_TRA)}")
    A(f"v_and_b32 {vr(T+2)}, 3, {vr(V_J)}")
    A(f"v_lshl_add_u32 {vr(V_TRA)}, {vr(T+2)}, 3, {vr(V_TRA)}")
    A(f"s_lshl_b32 {sr(S_TMP+2)}, {sr(S_WAVE)}, 5")
    A(f"s_add_u32 {sr(S_TMP+2)}, {sr(S_TMP+2)}, {L_STG}")
    A(f"v_add_u32 {vr(V_TRA)}, {sr(S_TMP+2)}, {vr(V_TRA)}")
    V_R1A = 5
    A(f"v_lshlrev_b32 {vr(V_R1A)}, 11, {vr(V_J)}")
    A(f"v_and_b32 {vr(T)}, 1, {vr(V_J)}")
    A(f"v_lshlrev_b32 {vr(T)}, 10, {vr(T)}")
    A(f"v_sub_u32 {vr(V_R1A)}, {vr(V_R1A)}, {vr(T)}")
    A(f"v_lshl_add_u32 {vr(V_R1A)}, {vr(V_G)}, 4, {vr(V_R1A)}")
    S_R1C, S_R1P, S_R2P = 72, 73, 74
    A(f"s_lshl_b32 {sr(S_R1C)}, {sr(S_HKV)}, 15")
    A(f"s_add_u32 {sr(S_R1C)}, {sr(S_R1C)}, {WS_R1}")
    A(f"s_lshl_b32 {sr(S_R1P)}, {sr(S_IDX)}, 10")
    A(f"s_add_u32 {sr(S_R1P)}, {sr(S_R1P)}, {sr(S_R1C)}")
    A(f"s_lshl_b32 {sr(S_TMP+3)}, {sr(S_WAVE)}, 8")
    A(f"s_add_u32 {sr(S_R1P)}, {sr(S_R1P)}, {sr(S_TMP+3)}")
    A(f"s_lshl_b32 {sr(S_TMP+3)}, {sr(S_S)}, 8")
    A(f"s_add_u32 {sr(S_R1C)}, {sr(S_R1C)}, {sr(S_TMP+3)}")
    A(f"s_lshl_b32 {sr(S_R2P)}, {sr(S_HKV)}, 13")
    A(f"s_lshl_b32 {sr(S_TMP+3)}, {sr(S_S)}, 11")
    A(f"s_add_u32 {sr(S_R2P)}, {sr(S_R2P)}, {sr(S_TMP+3)}")
    A(f"s_lshl_b32 {sr(S_TMP+3)}, {sr(S_B)}, 8")
    A(f"s_add_u32 {sr(S_R2P)}, {sr(S_R2P)}, {sr(S_TMP+3)}")
    A(f"s_lshl_b32 {sr(S_TMP+3)}, {sr(S_WAVE)}, 6")
    A(f"s_add_u32 {sr(S_R2P)}, {sr(S_R2P)}, {sr(S_TMP+3)}")
    A(f"s_add_u32 {sr(S_R2P)}, {sr(S_R2P)}, {WS_R2}")
    A(f"s_add_u32 {sr(S_R2P+1)}, {sr(S_R2P)}, 65536")
    S_R1Q = 71
    S_LST, S_LFC, S_STC = 6, 7, 76
    A(f"s_mov_b32 {sr(S_LST)}, {L_STAT}")
    A(f"s_mov_b32 {sr(S_LFC)}, {L_FAC}")
    A(f"s_lshl_b32 {sr(S_STC)}, {sr(S_HKV)}, 10")
    A(f"s_lshl_b32 {sr(S_TMP+3)}, {sr(S_S)}, 3")
    A(f"s_add_u32 {sr(S_STC)}, {sr(S_STC)}, {sr(S_TMP+3)}")
    A(f"s_add_u32 {sr(S_STC)}, {sr(S_STC)}, {WS_ST}")
    V_AXW = 9
    A(f"s_lshr_b32 {sr(S_TMP+3)}, {sr(S_WAVE)}, 1")
    A(f"s_lshl_b32 {sr(S_TMP+3)}, {sr(S_TMP+3)}, 11")
    A(f"s_add_u32 {sr(S_R1Q)}, {sr(S_R1C)}, {sr(S_TMP+3)}")
    A(f"s_and_b32 {sr(S_TMP+3)}, {sr(S_WAVE)}, 1")
    A(f"s_lshl_b32 {sr(S_TMP+3)}, {sr(S_TMP+3)}, 7")
    A(f"s_add_u32 {sr(S_R1Q)}, {sr(S_R1Q)}, {sr(S_TMP+3)}")
    A(f"s_lshl_b32 {sr(S_TMP+3)}, {sr(S_WAVE)}, 11")
    A(f"v_add_u32 {vr(V_AXW)}, {sr(S_TMP+3)}, {vr(V_L16)}")
    V_PR = 6
    V_L4 = 7
    V_R2A = 10
    A(f"s_lshl_b32 {sr(S_TMP+3)}, {sr(S_WAVE)}, 9")
    A(f"v_add_u32 {vr(V_PR)}, {sr(S_TMP+3)}, {vr(V_L8)}")
    A(f"v_add_u32 {vr(V_PR+5)}, {2*RING}, {vr(V_PR)}")
    A(f"v_lshlrev_b32 {vr(V_L4)}, 2, v0")
    A(f"v_lshlrev_b32 {vr(V_R2A)}, 17, {vr(V_G)}")
    A(f"v_lshl_add_u32 {vr(V_R2A)}, {vr(V_J)}, 2, {vr(V_R2A)}")
    def wo_frag():
        lds_wait(F_WOL, 4, T, sleep=2)
        for u in range(4):
            for h in range(2):
                A(f"ds_read_b64_tr_b16 {vr(V_WO+4*u+2*h,2)}, {vr(V_TRA)} offset:{u*4096+h*512}")
        lds_inc(F_WO, T)
    A(f"s_cmp_eq_u32 {sr(S_WAVE)}, 0")
    A("s_cbranch_scc0 L_notstat")
    def st_weights():
        A(f"v_mov_b32 {vr(T)}, {vr(T+2)}")
        for dpp in ("quad_perm:[1,0,3,2]", "quad_perm:[2,3,0,1]"):
            A.nop(2)
            A(f"v_max_f32_dpp {vr(T)}, {vr(T)}, {vr(T)} {dpp} {DPPM}")
        A(f"v_sub_f32 {vr(T+2)}, {vr(T+2)}, {vr(T)}")
        A(f"v_mul_f32 {vr(T+2)}, {sr(S_C0)}, {vr(T+2)}")
        A(f"v_exp_f32 {vr(T+2)}, {vr(T+2)}")
        A.nop(1)
        A(f"v_mul_f32 {vr(T+2)}, {vr(T+2)}, {vr(T+3)}")
        A(f"v_mov_b32 {vr(T+1)}, {vr(T+2)}")
        for dpp in ("quad_perm:[1,0,3,2]", "quad_perm:[2,3,0,1]"):
            A.nop(2)
            A(f"v_add_f32_dpp {vr(T+1)}, {vr(T+1)}, {vr(T+1)} {dpp} {DPPM}")
        A(f"v_rcp_f32 {vr(T+1)}, {vr(T+1)}")
        A.nop(1)
        A(f"v_mul_f32 {vr(T+2)}, {vr(T+2)}, {vr(T+1)}")
    A(f"s_lshl_b32 {sr(S_TMP+2)}, {sr(S_HKV)}, 5")
    A(f"s_add_u32 {sr(S_TMP+2)}, {sr(S_TMP+2)}, {sr(S_IDX)}")
    A(f"s_lshl_b32 {sr(S_TMP+2)}, {sr(S_TMP+2)}, 5")
    A(f"s_add_u32 {sr(S_TMP+2)}, {sr(S_TMP+2)}, {WS_ST}")
    A(f"v_lshl_add_u32 {vr(T+11)}, {vr(V_J)}, 3, {sr(S_LST)}")
    A(f"v_lshl_add_u32 {vr(T+20)}, {vr(V_J)}, 2, {sr(S_LFC)}")
    lds_wait(F_ST, 4, T)
    A(f"ds_read_b64 {vr(T+12,2)}, {vr(T+11)}")
    A("s_waitcnt lgkmcnt(0)")
    A(f"v_mov_b32 {vr(T)}, {vr(T+12)}")
    for d in (8, 4):
        A.nop(2)
        A(f"v_max_f32_dpp {vr(T)}, {vr(T)}, {vr(T)} row_ror:{d} {DPPM}")
    A(f"v_sub_f32 {vr(T+2)}, {vr(T+12)}, {vr(T)}")
    A(f"v_mul_f32 {vr(T+2)}, {sr(S_C0)}, {vr(T+2)}")
    A(f"v_exp_f32 {vr(T+2)}, {vr(T+2)}")
    A.nop(1)
    A(f"v_mul_f32 {vr(T+1)}, {vr(T+2)}, {vr(T+13)}")
    for d in (8, 4):
        A.nop(2)
        A(f"v_add_f32_dpp {vr(T+1)}, {vr(T+1)}, {vr(T+1)} row_ror:{d} {DPPM}")
    A(f"v_rcp_f32 {vr(T+3)}, {vr(T+1)}")
    A.nop(1)
    A(f"v_mul_f32 {vr(T+2)}, {vr(T+2)}, {vr(T+3)}")
    A(f"ds_write_b32 {vr(T+20)}, {vr(T+2)}")
    lds_inc(F_FAC, T+8)
    A(f"v_min_u32 {vr(T)}, -2, {vr(T)}")
    A(f"v_min_u32 {vr(T+1)}, -2, {vr(T+1)}")
    A("s_mov_b64 exec, 15")
    A(f"buffer_store_dwordx2 {vr(T,2)}, {vr(V_L8)}, {sr(SWS,4)}, {sr(S_TMP+2)} offen sc1")
    A("s_mov_b64 exec, -1")
    stamp("fac_done")
    A("s_waitcnt vmcnt(0)")
    wo_frag()
    if o["stpre"]:
        A(f"v_and_b32 {vr(T+4)}, 31, v0")
        A(f"v_lshlrev_b32 {vr(T+5)}, 5, {vr(T+4)}")
        A(f"v_lshlrev_b32 {vr(T+6)}, 2, {vr(T+4)}")
        A(f"v_add_u32 {vr(T+6)}, {L_W}, {vr(T+6)}")
        A(f"v_mov_b32 {vr(T+7)}, {F_SD}")
        A(f"s_mov_b32 {sr(S_SPIN)}, {SPIN_LIMIT}")
        A.label("L_pst")
        A(f"buffer_load_dwordx2 {vr(T+2,2)}, {vr(T+5)}, {sr(SWS,4)}, {sr(S_STC)} offen sc1")
        A("s_waitcnt vmcnt(0)")
        A(f"v_max_u32 {vr(T)}, {vr(T+2)}, {vr(T+3)}")
        A(f"v_cmp_eq_u32 vcc, -1, {vr(T)}")
        A("s_cbranch_vccz L_pstok")
        A(f"s_sleep {o.get('pstsleep', 6)}")
        A(f"ds_read_b32 {vr(T+1)}, {vr(T+7)}")
        A("s_waitcnt lgkmcnt(0)")
        A(f"v_readfirstlane_b32 {sr(S_TMP+9)}, {vr(T+1)}")
        A.nop(1)
        A(f"s_cmp_lg_u32 {sr(S_TMP+9)}, 0")
        A("s_cbranch_scc1 L_pre_s4")
        A(f"s_sub_u32 {sr(S_SPIN)}, {sr(S_SPIN)}, 1")
        A("s_cbranch_scc0 L_pst")
        A("s_branch L_pre_s4")
        A.label("L_pstok")
        st_weights()
        A(f"ds_write_b32 {vr(T+6)}, {vr(T+2)}")
        lds_inc(F_W, T+8)
        A("s_waitcnt lgkmcnt(0)")
        stamp("w_pre")
    A("s_branch L_pre_s4")
    A.label("L_notstat")
    wo_frag()
    A(f"s_cmp_lt_u32 s2, 8")
    A("s_cbranch_scc0 L_pre_s4")
    GG = 86
    V_NA = T + 12
    A(f"s_sub_u32 {sr(S_TMP+2)}, {sr(S_WAVE)}, 1")
    A(f"s_lshl_b32 {sr(S_TMP+3)}, {sr(S_TMP+2)}, 14")
    A(f"s_add_u32 {sr(S_TMP+3)}, {sr(S_TMP+3)}, {WS_GT}")
    for k in range(1, 4):
        A(f"s_add_u32 {sr(S_TMP+3+k)}, {sr(S_TMP+3)}, {4096*k}")
    A(f"v_and_b32 {vr(T+10)}, 3, v0")
    A(f"v_lshlrev_b32 {vr(T+10)}, 6, {vr(T+10)}")
    A(f"s_lshl_b32 {sr(S_TMP+2)}, {sr(S_TMP+2)}, 13")
    A(f"s_add_u32 {sr(S_TMP+2)}, {sr(S_TMP+2)}, {L_GT}")
    A(f"v_add_u32 {vr(T+11)}, {sr(S_TMP+2)}, {vr(V_L8)}")
    lds_wait(F_ST, 1, T+4, sleep=4)
    A(f"s_mov_b32 {sr(S_SPIN)}, {SPIN_LIMIT}")
    A.label("L_gchk")
    for i in range(16):
        A(f"buffer_load_dwordx4 {vr(GG+4*i,4)}, {vr(V_L16)}, {sr(SWS,4)}, {sr(S_TMP+3+(i>>2))} offen offset:{(i&3)*1024} sc1")
    A(f"buffer_load_dword {vr(V_NA)}, {vr(T+10)}, {sr(SDBG,4)}, 0 offen sc1")
    A(f"buffer_load_dword {vr(V_NA+1)}, {vr(T+10)}, {sr(SDBG,4)}, 0 offen offset:32 sc1")
    A("s_waitcnt vmcnt(0)")
    A(f"v_and_b32 {vr(T)}, {vr(V_NA)}, {vr(V_NA+1)}")
    A(f"v_and_b32 {vr(T)}, 1, {vr(T)}")
    A(f"v_xor_b32 {vr(T)}, 1, {vr(T)}")
    for i in range(16):
        A(f"v_xor_b32 {vr(T+1)}, {vr(V_NA)}, {vr(GG+4*i+1)}")
        A(f"v_xor_b32 {vr(T+2)}, {vr(V_NA+1)}, {vr(GG+4*i+3)}")
        A(f"v_or3_b32 {vr(T)}, {vr(T)}, {vr(T+1)}, {vr(T+2)}")
    A(f"v_cmp_ne_u32 vcc, 0, {vr(T)}")
    A("s_cbranch_vccz L_gok")
    A("s_sleep 32")
    A(f"s_sub_u32 {sr(S_SPIN)}, {sr(S_SPIN)}, 1")
    A("s_cbranch_scc0 L_gchk")
    A.label("L_gok")
    lds_wait(F_WO, 4, T+4)
    for i in range(16):
        A(f"v_mov_b32 {vr(GG+4*i+1)}, {vr(GG+4*i+2)}")
    for i in range(16):
        A(f"ds_write_b64 {vr(T+11)}, {vr(GG+4*i,2)} offset:{i*512}")
    stamp("gt_done")
    A.label("L_pre_s4")
    A("s_waitcnt lgkmcnt(0)")
    A("s_barrier")
    stamp("s4")
    if 'T' in o['skip']: A("s_branch L_fin")
    RB = 86
    for w in range(4):
        ad = V_PR if w < 2 else V_PR + 5
        A(f"ds_read_b64 {vr(RB+2*w,2)}, {vr(ad)} offset:{(w&1)*RING}")
    S_M = 80
    WT = 160
    if o["stpre"]:
        A(f"v_mov_b32 {vr(T+1)}, {F_W}")
        A(f"v_lshl_add_u32 {vr(T+7)}, {vr(V_G)}, 5, {vr(T+1)}")
        A(f"ds_read_b32 {vr(T+1)}, {vr(T+1)}")
        A(f"ds_read_b128 {vr(WT,4)}, {vr(T+7)} offset:{L_W-F_W}")
        A(f"ds_read_b128 {vr(WT+4,4)}, {vr(T+7)} offset:{L_W-F_W+16}")
    for k in range(4):
        A(f"s_mov_b64 {sr(S_M+2*k,2)}, -1")
    A(f"s_mov_b32 {sr(S_SPIN)}, {SPIN_LIMIT}")
    A(f"s_waitcnt lgkmcnt({5 if o['stpre'] else 2})")
    A(f"v_pk_add_f32 {vr(RB,2)}, {vr(RB,2)}, {vr(RB+2,2)}")
    A(f"s_waitcnt lgkmcnt({3 if o['stpre'] else 0})")
    A(f"v_pk_add_f32 {vr(RB+4,2)}, {vr(RB+4,2)}, {vr(RB+6,2)}")
    A(f"v_pk_add_f32 {vr(RB,2)}, {vr(RB,2)}, {vr(RB+4,2)}")
    A(f"v_cvt_pk_bf16_f32 {vr(RB+2)}, {vr(RB)}, {vr(RB+1)}")
    A(f"v_min_u32 {vr(RB+2)}, -2, {vr(RB+2)}")
    A(f"buffer_store_dword {vr(RB+2)}, {vr(V_L4)}, {sr(SWS,4)}, {sr(S_R1P)} offen sc1")
    stamp("r1_pub")
    if o["stpre"]:
        A("s_waitcnt lgkmcnt(0)")
        A(f"v_readfirstlane_b32 {sr(S_TMP+9)}, {vr(T+1)}")
        A.nop(1)
        A(f"s_cmp_lg_u32 {sr(S_TMP+9)}, 0")
        A("s_cbranch_scc1 L_wdone2")
    L_WX = 20480
    A(f"v_and_b32 {vr(T+4)}, 31, v0")
    A(f"v_lshlrev_b32 {vr(T+5)}, 5, {vr(T+4)}")
    A(f"s_lshl_b32 {sr(S_TMP+3)}, {sr(S_WAVE)}, 7")
    A(f"s_add_u32 {sr(S_TMP+3)}, {sr(S_TMP+3)}, {L_WX}")
    A(f"v_lshl_add_u32 {vr(T+6)}, {vr(T+4)}, 2, {sr(S_TMP+3)}")
    A(f"v_lshl_add_u32 {vr(T+7)}, {vr(V_G)}, 5, {sr(S_TMP+3)}")
    A.label("L_stloop")
    A(f"buffer_load_dwordx2 {vr(T+2,2)}, {vr(T+5)}, {sr(SWS,4)}, {sr(S_STC)} offen sc1")
    A("s_waitcnt vmcnt(0)")
    A(f"v_max_u32 {vr(T)}, {vr(T+2)}, {vr(T+3)}")
    A(f"v_cmp_eq_u32 vcc, -1, {vr(T)}")
    A("s_cbranch_vccz L_stok")
    A(f"s_sleep {o.get('stsleep', 2)}")
    A(f"s_sub_u32 {sr(S_SPIN)}, {sr(S_SPIN)}, 1")
    A("s_cbranch_scc0 L_stloop")
    A.label("L_stok")
    st_weights()
    A(f"ds_write_b32 {vr(T+6)}, {vr(T+2)}")
    A("s_waitcnt lgkmcnt(0)")
    A(f"ds_read_b128 {vr(WT,4)}, {vr(T+7)}")
    A(f"ds_read_b128 {vr(WT+4,4)}, {vr(T+7)} offset:16")
    A.label("L_wdone2")
    A(f"s_mov_b32 {sr(S_SPIN)}, {SPIN_LIMIT}")
    RA = 96
    if o["r1split"]:
        L_AX = 8192
        RQ = RA + 32
        if o["stag1"]:
            A(f"buffer_load_dwordx4 {vr(RQ,4)}, {vr(V_R1A)}, {sr(SWS,4)}, {sr(S_R1Q)} offen sc1")
            A(f"buffer_load_dwordx4 {vr(RQ+4,4)}, {vr(V_R1A)}, {sr(SWS,4)}, {sr(S_R1Q)} offen offset:64 sc1")
            A(f"s_sleep {o['stag1']}")
        A.label("L_r1loop")
        A(f"s_mov_b64 exec, {sr(S_M,2)}")
        A(f"buffer_load_dwordx4 {vr(RQ,4)}, {vr(V_R1A)}, {sr(SWS,4)}, {sr(S_R1Q)} offen sc1")
        A(f"buffer_load_dwordx4 {vr(RQ+4,4)}, {vr(V_R1A)}, {sr(SWS,4)}, {sr(S_R1Q)} offen offset:64 sc1")
        A("s_mov_b64 exec, -1")
        A(f"s_waitcnt vmcnt({2 if o['stag1'] else 0})")
        A(f"v_max3_u32 {vr(T)}, {vr(RQ)}, {vr(RQ+1)}, {vr(RQ+2)}")
        A(f"v_max3_u32 {vr(T+1)}, {vr(RQ+3)}, {vr(RQ+4)}, {vr(RQ+5)}")
        A(f"v_max3_u32 {vr(T)}, {vr(T)}, {vr(RQ+6)}, {vr(RQ+7)}")
        A(f"v_max_u32 {vr(T)}, {vr(T)}, {vr(T+1)}")
        A(f"v_cmp_eq_u32 {sr(S_M,2)}, -1, {vr(T)}")
        A(f"s_cmp_eq_u64 {sr(S_M,2)}, 0")
        A("s_cbranch_scc1 L_r1ok")
        if o["r1sleep"]: A(f"s_sleep {o['r1sleep']}")
        if o.get("r1ad"):
            thr, sl = o["r1ad"]
            A(f"s_bcnt1_i32_b64 {sr(S_TMP+2)}, {sr(S_M,2)}")
            A(f"s_cmp_le_u32 {sr(S_TMP+2)}, {thr}")
            A("s_cbranch_scc1 L_r1ns")
            A(f"s_sleep {sl}")
            A.label("L_r1ns")
        A(f"s_sub_u32 {sr(S_SPIN)}, {sr(S_SPIN)}, 1")
        A("s_cbranch_scc0 L_r1loop")
        A.label("L_r1ok")
        A(f"ds_write_b128 {vr(V_AXW)}, {vr(RQ,4)} offset:{L_AX}")
        A(f"ds_write_b128 {vr(V_AXW)}, {vr(RQ+4,4)} offset:{L_AX+1024}")
        A("s_waitcnt lgkmcnt(0)")
        A("s_barrier")
        for i in range(8):
            A(f"ds_read_b128 {vr(RA+4*i,4)}, {vr(V_L16)} offset:{L_AX+1024*i}")
        A("s_waitcnt lgkmcnt(0)")
    else:
        def r1_batch():
            for k in range(4):
                tau, up = k >> 1, k & 1
                A(f"s_mov_b64 exec, {sr(S_M+2*k,2)}")
                for uu in range(2):
                    u = 2 * up + uu
                    A(f"buffer_load_dwordx4 {vr(RA+8*k+4*uu,4)}, {vr(V_R1A)}, {sr(SWS,4)}, {sr(S_R1C)} offen offset:{tau*2048+u*64} sc1")
            A("s_mov_b64 exec, -1")
        for _ in range(o["nb1"] - 1): r1_batch()
        A.label("L_r1loop")
        r1_batch()
        A(f"s_waitcnt vmcnt({8*(o['nb1']-1)})")
        for k in range(4):
            A(f"v_max3_u32 {vr(T+k)}, {vr(RA+8*k)}, {vr(RA+8*k+1)}, {vr(RA+8*k+2)}")
        for k in range(4):
            A(f"v_max3_u32 {vr(T+k)}, {vr(T+k)}, {vr(RA+8*k+3)}, {vr(RA+8*k+4)}")
        for k in range(4):
            A(f"v_max3_u32 {vr(T+k)}, {vr(T+k)}, {vr(RA+8*k+5)}, {vr(RA+8*k+6)}")
        for k in range(4):
            A(f"v_max_u32 {vr(T+k)}, {vr(T+k)}, {vr(RA+8*k+7)}")
        for k in range(4):
            A(f"v_cmp_eq_u32 {sr(S_M+2*k,2)}, -1, {vr(T+k)}")
        A(f"s_or_b64 {sr(S_TMP,2)}, {sr(S_M,2)}, {sr(S_M+2,2)}")
        A(f"s_or_b64 {sr(S_TMP+2,2)}, {sr(S_M+4,2)}, {sr(S_M+6,2)}")
        A(f"s_or_b64 {sr(S_TMP,2)}, {sr(S_TMP,2)}, {sr(S_TMP+2,2)}")
        A("s_cbranch_scc0 L_r1ok")
        if o["r1sleep"]:
            A(f"s_bcnt1_i32_b64 {sr(S_TMP+2)}, {sr(S_TMP,2)}")
            A(f"s_cmp_lt_u32 {sr(S_TMP+2)}, 17")
            A("s_cbranch_scc1 L_r1ns")
            A(f"s_sleep {o['r1sleep']}")
            A.label("L_r1ns")
        A(f"s_sub_u32 {sr(S_SPIN)}, {sr(S_SPIN)}, 1")
        A("s_cbranch_scc0 L_r1loop")
        A.label("L_r1ok")
    OD = T + 8
    for u in range(4):
        for tau in range(2):
            k, uu = 2 * tau + (u >> 1), u & 1
            od = OD + 4 * tau
            c = "0" if u == 0 else vr(od, 4)
            A(f"v_mfma_f32_16x16x32_bf16 {vr(od,4)}, {vr(RA+8*k+4*uu,4)}, {vr(V_WO+4*u,4)}, {c}")
    stamp("r1_ok")
    A.nop(8)
    A(f"v_mul_f32 {vr(T+1)}, {vr(WT+0)}, {vr(OD+0)}")
    A(f"v_mul_f32 {vr(T+2)}, {vr(WT+4)}, {vr(OD+2)}")
    A(f"v_fmac_f32 {vr(T+1)}, {vr(WT+1)}, {vr(OD+1)}")
    A(f"v_fmac_f32 {vr(T+2)}, {vr(WT+5)}, {vr(OD+3)}")
    A(f"v_fmac_f32 {vr(T+1)}, {vr(WT+2)}, {vr(OD+4)}")
    A(f"v_fmac_f32 {vr(T+2)}, {vr(WT+6)}, {vr(OD+6)}")
    A(f"v_fmac_f32 {vr(T+1)}, {vr(WT+3)}, {vr(OD+5)}")
    A(f"v_fmac_f32 {vr(T+2)}, {vr(WT+7)}, {vr(OD+7)}")
    A(f"v_min_u32 {vr(T+1)}, -2, {vr(T+1)}")
    A(f"v_min_u32 {vr(T+2)}, -2, {vr(T+2)}")
    A(f"buffer_store_dword {vr(T+1)}, {vr(V_R2A)}, {sr(SWS,4)}, {sr(S_R2P)} offen sc1")
    A(f"buffer_store_dword {vr(T+2)}, {vr(V_R2A)}, {sr(SWS,4)}, {sr(S_R2P+1)} offen sc1")
    stamp("r2_pub")
    if o["stag1"]: A("s_waitcnt vmcnt(2)")
    A(f"s_cmp_lt_u32 s2, 8")
    A("s_cbranch_scc0 L_fin")
    FB = 96
    H = 196
    OWN = 184
    D_ = T + 24
    N1 = T + 32
    LT2 = T
    A(f"s_lshl_b32 {sr(S_TMP+2)}, s2, 16")
    A(f"s_lshl_b32 {sr(S_TMP+6)}, {sr(S_WAVE)}, 9")
    A(f"s_add_u32 {sr(S_TMP+2)}, {sr(S_TMP+2)}, {sr(S_TMP+6)}")
    A(f"s_add_u32 {sr(S_TMP+2)}, {sr(S_TMP+2)}, {WS_R2}")
    A(f"s_add_u32 {sr(S_TMP+6)}, {sr(S_TMP+6)}, {L_H}")
    A(f"v_lshl_add_u32 {vr(OWN+8)}, {vr(V_CP)}, 1, {sr(S_TMP+6)}")
    A(f"v_lshlrev_b32 {vr(OWN+9)}, 5, v0")
    A(f"v_add_u32 {vr(OWN+9)}, {L_H}, {vr(OWN+9)}")
    A(f"v_lshlrev_b32 {vr(OWN+6)}, 16, {vr(V_XF)}")
    A(f"v_and_b32 {vr(OWN+7)}, 0xffff0000, {vr(V_XF)}")
    A(f"v_and_b32 {vr(OWN+10)}, 31, v0")
    A(f"v_lshlrev_b32 {vr(OWN+10)}, 4, {vr(OWN+10)}")
    A(f"v_lshrrev_b32 {vr(OWN+11)}, 5, v0")
    A(f"v_lshl_add_u32 {vr(OWN+10)}, {vr(OWN+11)}, 11, {vr(OWN+10)}")
    A(f"s_mov_b32 {sr(S_SPIN)}, {SPIN_LIMIT}")
    for k in range(4):
        A(f"s_mov_b64 {sr(S_M+2*k,2)}, -1")
    for i in range(16):
        A(f"s_add_u32 {sr(S_RB+i)}, {sr(S_TMP+2)}, {i*4096}")
    if not o["r2nw"]: A("s_waitcnt vmcnt(0)")
    def r2_batch():
        for k in range(4):
            A(f"s_mov_b64 exec, {sr(S_M+2*k,2)}")
            for pp in range(4):
                i = 4 * k + pp
                A(f"buffer_load_dwordx4 {vr(FB+4*i,4)}, {vr(OWN+10)}, {sr(SWS,4)}, {sr(S_RB+i)} offen sc1")
        A("s_mov_b64 exec, -1")
    for _ in range(o["nb2"] - 1):
        r2_batch()
        if o["stag2"]: A(f"s_sleep {o['stag2']}")
    A.label("L_r2loop")
    r2_batch()
    A(f"s_waitcnt vmcnt({16*(o['nb2']-1)})")
    for st in range(8):
        for k in range(4):
            r = FB + 16 * k
            if st == 0:
                A(f"v_max3_u32 {vr(T+k)}, {vr(r)}, {vr(r+1)}, {vr(r+2)}")
            elif st < 7:
                A(f"v_max3_u32 {vr(T+k)}, {vr(T+k)}, {vr(r+1+2*st)}, {vr(r+2+2*st)}")
            else:
                A(f"v_max_u32 {vr(T+k)}, {vr(T+k)}, {vr(r+15)}")
    for k in range(4):
        A(f"v_cmp_eq_u32 {sr(S_M+2*k,2)}, -1, {vr(T+k)}")
    A(f"s_or_b64 {sr(S_TMP,2)}, {sr(S_M,2)}, {sr(S_M+2,2)}")
    A(f"s_or_b64 {sr(S_TMP+4,2)}, {sr(S_M+4,2)}, {sr(S_M+6,2)}")
    A(f"s_or_b64 {sr(S_TMP,2)}, {sr(S_TMP,2)}, {sr(S_TMP+4,2)}")
    A("s_cbranch_scc0 L_r2ok")
    A(f"s_sub_u32 {sr(S_SPIN)}, {sr(S_SPIN)}, 1")
    A("s_cbranch_scc0 L_r2loop")
    A.label("L_r2ok")
    SM = T + 8
    for i in range(4):
        for hh_ in range(2):
            A(f"v_pk_add_f32 {vr(SM+4*i+2*hh_,2)}, {vr(FB+16*i+2*hh_,2)}, {vr(FB+16*i+4+2*hh_,2)}")
    for j in (2, 3):
        for i in range(4):
            for hh_ in range(2):
                A(f"v_pk_add_f32 {vr(SM+4*i+2*hh_,2)}, {vr(SM+4*i+2*hh_,2)}, {vr(FB+16*i+4*j+2*hh_,2)}")
    for hh_ in range(2):
        A(f"v_pk_add_f32 {vr(SM+2*hh_,2)}, {vr(SM+2*hh_,2)}, {vr(SM+4+2*hh_,2)}")
        A(f"v_pk_add_f32 {vr(SM+8+2*hh_,2)}, {vr(SM+8+2*hh_,2)}, {vr(SM+12+2*hh_,2)}")
    for hh_ in range(2):
        A(f"v_pk_add_f32 {vr(SM+2*hh_,2)}, {vr(SM+2*hh_,2)}, {vr(SM+8+2*hh_,2)}")
    A.nop(1)
    A(f"v_permlane32_swap_b32 {vr(SM)}, {vr(SM+2)}")
    A(f"v_permlane32_swap_b32 {vr(SM+1)}, {vr(SM+3)}")
    A.nop(1)
    FB = SM + 4
    A(f"v_pk_add_f32 {vr(FB,2)}, {vr(SM,2)}, {vr(SM+2,2)}")
    rne2(FB, FB+1, T)
    A(f"v_pk_add_f32 {vr(OWN,2)}, {vr(FB,2)}, {vr(OWN+6,2)}")
    rne2(OWN, OWN+1, T)
    A(f"ds_write_b64 {vr(OWN+8)}, {vr(OWN,2)}")
    A("s_waitcnt lgkmcnt(0)")
    A("s_barrier")
    stamp("r2_ok")
    A(f"ds_read_b128 {vr(H,4)}, {vr(OWN+9)}")
    A(f"ds_read_b128 {vr(H+4,4)}, {vr(OWN+9)} offset:16")
    def ln_stats(x, t):
        A(f"v_readfirstlane_b32 {sr(S_TMP+7)}, {vr(x)}")
        A.nop(2)
        A(f"v_mov_b32 {vr(t+2)}, {sr(S_TMP+7)}")
        A(f"v_mov_b32 {vr(t+3)}, {sr(S_TMP+7)}")
        for i in range(0, 8, 2):
            A(f"v_pk_add_f32 {vr(t+4+i,2)}, {vr(x+i,2)}, {vr(t+2,2)} neg_lo:[0,1] neg_hi:[0,1]")
        A(f"v_pk_add_f32 {vr(t,2)}, {vr(t+4,2)}, {vr(t+6,2)}")
        A(f"v_pk_mul_f32 {vr(t+12,2)}, {vr(t+4,2)}, {vr(t+4,2)}")
        A(f"v_pk_add_f32 {vr(t,2)}, {vr(t,2)}, {vr(t+8,2)}")
        A(f"v_pk_fma_f32 {vr(t+12,2)}, {vr(t+6,2)}, {vr(t+6,2)}, {vr(t+12,2)}")
        A(f"v_pk_add_f32 {vr(t,2)}, {vr(t,2)}, {vr(t+10,2)}")
        A(f"v_pk_fma_f32 {vr(t+12,2)}, {vr(t+8,2)}, {vr(t+8,2)}, {vr(t+12,2)}")
        A(f"v_add_f32 {vr(t)}, {vr(t)}, {vr(t+1)}")
        A(f"v_pk_fma_f32 {vr(t+12,2)}, {vr(t+10,2)}, {vr(t+10,2)}, {vr(t+12,2)}")
        A(f"v_add_f32 {vr(t+1)}, {vr(t+12)}, {vr(t+13)}")
        allreduce("v_add_f32", [t, t+1], [t+4, t+5])
        A(f"v_mul_f32 {vr(t)}, {hex(f2u(1/512))}, {vr(t)}")
        A(f"v_mul_f32 {vr(t+1)}, {hex(f2u(1/512))}, {vr(t+1)}")
        A(f"v_fma_f32 {vr(t+1)}, -{vr(t)}, {vr(t)}, {vr(t+1)}")
        A(f"v_add_f32 {vr(t)}, {vr(t)}, {vr(t+2)}")
        A(f"v_max_f32 {vr(t+1)}, 0, {vr(t+1)}")
        rne2(t, t+1, t+4)
        A(f"v_add_f32 {vr(t+1)}, {hex(f2u(1e-5))}, {vr(t+1)}")
        rne1(t+1, t+1)
        A(f"v_sqrt_f32 {vr(t+1)}, {vr(t+1)}")
        A.nop(1)
        rne1(t+1, t+1)
        A(f"v_rcp_f32 {vr(t+2)}, {vr(t+1)}")
        A(f"v_mov_b32 {vr(t+4)}, {vr(t)}")
        A(f"v_mov_b32 {vr(t+5)}, {vr(t)}")
        A(f"v_mov_b32 {vr(t+6)}, {vr(t+1)}")
        A(f"v_mov_b32 {vr(t+7)}, {vr(t+1)}")
        A(f"v_mov_b32 {vr(t+3)}, {vr(t+2)}")
    def ln_apply(pairs, t, pk):
        for (s_, d, n) in pairs:
            A(f"v_pk_add_f32 {vr(d,2)}, {vr(s_,2)}, {vr(t+4,2)} neg_lo:[0,1] neg_hi:[0,1]")
        for i, (s_, d, n) in enumerate(pairs):
            A(f"v_cvt_pk_bf16_f32 {vr(pk+i)}, {vr(d)}, {vr(d+1)}")
        for i, (s_, d, n) in enumerate(pairs):
            A(f"v_lshlrev_b32 {vr(d)}, 16, {vr(pk+i)}")
            A(f"v_and_b32 {vr(d+1)}, 0xffff0000, {vr(pk+i)}")
        for (s_, d, n) in pairs:
            A(f"v_pk_mul_f32 {vr(n,2)}, {vr(d,2)}, {vr(t+2,2)}")
        for (s_, d, n) in pairs:
            A(f"v_pk_fma_f32 {vr(d,2)}, {vr(n,2)}, {vr(t+6,2)}, {vr(d,2)} neg_lo:[1,0,0] neg_hi:[1,0,0]")
        for (s_, d, n) in pairs:
            A(f"v_pk_fma_f32 {vr(n,2)}, {vr(d,2)}, {vr(t+2,2)}, {vr(n,2)}")
        for i, (s_, d, n) in enumerate(pairs):
            A(f"v_cvt_pk_bf16_f32 {vr(pk+i)}, {vr(n)}, {vr(n+1)}")
        for i, (s_, d, n) in enumerate(pairs):
            A(f"v_lshlrev_b32 {vr(n)}, 16, {vr(pk+i)}")
            A(f"v_and_b32 {vr(n+1)}, 0xffff0000, {vr(pk+i)}")
    A("s_waitcnt lgkmcnt(0)")
    ln_stats(H, LT2)
    ln_apply([(H+i, D_+i, N1+i) for i in range(0, 8, 2)] + [(OWN, OWN+4, OWN+2)], LT2, LT2+8)
    ln_stats(N1, LT2)
    ln_apply([(OWN+2, OWN+4, OWN+2)], LT2, LT2+8)
    Y = OWN + 4
    S_MS = 80
    A(f"s_mov_b32 {sr(S_TMP+8)}, {o.get('fbtest', NEXP) * 128}")
    for x in range(2):
        A(f"v_bfe_u32 {vr(LT2+2*x)}, {vr(OWN+2+x)}, 16, 15")
        A(f"v_subrev_u32 {vr(LT2+2*x)}, {E0*128}, {vr(LT2+2*x)}")
        A(f"v_cmp_gt_u32 {sr(S_MS+2*x,2)}, {sr(S_TMP+8)}, {vr(LT2+2*x)}")
        A(f"v_lshrrev_b32 {vr(LT2+2*x+1)}, 31, {vr(OWN+2+x)}")
        A(f"v_mul_u32_u24 {vr(LT2+2*x+1)}, {GT_HALF}, {vr(LT2+2*x+1)}")
        A(f"v_cndmask_b32 {vr(LT2+2*x)}, 0, {vr(LT2+2*x)}, {sr(S_MS+2*x,2)}")
        A(f"v_add_lshl_u32 {vr(LT2+2*x)}, {vr(LT2+2*x)}, {vr(LT2+2*x+1)}, 2")
        A(f"v_add_u32 {vr(LT2+2*x)}, {L_GT}, {vr(LT2+2*x)}")
        A(f"ds_read_b32 {vr(Y+x)}, {vr(LT2+2*x)}")
    A(f"s_and_b64 {sr(S_TMP+4,2)}, {sr(S_MS,2)}, {sr(S_MS+2,2)}")
    A(f"s_lshl_b32 {sr(S_TMP+2)}, s2, 10")
    A(f"s_lshl_b32 {sr(S_TMP+3)}, {sr(S_WAVE)}, 8")
    A(f"s_add_u32 {sr(S_TMP+2)}, {sr(S_TMP+2)}, {sr(S_TMP+3)}")
    A(f"s_cmp_eq_u64 {sr(S_TMP+4,2)}, -1")
    A("s_waitcnt lgkmcnt(0)")
    A("s_cbranch_scc1 L_nofb")
    A("s_waitcnt vmcnt(0)")
    gw_load()
    gw_unpack()
    for x in range(2):
        lp, dn = A.newlabel("Lfb"), A.newlabel("Lfbd")
        A(f"s_not_b64 {sr(S_TMP+4,2)}, {sr(S_MS+2*x,2)}")
        A.label(lp)
        A(f"s_cmp_eq_u64 {sr(S_TMP+4,2)}, 0")
        A(f"s_cbranch_scc1 {dn}")
        A(f"s_ff1_i32_b64 {sr(S_TMP+6)}, {sr(S_TMP+4,2)}")
        A(f"s_bitset0_b64 {sr(S_TMP+4,2)}, {sr(S_TMP+6)}")
        A(f"v_readlane_b32 {sr(S_TMP+7)}, {vr(OWN+2+x)}, {sr(S_TMP+6)}")
        A(f"v_mov_b32 {vr(G_ACC)}, 0")
        A.nop(2)
        A(f"v_mov_b32 {vr(G_T)}, {sr(S_TMP+7)}")
        A(f"v_mov_b32 {vr(G_K0)}, {hex(f2u(K0))}")
        for c in range(7):
            g_chunk(c, 1)
        g_finish(1)
        A(f"s_lshl_b64 exec, 1, {sr(S_TMP+6)}")
        A(f"v_mov_b32 {vr(Y+x)}, {vr(G_ACC)}")
        A("s_mov_b64 exec, -1")
        A(f"s_branch {lp}")
        A.label(dn)
    A.label("L_nofb")
    A(f"v_pk_add_f32 {vr(Y,2)}, {vr(Y,2)}, {vr(OWN,2)}")
    A(f"v_cvt_pk_bf16_f32 {vr(Y)}, {vr(Y)}, {vr(Y+1)}")
    A(f"buffer_store_dword {vr(Y)}, {vr(V_CP)}, {sr(SOUT,4)}, {sr(S_TMP+2)} offen")
    A("s_branch L_fin")

    A.label("L_stream")
    cur[0] = "s"
    A.vm = 0
    A(f"s_setprio {o['pst']}")
    V_KD = 2
    V_KR = 6
    V_VO = 10
    V_M0, V_M1 = 11, 14
    V_MW, V_LS = 15, 236
    V_ACC = 16
    V_XA = 24
    V_XB = 30
    V_Q = 36
    V_S = 52
    V_KF = 92
    V_V = 124
    T = 238
    NVS = 7
    S_SW = 62
    A(f"s_sub_u32 {sr(S_SW)}, {sr(S_WAVE)}, 4")
    A(f"s_lshl_b32 {sr(S_KOFF)}, {sr(S_B)}, 23")
    A(f"s_lshl_b32 {sr(S_TMP+3)}, {sr(S_HKV)}, 20")
    A(f"s_add_u32 {sr(S_KOFF)}, {sr(S_KOFF)}, {sr(S_TMP+3)}")
    A(f"s_lshl_b32 {sr(S_TMP+3)}, {sr(S_SW)}, 12")
    A(f"s_add_u32 {sr(S_KOFF)}, {sr(S_KOFF)}, {sr(S_TMP+3)}")
    DYN, NS, CAP = o["dyn"], o["S"], o["cap"]
    POOL = 64 - 4 * NS
    S_NR, S_OFF, S_DYN, S_CNT, S_CL, S_FD = 28, 32, 36, 37, 38, 76
    V_CLM = V_S + 36
    if DYN:
        assert 4 * CAP >= POOL and 8 < NS <= 13
        A(f"s_add_u32 {sr(S_DYN)}, {sr(S_KOFF)}, {4*NS*16384}")
        A(f"s_mul_i32 {sr(S_TMP+3)}, {sr(S_S)}, {NS*16384}")
        A(f"s_lshl_b32 {sr(S_CNT)}, {sr(S_HKV)}, 3")
        A(f"s_add_u32 {sr(S_CNT)}, {sr(S_CNT)}, {sr(S_B)}")
        A(f"s_lshl_b32 {sr(S_CNT)}, {sr(S_CNT)}, 2")
        A(f"s_add_u32 {sr(S_CNT)}, {sr(S_CNT)}, {sr(S_SW)}")
        A(f"s_lshl_b32 {sr(S_CNT)}, {sr(S_CNT)}, 7")
        A(f"s_add_u32 {sr(S_CNT)}, {sr(S_CNT)}, {WS_CNT}")
    else:
        A(f"s_lshl_b32 {sr(S_TMP+3)}, {sr(S_S)}, {14 if o.get('il') else 18}")
    A(f"s_add_u32 {sr(S_KOFF)}, {sr(S_KOFF)}, {sr(S_TMP+3)}")
    A(f"s_lshl_b32 {sr(S_RING)}, {sr(S_SW)}, 15")
    S_ROT = 39
    if o["rot"] == 1:
        A(f"s_lshl_b32 {sr(S_ROT)}, {sr(S_HKV)}, 1")
        A(f"s_add_u32 {sr(S_ROT)}, {sr(S_ROT)}, {sr(S_IDX)}")
    elif o["rot"] == 2:
        A(f"s_mul_i32 {sr(S_ROT)}, {sr(S_IDX)}, 5")
        A(f"s_lshl_b32 {sr(S_TMP+3)}, {sr(S_HKV)}, 1")
        A(f"s_add_u32 {sr(S_ROT)}, {sr(S_ROT)}, {sr(S_TMP+3)}")
    elif o["rot"] == 3:
        A(f"s_lshl_b32 {sr(S_ROT)}, {sr(S_B)}, 1")
    elif o["rot"] == 4:
        A(f"s_lshl_b32 {sr(S_ROT)}, {sr(S_B)}, 1")
        A(f"s_add_u32 {sr(S_ROT)}, {sr(S_ROT)}, {sr(S_HKV)}")
    TSH = 16 if o.get("il") else 14
    if o["rot"]: A(f"s_lshl_b32 {sr(S_ROT)}, {sr(S_ROT)}, {TSH}")
    A(f"v_xor_b32 {vr(T)}, {vr(V_J)}, {vr(V_G)}")
    A(f"v_lshlrev_b32 {vr(T+1)}, 8, {vr(V_G)}")
    A(f"v_lshlrev_b32 {vr(T+2)}, 8, {vr(V_J)}")
    A(f"v_add_u32 {vr(T+2)}, {sr(S_RING)}, {vr(T+2)}")
    for a in range(4):
        A(f"v_xor_b32 {vr(T+3)}, {4*a}, {vr(T)}")
        A(f"v_lshlrev_b32 {vr(T+3)}, 4, {vr(T+3)}")
        A(f"v_add_u32 {vr(V_KD+a)}, {vr(T+1)}, {vr(T+3)}")
        A(f"v_add_u32 {vr(V_KR+a)}, {vr(T+2)}, {vr(T+3)}")
    A(f"v_lshlrev_b32 {vr(V_VO)}, 10, {vr(V_G)}")
    A(f"v_lshl_add_u32 {vr(V_VO)}, {vr(V_J)}, 4, {vr(V_VO)}")
    A("s_waitcnt lgkmcnt(0)")
    srd(SK, 1, 64 << 20)
    srd(SV, 2, 64 << 20)
    if o["debug"] or DYN: srd(SWS, 12, WS_SIZE)
    if not o["kfirst"]: A("s_barrier")
    stamp("start")
    NV1 = o["nv1"]
    seq = [("K", t) for t in range(8)] + [("V", t) for t in range(NV1)] + [("K", t) for t in range(8, 16)] + [("V", t) for t in range(NV1, 16)]
    if DYN:
        LAG = o.get("lag", 1)
        seq = [("K", t) for t in range(8)] + [("V", t) for t in range(NV1)] + [("K", t) for t in range(8, NS)] + [("V", t) for t in range(NV1, NS - LAG)]
        for j in range(CAP): seq += [("K", NS + j), ("V", NS + j - LAG)]
        if LAG: seq += [("V", NS + CAP - 1)]
    NSEQ = len(seq)
    pos = {k: n for n, k in enumerate(seq)}
    ops = {}
    qk_done, pv_done = set(), set()
    D = o["D"]
    def Dat(n): return D if n < o["nsw"] else o["D2"]
    def land_n(m):
        for n in range(NSEQ):
            if n - Dat(n) >= m: return n
        return NSEQ
    def vslot(t): return V_V + 16 * (t if t < 7 else (t - 7) % 7)
    def sslot(t):
        if DYN and t >= NS: return V_S + 4 * (5, 6, 8)[(t - NS) % 3]
        return V_S + 4 * (t if t < 8 else (t - 8 if t < 8 + NV1 else t - NV1))
    def nr(j): return S_NR + j % 4
    known = [-1]
    def issue(n):
        k, t = seq[n]
        if k == "K" and t >= 8: assert (t - 8) in qk_done, (n, t)
        if k == "V" and t >= 7: assert (t - 7) in pv_done, (n, t)
        dj = t - NS if DYN and t >= NS else -1
        if dj >= 0 and k == "K":
            A.wait_vm(max(ops[("C", dj)], ops[seq[n - Dat(n)]]))
            A(f"v_readfirstlane_b32 {sr(S_CL)}, {vr(V_CLM + dj % 3)}")
            A(f"s_add_u32 {sr(S_TMP+4)}, {sr(S_RING)}, {(t&7)*4096}")
            A(f"s_mov_b32 m0, {sr(S_TMP+4)}")
            A(f"s_cmp_lt_u32 {sr(S_CL)}, {POOL}")
            A(f"s_cselect_b32 {sr(nr(dj))}, {sr(nr(dj-1)) if dj else hex(64 << 20)}, 0")
            A(f"s_min_u32 {sr(S_CL)}, {sr(S_CL)}, {POOL-1}")
            A(f"s_lshl_b32 {sr(S_CL)}, {sr(S_CL)}, 14")
            A(f"s_add_u32 {sr(S_OFF + dj % 4)}, {sr(S_DYN)}, {sr(S_CL)}")
            A(f"s_mov_b32 {sr(SK+2)}, {sr(nr(dj))}")
            known[0] = dj
            so = S_OFF + dj % 4
        else:
            if n >= Dat(n):
                A.wait_vm(ops[seq[n - Dat(n)]])
            if k == "K":
                A(f"s_add_u32 {sr(S_TMP+4)}, {sr(S_RING)}, {(t&7)*4096}")
                A(f"s_mov_b32 m0, {sr(S_TMP+4)}")
            so = S_TMP + 5
            if dj >= 0:
                A(f"s_mov_b32 {sr(SV+2)}, {sr(nr(dj))}")
                so = S_OFF + dj % 4
            elif o["rot"]:
                A(f"s_add_u32 {sr(S_TMP+5)}, {sr(S_ROT)}, {t << TSH}")
                A(f"s_and_b32 {sr(S_TMP+5)}, {sr(S_TMP+5)}, {hex((16 << TSH) - 1)}")
                A(f"s_add_u32 {sr(S_TMP+5)}, {sr(S_TMP+5)}, {sr(S_KOFF)}")
            else:
                A(f"s_add_u32 {sr(S_TMP+5)}, {sr(S_KOFF)}, {t*(65536 if o.get('il') and not DYN else 16384)}")
        if k == "K":
            for a in range(4):
                ops[(k, t)] = A.vmem(f"buffer_load_dwordx4 {vr(V_KD+a)}, {sr(SK,4)}, {sr(so)} offen offset:{a*1024} nt lds")
        else:
            base = vslot(t)
            for u in range(4):
                ops[(k, t)] = A.vmem(f"buffer_load_dwordx4 {vr(base+4*u,4)}, {vr(V_VO)}, {sr(SV,4)}, {sr(so)} offen offset:{u*256} nt")
        if DYN:
            for j in range(CAP):
                nk = pos[("K", NS + j)]
                if nk - Dat(nk) - o.get("cearly", 0) == n:
                    assert n > o["qpos"] and known[0] >= j - 3
                    A(f"v_mov_b32 {vr(V_CLM + j % 3)}, 1")
                    if known[0] >= 0: A(f"s_mov_b32 {sr(SWS+2)}, {sr(nr(known[0]))}")
                    A("s_mov_b64 exec, 1")
                    ops[("C", j)] = A.vmem(f"buffer_atomic_add {vr(V_CLM + j % 3)}, off, {sr(SWS,4)}, {sr(S_CNT)} sc0")
                    A("s_mov_b64 exec, -1")
    SC = hex(f2u(128 ** -0.5))
    def k_read(t):
        A.wait_vm(ops[("K", t)])
        for ks in range(4):
            A(f"ds_read_b128 {vr(V_KF+16*(t&1)+4*ks,4)}, {vr(V_KR+ks)} offset:{(t&7)*4096}")
    def k_mfma(t):
        s_ = sslot(t)
        if 8 <= t < 8 + NV1: assert (t - 8) in pv_done, t
        qk_done.add(t)
        for ks in range(4):
            c = "0" if ks == 0 else vr(s_, 4)
            A(f"v_mfma_f32_16x16x32_bf16 {vr(s_,4)}, {vr(V_KF+16*(t&1)+4*ks,4)}, {vr(V_Q+4*ks,4)}, {c}")
    def s_round(tiles):
        regs = [sslot(t) + r for t in tiles for r in range(4)]
        P = T
        A.nop(4)
        for ph in range(2):
            for i in range(0, len(regs), 2):
                A(f"v_cvt_pk_bf16_f32 {vr(P+i//2)}, {vr(regs[i])}, {vr(regs[i+1])}")
            for i in range(0, len(regs), 2):
                A(f"v_lshlrev_b32 {vr(regs[i])}, 16, {vr(P+i//2)}")
                A(f"v_and_b32 {vr(regs[i+1])}, 0xffff0000, {vr(P+i//2)}")
            if ph == 0:
                for r in regs:
                    A(f"v_mul_f32 {vr(r)}, {SC}, {vr(r)}")
    def qk_burst(tiles):
        k_read(tiles[0])
        for i, t in enumerate(tiles):
            if i + 1 < len(tiles):
                k_read(tiles[i + 1])
                A("s_waitcnt lgkmcnt(4)")
            else:
                A("s_waitcnt lgkmcnt(0)")
            k_mfma(t)
    pend = []
    def qk_one(t):
        k_read(t)
        if pend:
            s_round(list(pend)); pend.clear()
        A("s_waitcnt lgkmcnt(0)")
        k_mfma(t)
        pend.append(t)
    def softmax(tiles, first):
        regs = [sslot(t) + r for t in tiles for r in range(4)]
        P = T
        n = len(regs)
        ch = [regs[i::4] for i in range(4)]
        for i in range(4):
            c = ch[i]
            A(f"v_max3_f32 {vr(P+i)}, {vr(c[0])}, {vr(c[1])}, {vr(c[2])}")
        k = 3
        while k < len(ch[0]):
            for i in range(4):
                c = ch[i]
                if k + 1 < len(c):
                    A(f"v_max3_f32 {vr(P+i)}, {vr(P+i)}, {vr(c[k])}, {vr(c[k+1])}")
                else:
                    A(f"v_max_f32 {vr(P+i)}, {vr(P+i)}, {vr(c[k])}")
            k += 2
        A(f"v_max3_f32 {vr(P+4)}, {vr(P)}, {vr(P+1)}, {vr(P+2)}")
        A(f"v_max_f32 {vr(P+4)}, {vr(P+4)}, {vr(P+3)}")
        xreduce("v_max_f32", [P+4], [P])
        if not first:
            A(f"v_max_f32 {vr(P+4)}, {vr(P+4)}, {vr(V_MW)}")
            A(f"v_sub_f32 {vr(P+5)}, {vr(V_MW)}, {vr(P+4)}")
            A(f"v_mul_f32 {vr(P+5)}, {sr(S_C0)}, {vr(P+5)}")
            A(f"v_exp_f32 {vr(P+5)}, {vr(P+5)}")
        A(f"v_mov_b32 {vr(V_MW)}, {vr(P+4)}")
        A(f"v_mul_f32 {vr(P)}, {hex(f2u(-LOG2E))}, {vr(P+4)}")
        if not first:
            for h in range(4):
                A(f"v_readlane_b32 {sr(S_F+h)}, {vr(P+5)}, {h}")
        A(f"v_mov_b32 {vr(P+6)}, {sr(S_C0)}")
        for r in regs:
            A(f"v_fma_f32 {vr(r)}, {vr(r)}, {vr(P+6)}, {vr(P)}")
        for r in regs:
            A(f"v_exp_f32 {vr(r)}, {vr(r)}")
        for i in range(4):
            A(f"v_add_f32 {vr(P+1+i)}, {vr(ch[i][0])}, {vr(ch[i][1])}")
        for k in range(2, len(ch[0])):
            for i in range(4):
                A(f"v_add_f32 {vr(P+1+i)}, {vr(P+1+i)}, {vr(ch[i][k])}")
        A(f"v_add_f32 {vr(P+1)}, {vr(P+1)}, {vr(P+2)}")
        A(f"v_add_f32 {vr(P+3)}, {vr(P+3)}, {vr(P+4)}")
        A(f"v_add_f32 {vr(P+1)}, {vr(P+1)}, {vr(P+3)}")
        if not DYN: xreduce("v_add_f32", [P+1], [P+2])
        if first:
            A(f"v_mov_b32 {vr(V_LS)}, {vr(P+1)}")
        else:
            A(f"v_fma_f32 {vr(V_LS)}, {vr(V_LS)}, {vr(P+5)}, {vr(P+1)}")
            if not DYN: publish()
            for r in range(8):
                A(f"v_mul_f32 {vr(V_ACC+r)}, {sr(S_F+(r&3))}, {vr(V_ACC+r)}")
        for r in regs:
            A(f"v_cvt_pk_bf16_f32 {vr(r)}, {vr(r)}, {vr(r)}")
    def publish():
        P = T
        A(f"v_mov_b32 {vr(P+3)}, {vr(V_LS)}")
        A(f"s_lshl_b32 {sr(S_TMP+2)}, {sr(S_SW)}, 5")
        A(f"s_add_u32 {sr(S_TMP+2)}, {sr(S_TMP+2)}, {L_STAT}")
        A(f"v_lshl_add_u32 {vr(P+4)}, v0, 3, {sr(S_TMP+2)}")
        if DYN: xreduce("v_add_f32", [P+3], [P+2])
        A(f"v_mov_b32 {vr(P+2)}, {vr(V_MW)}")
        A("s_mov_b64 exec, 15")
        A(f"ds_write_b64 {vr(P+4)}, {vr(P+2,2)}")
        A("s_mov_b64 exec, -1")
        lds_inc(F_ST, P+6)
        stamp("pub")
    def dyn_qk(j):
        t = NS + j
        assert known[0] >= min(j + 1, CAP - 1) and (t - 3 in pv_done)
        sk = A.newlabel("Ldq")
        A(f"s_cmp_eq_u32 {sr(nr(j))}, 0")
        A(f"s_cbranch_scc1 {sk}")
        k_read(t)
        A("s_waitcnt lgkmcnt(0)")
        k_mfma(t)
        A.nop(8)
        s_round([t])
        r = [sslot(t) + i for i in range(4)]
        P = T
        A(f"v_max3_f32 {vr(P+4)}, {vr(r[0])}, {vr(r[1])}, {vr(r[2])}")
        A(f"v_max3_f32 {vr(P+4)}, {vr(P+4)}, {vr(r[3])}, {vr(V_MW)}")
        xreduce("v_max_f32", [P+4], [P])
        A(f"v_sub_f32 {vr(P+5)}, {vr(V_MW)}, {vr(P+4)}")
        A(f"v_mul_f32 {vr(P+5)}, {sr(S_C0)}, {vr(P+5)}")
        A(f"v_exp_f32 {vr(P+5)}, {vr(P+5)}")
        A(f"v_mov_b32 {vr(V_MW)}, {vr(P+4)}")
        A(f"v_mul_f32 {vr(P)}, {hex(f2u(-LOG2E))}, {vr(P+4)}")
        A(f"v_mov_b32 {vr(P+6)}, {sr(S_C0)}")
        for x in r: A(f"v_fma_f32 {vr(x)}, {vr(x)}, {vr(P+6)}, {vr(P)}")
        for x in r: A(f"v_exp_f32 {vr(x)}, {vr(x)}")
        for h in range(4):
            A(f"v_readlane_b32 {sr(S_FD + 4*(j%3) + h)}, {vr(P+5)}, {h}")
        A(f"v_add_f32 {vr(P+1)}, {vr(r[0])}, {vr(r[1])}")
        A(f"v_add_f32 {vr(P+2)}, {vr(r[2])}, {vr(r[3])}")
        A(f"v_add_f32 {vr(P+1)}, {vr(P+1)}, {vr(P+2)}")
        A(f"v_fma_f32 {vr(V_LS)}, {vr(V_LS)}, {vr(P+5)}, {vr(P+1)}")
        for x in r: A(f"v_cvt_pk_bf16_f32 {vr(x)}, {vr(x)}, {vr(x)}")
        if j + 1 < CAP:
            A(f"s_cmp_lg_u32 {sr(nr(j+1))}, 0")
            A(f"s_cbranch_scc1 {sk}")
        publish()
        A.label(sk)
    def dyn_pub0():
        sk = A.newlabel("Ldp")
        assert known[0] >= 0
        A(f"s_cmp_lg_u32 {sr(nr(0))}, 0")
        A(f"s_cbranch_scc1 {sk}")
        publish()
        A.label(sk)
    def dyn_pv(t):
        j = t - NS
        if j >= 0:
            for r in range(8):
                A(f"v_mul_f32 {vr(V_ACC+r)}, {sr(S_FD + 4*(j%3) + (r&3))}, {vr(V_ACC+r)}")
        pv(t)
        if o["debug"] and j >= -1: A(f"v_writelane_b32 v{V_STAMP}, {j+2}, 30")
        if -1 <= j < CAP - 1:
            assert known[0] >= j + 1
            A(f"s_cmp_eq_u32 {sr(nr(j+1))}, 0")
            A("s_cbranch_scc1 L_epi")
    flip = [0]
    def pv(t):
        base = vslot(t)
        s_ = sslot(t)
        pv_done.add(t)
        A.wait_vm(ops[("V", t)])
        for u in range(4):
            X = V_XA if flip[0] == 0 else V_XB
            flip[0] ^= 1
            A(f"v_and_b32 {vr(X+2)}, {vr(s_+u)}, {vr(V_M0)}")
            A(f"v_and_b32 {vr(X+3)}, {vr(s_+u)}, {vr(V_M1)}")
            A.nop(2)
            A(f"v_mfma_f32_16x16x32_bf16 {vr(V_ACC,4)}, {vr(X+2,4)}, {vr(base+4*u,4)}, {vr(V_ACC,4)}")
            A(f"v_mfma_f32_16x16x32_bf16 {vr(V_ACC+4,4)}, {vr(X,4)}, {vr(base+4*u,4)}, {vr(V_ACC+4,4)}")
    def q_get():
        A(f"v_and_b32 {vr(T+2)}, 3, {vr(V_J)}")
        A(f"v_lshlrev_b32 {vr(T+2)}, 8, {vr(T+2)}")
        A(f"v_lshl_add_u32 {vr(T+2)}, {vr(V_G)}, 4, {vr(T+2)}")
        A(f"v_add_u32 {vr(T+2)}, {L_Q}, {vr(T+2)}")
        stamp("q_wait")
        lds_wait(F_Q2, 1, T)
        for ks in range(4):
            A(f"ds_read_b128 {vr(V_Q+4*ks,4)}, {vr(T+2)} offset:{64*ks}")
        stamp("q_got")
    qp = o["qpos"]
    quanta = {n: [] for n in range(NSEQ + 1)}
    quanta[qp] += [q_get, lambda: qk_burst([0, 1, 2, 3])]
    quanta[qp+1] += [lambda: qk_burst([4, 5, 6, 7]), lambda: s_round([0, 1, 2, 3])]
    K8 = 8 + NV1
    NST = NS if DYN else 16
    quanta[qp+2] += [lambda: s_round([4, 5, 6, 7]), lambda: softmax(list(range(NV1)), True), lambda: stamp("sm1")]
    assert qp < K8
    for t in range(NV1):
        quanta[max(qp + 3 + t // 2, land_n(8 + t))] += [lambda t=t: pv(t)]
    for j in range(NST - 8):
        quanta[max(land_n(K8 + j), qp + 7)] += [lambda j=j: qk_one(8 + j)]
    nq = max(land_n(K8 + NST - 9), qp + 7)
    def fin_round():
        A.nop(8)
        s_round(list(pend)); pend.clear()
    quanta[nq] += [fin_round, lambda: softmax(list(range(NV1, NST)), False), lambda: stamp("sm2")]
    tail = []
    if DYN:
        quanta[max(nq, pos[("K", NS)])] += [dyn_pub0]
        ev = []
        for t in range(NV1, NS + CAP):
            ev.append((max(nq + 1, pos[("V", t)] + D), 1, t, lambda t=t: dyn_pv(t)))
        for j in range(CAP):
            ev.append((pos[("K", NS + j)] + D, 0, j, lambda j=j: dyn_qk(j)))
        for n, _, _, f in sorted(ev, key=lambda e: e[:3]):
            quanta[min(n, NSEQ)] += [f]
    else:
        for t in range(NV1, 16):
            n = max(nq + 1, land_n(16 + t))
            if n <= 31: quanta[n] += [lambda t=t: pv(t)]
            else: tail.append(t)
        assert not quanta[32]
    for n in range(NSEQ):
        issue(n)
        if o["kfirst"] and n == o["kfirst"] - 1: A("s_barrier")
        if n == D - 1:
            A(f"v_lshrrev_b32 {vr(T)}, 2, {vr(V_J)}")
            A(f"v_and_b32 {vr(T+1)}, 1, {vr(T)}")
            A(f"v_lshlrev_b32 {vr(T+1)}, 4, {vr(T+1)}")
            A(f"v_mov_b32 {vr(T+2)}, 0xffff")
            A(f"v_lshlrev_b32 {vr(T+2)}, {vr(T+1)}, {vr(T+2)}")
            A(f"v_cmp_gt_u32 vcc, 2, {vr(T)}")
            A.nop(2)
            A(f"v_cndmask_b32 {vr(V_M0)}, 0, {vr(T+2)}, vcc")
            A(f"v_cndmask_b32 {vr(V_M1)}, {vr(T+2)}, 0, vcc")
            for r in (V_XA, V_XA+1, V_XA+4, V_XA+5, V_XB, V_XB+1, V_XB+4, V_XB+5):
                A(f"v_mov_b32 {vr(r)}, 0")
            for r in range(8):
                A(f"v_mov_b32 {vr(V_ACC+r)}, 0")
            A(f"s_mov_b32 {sr(S_C0)}, {hex(f2u(LOG2E))}")
            stamp("ln_done")
        if n in (3, 5, 7, 9, 13, 17, 21, 25, 31): stamp(f"iss{n}")
        for f in quanta[n]: f()
    if DYN:
        for f in quanta[NSEQ]: f()
        A.label("L_epi")
        stamp("pv_done")
    A(f"s_lshl_b32 {sr(S_TMP+2)}, {sr(S_SW)}, 4")
    A(f"s_add_u32 {sr(S_TMP+2)}, {sr(S_TMP+2)}, {L_FAC}")
    A(f"v_mov_b32 {vr(T+2)}, {sr(S_TMP+2)}")
    A(f"v_lshlrev_b32 {vr(T+3)}, 3, v0")
    A(f"v_add_u32 {vr(T+3)}, {sr(S_RING)}, {vr(T+3)}")
    if o["stpre"]: lds_inc(F_SD, T+8)
    for t in tail[:-1]: pv(t)
    lds_wait(F_FAC, 1, T, sleep=0)
    FAC = T + 4
    A(f"ds_read_b128 {vr(FAC,4)}, {vr(T+2)}")
    stamp("fac_got")
    if DYN:
        A("s_waitcnt vmcnt(0)")
    else:
        pv(tail[-1])
        stamp("pv_done")
    A("s_waitcnt lgkmcnt(0)")
    A.nop(10)
    PO = V_KF
    for r in range(4):
        for hf in range(2):
            A(f"v_mul_f32 {vr(PO+2*r+hf)}, {vr(FAC+r)}, {vr(V_ACC+4*hf+r)}")
    for r in range(4):
        A(f"ds_write_b64 {vr(T+3)}, {vr(PO+2*r,2)} offset:{512*r}")
    A("s_waitcnt lgkmcnt(0)")
    A("s_barrier")

    A.label("L_fin")
    if o["debug"]:
        A(f"s_memrealtime s[100:101]")
        A("s_waitcnt lgkmcnt(0)")
        A(f"v_writelane_b32 v{V_STAMP}, s100, 31")
        A(f"s_mov_b32 {sr(SWS+2)}, {WS_SIZE}")
        A(f"s_lshl_b32 {sr(S_TMP+2)}, s4, 3")
        A(f"s_add_u32 {sr(S_TMP+2)}, {sr(S_TMP+2)}, {sr(S_WAVE)}")
        A(f"s_lshl_b32 {sr(S_TMP+2)}, {sr(S_TMP+2)}, 8")
        A(f"s_add_u32 {sr(S_TMP+2)}, {sr(S_TMP+2)}, {WS_DBG}")
        A(f"v_lshlrev_b32 v254, 2, v0")
        A(f"buffer_store_dword v{V_STAMP}, v254, {sr(SWS,4)}, {sr(S_TMP+2)} offen")
    A.label("L_end")
    A("s_endpgm")

    A.L.append('.section .rodata,"a"')
    A.L.append(".p2align 6")
    A.L.append(f".amdhsa_kernel {NAME}_kernel")
    A.L.append("  .amdhsa_next_free_vgpr 256")
    A.L.append("  .amdhsa_next_free_sgpr 102")
    A.L.append("  .amdhsa_accum_offset 256")
    A.L.append("  .amdhsa_group_segment_fixed_size 0")
    A.L.append("  .amdhsa_kernarg_size 104")
    A.L.append("  .amdhsa_user_sgpr_count 2")
    A.L.append("  .amdhsa_user_sgpr_kernarg_segment_ptr 1")
    A.L.append("  .amdhsa_system_sgpr_workgroup_id_x 1")
    A.L.append("  .amdhsa_float_denorm_mode_32 3")
    A.L.append(".end_amdhsa_kernel")
    if opts is not None: opts["stamps"] = stamps
    return "\n".join(A.L) + "\n"

if __name__ == "__main__":
    out = sys.argv[1] if len(sys.argv) > 1 else "k3.s"
    opts = {}
    for a in sys.argv[2:]:
        k, v = a.split("="); opts[k] = eval(v)
    open(out, "w").write(gen(opts))
    if opts.get("debug"):
        open(out + ".stamps", "w").write(" ".join(opts["stamps"]["a"]) + "\n" + " ".join(opts["stamps"]["s"]) + "\n")
    print("wrote", out)
```

```python
import sys, struct, math

NAME = "sequential_preLN__gqa_block_cached__mixer_token_mlp__decode"

def f2u(x):
    return struct.unpack("<I", struct.pack("<f", x))[0]

WS_QM = 0x00000
WS_ST = 0x20000
WS_CNT = 0x28000
WS_R1 = 0x40000
WS_GT = 0x80000
WS_R2 = 0x200000
WS_DBG = 0x100000
WS_SIZE = 0x400000

RING = 32768
L_STG = 4 * RING
L_XN = L_STG + 16384
L_GT = L_STG
L_QRED = L_XN + 8192
L_Q = L_QRED + 2048
L_STAT = L_Q + 1024
L_FAC = L_STAT + 128
L_FLAG = L_FAC + 64
L_ORED = L_FLAG + 64
L_H = L_ORED + 2048
L_W = L_H + 2048
LDS_SIZE = L_W + 128
assert LDS_SIZE <= 163840, LDS_SIZE
F_XN, F_Q1, F_Q2, F_ST, F_FAC, F_NONCE, F_WO, F_WOL, F_W, F_SD = [L_FLAG + 4 * i for i in range(10)]

E0 = 108
NEXP = 24
GT_HALF = NEXP * 128
SPIN_LIMIT = 200000

class Asm:
    def __init__(self):
        self.L = []
        self.vm = 0
        self.lab = 0
    def __call__(self, s):
        self.L.append("  " + s)
    def label(self, n):
        self.L.append(n + ":")
    def newlabel(self, p="L"):
        self.lab += 1
        return f"{p}_{self.lab}"
    def vmem(self, s):
        self(s); self.vm += 1
        return self.vm
    def wait_vm(self, idx, extra=0):
        n = self.vm - idx + extra
        assert 0 <= n <= 63, n
        self(f"s_waitcnt vmcnt({n})")
    def nop(self, n):
        while n > 0:
            k = min(n, 16)
            self(f"s_nop {k-1}")
            n -= k
    def comment(self, s):
        self.L.append("  ; " + s)

def vr(a, n=1):
    return f"v{a}" if n == 1 else f"v[{a}:{a+n-1}]"
def sr(a, n=1):
    return f"s{a}" if n == 1 else f"s[{a}:{a+n-1}]"

DPPM = "row_mask:0xf bank_mask:0xf"
LOG2E = math.log2(math.e)

def gen(opts=None):
    o = dict(debug=False, D=3, qpos=12, wnt=True, pst=2, pg=0, skip='', rot=0, wolate=1, D2=3, nsw=14, nv1=7, kfirst=0, r1sleep=0, nb1=1, nb2=1, r1split=1, dyn=0, S=12, cap=8, remap=5, il=1, stpre=0, r2nw=0, stag1=0, stag2=0, stsleep=20, r1ad=(8, 20), qmask=4, qdelay=16)
    if opts: o.update(opts)
    A = Asm()
    stamps = {"s": [], "a": []}
    cur = ["c"]
    V_STAMP = 255
    def stamp(name):
        if not o["debug"]: return
        lst = stamps[cur[0]]
        if name in lst: k = lst.index(name)
        else:
            k = len(lst); lst.append(name)
        assert k < 30
        A(f"s_memrealtime s[100:101]")
        A("s_waitcnt lgkmcnt(0)")
        A(f"v_writelane_b32 v{V_STAMP}, s100, {k}")
    S_WAVE = 3
    SK, SV, SWQ, SWO, SWS, SX, SDBG, SOUT, SW1, SB1, SW2 = 8, 12, 16, 20, 24, 28, 32, 36, 40, 44, 48
    S_HKV, S_IDX, S_B, S_S, S_KOFF, S_RING, S_NONCE, S_B2 = 52, 53, 54, 55, 56, 57, 58, 59
    S_RT = 60
    S_SPIN = 63
    S_P = 64
    S_TMP = 90
    S_F = 64
    S_C0 = 68
    V_J, V_G, V_L16 = 12, 13, 1

    A.L.append(f"; @launch grid=(256,1,1) block=(512,1,1) lds={LDS_SIZE}")
    A.L.append('.amdgcn_target "amdgcn-amd-amdhsa--gfx950"')
    A.L.append(".text")
    A.L.append(f".globl {NAME}_kernel")
    A.L.append(".p2align 8")
    A.L.append(f".type {NAME}_kernel,@function")
    A.label(f"{NAME}_kernel")
    A("s_cmp_ge_u32 s2, 256")
    A("s_cbranch_scc1 L_end")
    A(f"s_load_dwordx16 {sr(S_P,16)}, s[0:1], 0")
    A(f"s_load_dwordx8 {sr(S_P+16,8)}, s[0:1], 64")
    A(f"s_load_dwordx2 {sr(S_P+24,2)}, s[0:1], 96")
    A(f"s_memrealtime {sr(S_RT,2)}")
    A("v_lshrrev_b32 v1, 6, v0")
    A("v_and_b32 v0, 63, v0")
    if o["debug"]: A(f"v_mov_b32 v{V_STAMP}, 0")
    A(f"v_readfirstlane_b32 {sr(S_WAVE)}, v1")
    A(f"v_and_b32 {vr(V_J)}, 15, v0")
    A(f"v_lshrrev_b32 {vr(V_G)}, 4, v0")
    A("s_mov_b32 s4, s2")
    if o["remap"] in (2, 3, 5):
        t0, t1, t2, t3 = S_TMP, S_TMP+1, S_TMP+2, S_TMP+3
        A(f"s_and_b32 {sr(t0)}, s2, 7")
        if o["remap"] == 5:
            A(f"s_lshr_b32 {sr(t1)}, s2, 5")
            A(f"s_lshr_b32 {sr(t2)}, s2, 3")
            A(f"s_and_b32 {sr(t2)}, {sr(t2)}, 3")
        else:
            A(f"s_lshr_b32 {sr(t1)}, s2, 3")
            A(f"s_and_b32 {sr(t1)}, {sr(t1)}, 7")
            A(f"s_lshr_b32 {sr(t2)}, s2, 6")
        if o["remap"] == 2: A(f"s_xor_b32 {sr(t0)}, {sr(t0)}, {sr(t1)}")
        A(f"s_lshl_b32 {sr(t0)}, {sr(t0)}, 2")
        A(f"s_or_b32 {sr(t0)}, {sr(t0)}, {sr(t2)}")
        A(f"s_lshl_b32 {sr(t0)}, {sr(t0)}, 3")
        A(f"s_or_b32 s2, {sr(t0)}, {sr(t1)}")
    elif o["remap"] == 4:
        t0, t1, t2, t3 = S_TMP, S_TMP+1, S_TMP+2, S_TMP+3
        A(f"s_lshr_b32 {sr(t1)}, s2, 2")
        A(f"s_and_b32 {sr(t1)}, {sr(t1)}, 1")
        A(f"s_lshr_b32 {sr(t2)}, s2, 3")
        A(f"s_add_u32 {sr(t0)}, s2, {sr(t2)}")
        A(f"s_and_b32 {sr(t0)}, {sr(t0)}, 3")
        A(f"s_lshl_b32 {sr(t2)}, {sr(t2)}, 1")
        A(f"s_or_b32 {sr(t2)}, {sr(t2)}, {sr(t1)}")
        A(f"s_lshr_b32 {sr(t3)}, {sr(t2)}, 3")
        A(f"s_lshl_b32 {sr(t3)}, {sr(t3)}, 2")
        A(f"s_or_b32 {sr(t3)}, {sr(t3)}, {sr(t0)}")
        A(f"s_lshl_b32 {sr(t3)}, {sr(t3)}, 3")
        A(f"s_and_b32 {sr(t2)}, {sr(t2)}, 7")
        A(f"s_or_b32 s2, {sr(t3)}, {sr(t2)}")
    elif o["remap"]:
        t0, t1, t2, t3 = S_TMP, S_TMP+1, S_TMP+2, S_TMP+3
        A(f"s_lshr_b32 {sr(t0)}, s2, 1")
        A(f"s_xor_b32 {sr(t1)}, {sr(t0)}, s2")
        A(f"s_and_b32 {sr(t1)}, {sr(t1)}, 1")
        A(f"s_and_b32 {sr(t0)}, {sr(t0)}, 3")
        A(f"s_lshr_b32 {sr(t2)}, s2, 3")
        A(f"s_add_u32 {sr(t0)}, {sr(t0)}, {sr(t2)}")
        A(f"s_and_b32 {sr(t0)}, {sr(t0)}, 3")
        A(f"s_lshl_b32 {sr(t2)}, {sr(t2)}, 1")
        A(f"s_or_b32 {sr(t2)}, {sr(t2)}, {sr(t1)}")
        A(f"s_lshr_b32 {sr(t3)}, {sr(t2)}, 3")
        A(f"s_lshl_b32 {sr(t3)}, {sr(t3)}, 2")
        A(f"s_or_b32 {sr(t3)}, {sr(t3)}, {sr(t0)}")
        A(f"s_lshl_b32 {sr(t3)}, {sr(t3)}, 3")
        A(f"s_and_b32 {sr(t2)}, {sr(t2)}, 7")
        A(f"s_or_b32 s2, {sr(t3)}, {sr(t2)}")
    A(f"s_and_b32 {sr(S_HKV)}, s2, 7")
    A(f"s_lshr_b32 {sr(S_IDX)}, s2, 3")
    A(f"s_lshr_b32 {sr(S_B)}, {sr(S_IDX)}, 2")
    A(f"s_and_b32 {sr(S_S)}, {sr(S_IDX)}, 3")
    def srd(dst, p, nbytes):
        A(f"s_mov_b32 {sr(dst)}, {sr(S_P+2*p)}")
        A(f"s_and_b32 {sr(dst+1)}, {sr(S_P+2*p+1)}, 0xffff")
        A(f"s_mov_b32 {sr(dst+2)}, {nbytes}")
        A(f"s_mov_b32 {sr(dst+3)}, 0x20000")

    def xreduce(op, regs, tmps, steps=("v_permlane16_swap_b32", "v_permlane32_swap_b32")):
        for pl in steps:
            for r, t in zip(regs, tmps):
                A(f"v_mov_b32 {vr(t)}, {vr(r)}")
            A.nop(2)
            for r, t in zip(regs, tmps):
                A(f"{pl} {vr(r)}, {vr(t)}")
            A.nop(1)
            for r, t in zip(regs, tmps):
                A(f"{op} {vr(r)}, {vr(r)}, {vr(t)}")
    def allreduce(op, regs, tmps):
        for dpp in ("quad_perm:[1,0,3,2]", "quad_perm:[2,3,0,1]", "row_half_mirror", "row_mirror"):
            A.nop(max(0, 2 - (len(regs) - 1)))
            for r in regs:
                A(f"{op}_dpp {vr(r)}, {vr(r)}, {vr(r)} {dpp} {DPPM}")
        xreduce(op, regs, tmps)
    def rne1(dst, src):
        A(f"v_cvt_pk_bf16_f32 {vr(dst)}, {vr(src)}, {vr(src)}")
        A(f"v_lshlrev_b32 {vr(dst)}, 16, {vr(dst)}")
    def rne2(a, b, t):
        A(f"v_cvt_pk_bf16_f32 {vr(t)}, {vr(a)}, {vr(b)}")
        A(f"v_lshlrev_b32 {vr(a)}, 16, {vr(t)}")
        A(f"v_and_b32 {vr(b)}, 0xffff0000, {vr(t)}")
    def unpack(dst, src, n):
        for i in range(n):
            A(f"v_lshlrev_b32 {vr(dst+2*i)}, 16, {vr(src+i)}")
            A(f"v_and_b32 {vr(dst+2*i+1)}, 0xffff0000, {vr(src+i)}")
    def layernorm(x, out, t):
        A(f"v_add_f32 {vr(t)}, {vr(x)}, {vr(x+1)}")
        A(f"v_add_f32 {vr(t+1)}, {vr(x+2)}, {vr(x+3)}")
        A(f"v_add_f32 {vr(t+2)}, {vr(x+4)}, {vr(x+5)}")
        A(f"v_add_f32 {vr(t+3)}, {vr(x+6)}, {vr(x+7)}")
        A(f"v_add_f32 {vr(t)}, {vr(t)}, {vr(t+1)}")
        A(f"v_add_f32 {vr(t+2)}, {vr(t+2)}, {vr(t+3)}")
        A(f"v_add_f32 {vr(t)}, {vr(t)}, {vr(t+2)}")
        allreduce("v_add_f32", [t], [t+1])
        A(f"v_mul_f32 {vr(t)}, {hex(f2u(1/512))}, {vr(t)}")
        for i in range(8):
            A(f"v_sub_f32 {vr(t+4+i)}, {vr(x+i)}, {vr(t)}")
        A(f"v_mul_f32 {vr(t+1)}, {vr(t+4)}, {vr(t+4)}")
        A(f"v_mul_f32 {vr(t+2)}, {vr(t+5)}, {vr(t+5)}")
        for i in range(2, 8, 2):
            A(f"v_fmac_f32 {vr(t+1)}, {vr(t+4+i)}, {vr(t+4+i)}")
            A(f"v_fmac_f32 {vr(t+2)}, {vr(t+5+i)}, {vr(t+5+i)}")
        A(f"v_add_f32 {vr(t+1)}, {vr(t+1)}, {vr(t+2)}")
        allreduce("v_add_f32", [t+1], [t+2])
        A(f"v_mul_f32 {vr(t+1)}, {hex(f2u(1/512))}, {vr(t+1)}")
        rne2(t, t+1, t+2)
        A(f"v_add_f32 {vr(t+1)}, {hex(f2u(1e-5))}, {vr(t+1)}")
        rne1(t+1, t+1)
        A(f"v_sqrt_f32 {vr(t+1)}, {vr(t+1)}")
        A.nop(1)
        rne1(t+1, t+1)
        A(f"v_rcp_f32 {vr(t+2)}, {vr(t+1)}")
        for i in range(8):
            A(f"v_sub_f32 {vr(t+4+i)}, {vr(x+i)}, {vr(t)}")
        for i in range(0, 8, 2):
            rne2(t+4+i, t+5+i, t+3)
        for i in range(8):
            A(f"v_mul_f32 {vr(out+i)}, {vr(t+4+i)}, {vr(t+2)}")
        for i in range(8):
            A(f"v_fma_f32 {vr(t+4+i)}, -{vr(out+i)}, {vr(t+1)}, {vr(t+4+i)}")
        for i in range(8):
            A(f"v_fmac_f32 {vr(out+i)}, {vr(t+4+i)}, {vr(t+2)}")
    def lds_inc(flag, t):
        A(f"v_mov_b32 {vr(t)}, {flag}")
        A(f"v_mov_b32 {vr(t+1)}, 1")
        A("s_waitcnt lgkmcnt(0)")
        A("s_mov_b64 exec, 1")
        A(f"ds_add_u32 {vr(t)}, {vr(t+1)}")
        A("s_mov_b64 exec, -1")
    def lds_wait(flag, target, t, sleep=1):
        lp, dn = A.newlabel("Lw"), A.newlabel("Lwd")
        A(f"v_mov_b32 {vr(t)}, {flag}")
        A(f"s_mov_b32 {sr(S_SPIN)}, {SPIN_LIMIT*4}")
        A.label(lp)
        A(f"ds_read_b32 {vr(t+1)}, {vr(t)}")
        A("s_waitcnt lgkmcnt(0)")
        A(f"v_readfirstlane_b32 {sr(S_TMP+9)}, {vr(t+1)}")
        A.nop(1)
        A(f"s_cmp_ge_u32 {sr(S_TMP+9)}, {target}")
        A(f"s_cbranch_scc1 {dn}")
        if sleep: A(f"s_sleep {sleep}")
        A(f"s_sub_u32 {sr(S_SPIN)}, {sr(S_SPIN)}, 1")
        A(f"s_cbranch_scc0 {lp}")
        A.label(dn)
    def poll_pipe(nsets, nld, issue_fn, check_fn, done_fn):
        lp, fin = A.newlabel("Lpp"), A.newlabel("Lppf")
        dn = [A.newlabel("Lppd") for _ in range(nsets)]
        A(f"s_mov_b32 {sr(S_SPIN)}, {SPIN_LIMIT}")
        for k in range(nsets): issue_fn(k)
        A.label(lp)
        for k in range(nsets):
            A(f"s_waitcnt vmcnt({nld*(nsets-1)})")
            check_fn(k)
            A(f"s_cbranch_vccz {dn[k]}")
            issue_fn(k)
        A(f"s_sub_u32 {sr(S_SPIN)}, {sr(S_SPIN)}, 1")
        A(f"s_cbranch_scc0 {lp}")
        A("s_waitcnt vmcnt(0)")
        for k in range(nsets):
            A.label(dn[k])
            done_fn(k)
            if k + 1 < nsets: A(f"s_branch {fin}")
        A.label(fin)
    def ln_row(op_x, VX, XF, LT, row):
        A.wait_vm(op_x)
        unpack(XF, VX, 4)
        layernorm(XF, XF, LT)
        for i in range(4):
            A(f"v_cvt_pk_bf16_f32 {vr(LT+i)}, {vr(XF+2*i)}, {vr(XF+2*i+1)}")
        A(f"s_lshl_b32 {sr(S_TMP+2)}, {sr(S_WAVE)}, 11")
        A(f"s_add_u32 {sr(S_TMP+2)}, {sr(S_TMP+2)}, {L_XN + 1024*row}")
        A(f"v_lshl_add_u32 {vr(LT+4)}, v0, 4, {sr(S_TMP+2)}")
        A(f"ds_write_b128 {vr(LT+4)}, {vr(LT,4)}")

    A(f"v_lshlrev_b32 {vr(V_L16)}, 4, v0")
    A(f"s_lshl_b32 {sr(S_TMP+2)}, {sr(S_WAVE)}, 11")
    A(f"s_cmp_ge_u32 {sr(S_WAVE)}, 4")
    A("s_cbranch_scc1 L_stream")

    cur[0] = "a"
    A("s_setprio 3")
    S_CB = S_B
    if o.get("worole"):
        assert o["remap"] not in (1, 4)
        S_CB = 62
        A(f"s_and_b32 {sr(S_CB)}, {sr(S_B)}, 4")
        A(f"s_add_u32 {sr(S_CB)}, {sr(S_CB)}, {sr(S_S)}")
        A(f"s_and_b32 {sr(S_S)}, {sr(S_B)}, 3")
    T = 208
    V_X = T
    V_SEN = T + 4
    for r in range(4):
        A(f"v_mov_b32 {vr(V_SEN+r)}, -1")
    A(f"v_lshrrev_b32 {vr(T+8)}, 1, v0")
    A(f"v_and_b32 {vr(T+9)}, 1, v0")
    A(f"v_lshlrev_b32 {vr(T+9)}, 4, {vr(T+9)}")
    A(f"v_lshl_add_u32 {vr(T+10)}, {vr(T+8)}, 13, {vr(T+9)}")
    A(f"s_lshl_b32 {sr(S_TMP+3)}, {sr(S_WAVE)}, 20")
    A(f"s_lshl_b32 {sr(S_TMP+4)}, {sr(S_HKV)}, 10")
    A(f"s_add_u32 {sr(S_TMP+3)}, {sr(S_TMP+3)}, {sr(S_TMP+4)}")
    def iq_shl(dst, sh):
        if o["remap"] in (1, 4):
            A(f"s_lshl_b32 {sr(dst)}, {sr(S_S)}, 3")
            A(f"s_or_b32 {sr(dst)}, {sr(dst)}, {sr(S_B)}")
            A(f"s_lshl_b32 {sr(dst)}, {sr(dst)}, {sh}")
        else:
            A(f"s_lshl_b32 {sr(dst)}, {sr(S_IDX)}, {sh}")
    iq_shl(S_TMP+4, 5)
    A(f"s_add_u32 {sr(S_TMP+3)}, {sr(S_TMP+3)}, {sr(S_TMP+4)}")
    A(f"s_lshl_b32 {sr(S_RING)}, {sr(S_WAVE)}, 12")
    A(f"s_add_u32 {sr(S_RING)}, {sr(S_RING)}, {L_STG}")
    A(f"s_mov_b32 m0, {sr(S_RING)}")
    A("s_waitcnt lgkmcnt(0)")
    srd(SX, 0, 8192)
    op_x = A.vmem(f"buffer_load_dwordx4 {vr(V_X,4)}, {vr(V_L16)}, {sr(SX,4)}, {sr(S_TMP+2)} offen")
    op_x2 = A.vmem(f"buffer_load_dwordx4 {vr(T+24,4)}, {vr(V_L16)}, {sr(SX,4)}, {sr(S_TMP+2)} offen offset:1024")
    srd(SWQ, 3, 4 << 20)
    WNT = " nt" if o["wnt"] else ""
    for u in range(4):
        if u:
            A(f"s_add_u32 {sr(S_TMP+4)}, {sr(S_RING)}, {u*1024}")
            A(f"s_mov_b32 m0, {sr(S_TMP+4)}")
            A(f"s_add_u32 {sr(S_TMP+3)}, {sr(S_TMP+3)}, {32*8192}")
        if 'q' in o['skip']: continue
        op_wq = A.vmem(f"buffer_load_dwordx4 {vr(T+10)}, {sr(SWQ,4)}, {sr(S_TMP+3)} offen{WNT} lds")
    srd(SDBG, 11, 256)
    srd(SWS, 12, WS_SIZE)
    V_NC = T + 12
    A(f"s_cmp_eq_u32 {sr(S_WAVE)}, 0")
    A("s_cbranch_scc0 L_w1")
    A(f"s_or_b32 {sr(S_RT)}, {sr(S_RT)}, 1")
    A(f"v_mov_b32 {vr(V_NC)}, {sr(S_RT)}")
    A(f"v_mov_b32 {vr(V_NC+1)}, 0")
    A(f"s_lshl_b32 {sr(S_TMP+2)}, {sr(S_HKV)}, 5")
    A(f"v_mov_b32 {vr(T+11)}, {sr(S_TMP+2)}")
    A("s_mov_b64 exec, 1")
    A(f"buffer_atomic_cmpswap {vr(V_NC,2)}, {vr(T+11)}, {sr(SDBG,4)}, 0 offen sc0")
    A(f"buffer_load_dword {vr(T+18)}, {vr(T+11)}, {sr(SX,4)}, 0 offen")
    A("s_mov_b64 exec, 0xffff")
    A(f"v_lshlrev_b32 {vr(T+14)}, 2, v0")
    A(f"v_add_u32 {vr(T+14)}, {L_FLAG}, {vr(T+14)}")
    A(f"v_mov_b32 {vr(T+15)}, 0")
    A(f"ds_write_b32 {vr(T+14)}, {vr(T+15)}")
    A("s_mov_b64 exec, -1")
    A("s_waitcnt lgkmcnt(0)")
    A("s_branch L_wdone")
    A.label("L_w1")
    A(f"s_cmp_eq_u32 {sr(S_WAVE)}, 1")
    A("s_cbranch_scc0 L_w2")
    A(f"s_lshl_b32 {sr(S_TMP+2)}, {sr(S_HKV)}, 5")
    A(f"s_add_u32 {sr(S_TMP+2)}, {sr(S_TMP+2)}, {sr(S_IDX)}")
    A(f"s_lshl_b32 {sr(S_TMP+2)}, {sr(S_TMP+2)}, 10")
    A(f"s_add_u32 {sr(S_TMP+2)}, {sr(S_TMP+2)}, {WS_R1}")
    A("s_mov_b32 exec_hi, 0")
    A(f"buffer_store_dwordx4 {vr(V_SEN,4)}, {vr(V_L16)}, {sr(SWS,4)}, {sr(S_TMP+2)} offen sc1")
    A("s_mov_b64 exec, -1")
    A("s_mov_b32 exec_lo, 0")
    A(f"buffer_store_dwordx4 {vr(V_SEN,4)}, {vr(V_L16)}, {sr(SWS,4)}, {sr(S_TMP+2)} offen sc1")
    A("s_mov_b64 exec, -1")
    A("s_branch L_wdone")
    A.label("L_w2")
    A(f"s_cmp_eq_u32 {sr(S_WAVE)}, 2")
    A("s_cbranch_scc0 L_w3")
    A(f"v_lshlrev_b32 {vr(T+11)}, 16, {vr(V_G)}")
    A(f"v_lshl_add_u32 {vr(T+11)}, {vr(V_J)}, 4, {vr(T+11)}")
    A(f"s_lshl_b32 {sr(S_TMP+2)}, {sr(S_HKV)}, 13")
    A(f"s_lshl_b32 {sr(S_TMP+4)}, {sr(S_S)}, 11")
    A(f"s_add_u32 {sr(S_TMP+2)}, {sr(S_TMP+2)}, {sr(S_TMP+4)}")
    A(f"s_lshl_b32 {sr(S_TMP+4)}, {sr(S_CB)}, 8")
    A(f"s_add_u32 {sr(S_TMP+2)}, {sr(S_TMP+2)}, {sr(S_TMP+4)}")
    A(f"s_add_u32 {sr(S_TMP+2)}, {sr(S_TMP+2)}, {WS_R2}")
    A(f"s_add_u32 {sr(S_TMP+4)}, {sr(S_TMP+2)}, {4*65536}")
    A(f"buffer_store_dwordx4 {vr(V_SEN,4)}, {vr(T+11)}, {sr(SWS,4)}, {sr(S_TMP+2)} offen sc1")
    A(f"buffer_store_dwordx4 {vr(V_SEN,4)}, {vr(T+11)}, {sr(SWS,4)}, {sr(S_TMP+4)} offen sc1")
    A("s_branch L_wdone")
    A.label("L_w3")
    A(f"s_lshl_b32 {sr(S_TMP+2)}, {sr(S_HKV)}, 5")
    A(f"s_add_u32 {sr(S_TMP+2)}, {sr(S_TMP+2)}, {sr(S_IDX)}")
    A(f"s_lshl_b32 {sr(S_TMP+4)}, {sr(S_TMP+2)}, 7")
    A(f"s_add_u32 {sr(S_TMP+4)}, {sr(S_TMP+4)}, {WS_CNT}")
    A(f"s_lshl_b32 {sr(S_TMP+2)}, {sr(S_TMP+2)}, 5")
    A(f"s_add_u32 {sr(S_TMP+2)}, {sr(S_TMP+2)}, {WS_ST}")
    if o["dyn"]:
        A(f"v_mov_b32 {vr(T+11)}, 0")
        A("s_mov_b64 exec, 3")
        A(f"buffer_store_dwordx4 {vr(V_SEN,4)}, {vr(V_L16)}, {sr(SWS,4)}, {sr(S_TMP+2)} offen sc1")
        A("s_mov_b64 exec, 1")
        A(f"buffer_atomic_swap {vr(T+11)}, off, {sr(SWS,4)}, {sr(S_TMP+4)} sc0")
    else:
        A("s_mov_b64 exec, 1")
        A(f"buffer_store_dwordx4 {vr(V_SEN,4)}, {vr(V_L16)}, {sr(SWS,4)}, {sr(S_TMP+2)} offen sc1")
        A("s_mov_b64 exec, 2")
        A(f"buffer_store_dwordx4 {vr(V_SEN,4)}, {vr(V_L16)}, {sr(SWS,4)}, {sr(S_TMP+2)} offen sc1")
    A("s_mov_b64 exec, -1")
    A.label("L_wdone")
    A.vm += 2
    A("s_barrier")
    stamp("start")
    if 'A' in o['skip']:
        lds_inc(F_Q2, T+20)
        lds_inc(F_FAC, T+20)
        A("s_barrier")
        A("s_branch L_fin")
    srd(SWO, 4, 4 << 20)
    srd(SW1, 6, 3584)
    srd(SB1, 7, 3584)
    srd(SW2, 8, 3584)
    srd(SOUT, 10, 8192)
    A(f"s_load_dword {sr(S_B2)}, {sr(S_P+18,2)}, 0")
    XF = 176; LT = 184
    ln_row(op_x, V_X, XF, LT, 0)
    ln_row(op_x2, T+24, XF, LT, 1)
    lds_inc(F_XN, LT+5)
    stamp("ln_done")
    V_TRA = 2
    A(f"v_lshlrev_b32 {vr(V_TRA)}, 8, {vr(V_G)}")
    A(f"v_lshl_add_u32 {vr(V_TRA)}, {vr(V_J)}, 3, {vr(V_TRA)}")
    A(f"v_add_u32 {vr(V_TRA)}, {sr(S_RING)}, {vr(V_TRA)}")
    A(f"v_and_b32 {vr(LT)}, 7, {vr(V_J)}")
    A(f"v_lshlrev_b32 {vr(LT)}, 10, {vr(LT)}")
    A(f"v_lshl_add_u32 {vr(LT)}, {vr(V_G)}, 4, {vr(LT)}")
    A(f"s_lshl_b32 {sr(S_TMP+2)}, {sr(S_WAVE)}, 8")
    A(f"s_add_u32 {sr(S_TMP+2)}, {sr(S_TMP+2)}, {L_XN}")
    A(f"v_add_u32 {vr(LT)}, {sr(S_TMP+2)}, {vr(LT)}")
    A(f"v_lshrrev_b32 {vr(T+16)}, 3, v0")
    A(f"v_and_b32 {vr(T+16)}, 1, {vr(T+16)}")
    A(f"v_lshlrev_b32 {vr(T+17)}, 13, {vr(V_G)}")
    A(f"v_lshl_add_u32 {vr(T+17)}, {vr(T+16)}, 12, {vr(T+17)}")
    A(f"v_and_b32 {vr(T+16)}, 7, v0")
    A(f"v_lshl_add_u32 {vr(T+17)}, {vr(T+16)}, 4, {vr(T+17)}")
    A("s_waitcnt vmcnt(2)")
    stamp("wq_landed")
    V_WQ = 144
    for u in range(4):
        for h in range(2):
            A(f"ds_read_b64_tr_b16 {vr(V_WQ+4*u+2*h,2)}, {vr(V_TRA)} offset:{u*1024+h*128}")
    lds_wait(F_XN, 4, LT+8, sleep=0)
    V_XA_ = 16
    for u in range(4):
        A(f"ds_read_b128 {vr(V_XA_+4*u,4)}, {vr(LT)} offset:{64*u}")
    V_QD = LT + 12
    A(f"s_lshl_b32 {sr(S_TMP+2)}, {sr(S_WAVE)}, 9")
    A(f"s_add_u32 {sr(S_TMP+2)}, {sr(S_TMP+2)}, {L_QRED}")
    A(f"v_add_u32 {vr(LT+3)}, {sr(S_TMP+2)}, {vr(V_L16)}")
    A("s_waitcnt lgkmcnt(0)")
    for u in range(4):
        c = "0" if u == 0 else vr(V_QD, 4)
        A(f"v_mfma_f32_16x16x32_bf16 {vr(V_QD,4)}, {vr(V_XA_+4*u,4)}, {vr(V_WQ+4*u,4)}, {c}")
    A(f"s_lshl_b32 {sr(S_TMP+3)}, {sr(S_HKV)}, 9")
    A(f"s_lshl_b32 {sr(S_TMP+4)}, {sr(S_S)}, 7")
    A(f"s_add_u32 {sr(S_TMP+3)}, {sr(S_TMP+3)}, {sr(S_TMP+4)}")
    A(f"s_add_u32 {sr(S_TMP+3)}, {sr(S_TMP+3)}, {sr(S_WAVE)}")
    A(f"s_lshl_b32 {sr(S_TMP+3)}, {sr(S_TMP+3)}, 10")
    A(f"s_lshl_b32 {sr(S_TMP+4)}, {sr(S_CB)}, 7")
    A(f"s_add_u32 {sr(S_TMP+3)}, {sr(S_TMP+3)}, {sr(S_TMP+4)}")
    A(f"s_mov_b32 m0, {sr(S_RING)}")
    A.nop(4)
    A("s_mov_b32 exec_hi, 0")
    A(f"ds_write_b128 {vr(LT+3)}, {vr(V_QD,4)}")
    A("s_mov_b64 exec, -1")
    stamp("mfma")
    A("s_waitcnt vmcnt(0)")
    A(f"s_cmp_eq_u32 {sr(S_WAVE)}, 0")
    A("s_cbranch_scc0 L_nonce_done")
    A(f"v_readfirstlane_b32 {sr(S_TMP+2)}, {vr(V_NC)}")
    A.nop(1)
    A(f"s_cmp_eq_u32 {sr(S_TMP+2)}, 0")
    A(f"s_cselect_b32 {sr(S_TMP+2)}, {sr(S_RT)}, {sr(S_TMP+2)}")
    A(f"v_mov_b32 {vr(LT+6)}, {sr(S_TMP+2)}")
    A(f"v_mov_b32 {vr(LT+7)}, {F_NONCE}")
    A(f"ds_write_b32 {vr(LT+7)}, {vr(LT+6)}")
    A.label("L_nonce_done")
    lds_inc(F_Q1, LT+8)
    stamp("qpart")
    A(f"s_lshr_b32 {sr(S_TMP+2)}, {sr(S_WAVE)}, 1")
    A(f"s_lshl_b32 {sr(S_TMP+2)}, {sr(S_TMP+2)}, 8")
    A(f"s_and_b32 {sr(S_TMP+4)}, {sr(S_WAVE)}, 1")
    A(f"s_lshl_b32 {sr(S_TMP+4)}, {sr(S_TMP+4)}, 3")
    A(f"s_add_u32 {sr(S_TMP+2)}, {sr(S_TMP+2)}, {sr(S_TMP+4)}")
    A(f"s_add_u32 {sr(S_TMP+2)}, {sr(S_TMP+2)}, {L_QRED}")
    A(f"v_and_b32 {vr(LT)}, 1, {vr(V_G)}")
    A(f"v_lshlrev_b32 {vr(LT)}, 10, {vr(LT)}")
    A(f"v_lshl_add_u32 {vr(LT)}, {vr(V_J)}, 4, {vr(LT)}")
    A(f"v_lshrrev_b32 {vr(LT+1)}, 1, {vr(V_G)}")
    A(f"v_lshl_add_u32 {vr(LT)}, {vr(LT+1)}, 2, {vr(LT)}")
    A(f"v_add_u32 {vr(LT)}, {sr(S_TMP+2)}, {vr(LT)}")
    A(f"v_lshlrev_b32 {vr(LT+3)}, 14, {vr(LT+1)}")
    A(f"v_lshl_add_u32 {vr(LT+3)}, {vr(V_J)}, 2, {vr(LT+3)}")
    A(f"s_lshl_b32 {sr(S_TMP+5)}, {sr(S_WAVE)}, 15")
    A(f"s_lshl_b32 {sr(S_TMP+4)}, {sr(S_HKV)}, 11")
    A(f"s_add_u32 {sr(S_TMP+5)}, {sr(S_TMP+5)}, {sr(S_TMP+4)}")
    iq_shl(S_TMP+4, 6)
    A(f"s_add_u32 {sr(S_TMP+5)}, {sr(S_TMP+5)}, {sr(S_TMP+4)}")
    A(f"v_mov_b32 {vr(LT+7)}, {F_NONCE}")
    lds_wait(F_Q1, 4, LT+8, sleep=0)
    A(f"ds_read_b32 {vr(LT+1)}, {vr(LT)}")
    A(f"ds_read_b32 {vr(LT+2)}, {vr(LT)} offset:512")
    A(f"ds_read_b32 {vr(LT+5)}, {vr(LT+7)}")
    A("s_waitcnt lgkmcnt(0)")
    A(f"v_add_f32 {vr(LT+1)}, {vr(LT+1)}, {vr(LT+2)}")
    xreduce("v_add_f32", [LT+1], [LT+2], steps=("v_permlane16_swap_b32",))
    A.nop(2)
    A(f"v_mov_b32_dpp {vr(LT+2)}, {vr(LT+1)} quad_perm:[1,0,3,2] {DPPM}")
    A(f"v_readfirstlane_b32 {sr(S_NONCE)}, {vr(LT+5)}")
    A(f"v_cvt_pk_bf16_f32 {vr(LT+4)}, {vr(LT+1)}, {vr(LT+2)}")
    A("s_mov_b32 exec_lo, 0x5555")
    A("s_mov_b32 exec_hi, 0x5555")
    A.vmem(f"buffer_store_dwordx2 {vr(LT+4,2)}, {vr(LT+3)}, {sr(SWS,4)}, {sr(S_TMP+5)} offen sc1")
    A("s_mov_b64 exec, -1")
    stamp("q_published")
    V_L8 = 3
    A(f"v_lshlrev_b32 {vr(V_L8)}, 3, v0")
    GW1, GB1, GW2 = 16, 44, 72
    RAW1, RAWB = 86, 100
    G_A, G_B, G_P, G_ACC, G_T, G_K0 = 86, 118, 150, 166, 174, 182
    V_WO = 184
    K0 = -2.0 * math.sqrt(2.0 / math.pi) * LOG2E
    K1 = K0 * 0.044715
    S_ONE_LO, S_ONE_HI = S_C0 + 1, S_C0 + 2
    A(f"s_mov_b32 {sr(S_ONE_LO)}, 0x00003f80")
    A(f"s_mov_b32 {sr(S_ONE_HI)}, 0x3f800000")
    A(f"s_mov_b32 {sr(S_C0)}, {hex(f2u(LOG2E))}")
    A(f"s_lshl_b32 {sr(S_B2)}, {sr(S_B2)}, 16")
    A(f"s_cmp_eq_u32 {sr(S_WAVE)}, 0")
    A("s_cbranch_scc0 L_noqpoll")
    A(f"s_lshl_b32 {sr(S_TMP+6)}, {sr(S_B)}, 14")
    A(f"s_lshl_b32 {sr(S_TMP+4)}, {sr(S_HKV)}, 11")
    A(f"s_add_u32 {sr(S_TMP+6)}, {sr(S_TMP+6)}, {sr(S_TMP+4)}")
    QG = G_A
    A(f"v_add_u32 {vr(LT+6)}, {L_Q}, {vr(V_L8)}")
    def q_iss(k):
        A(f"buffer_load_dwordx4 {vr(QG+8*k,4)}, {vr(V_L16)}, {sr(SWS,4)}, {sr(S_TMP+6)} offen sc1")
        A(f"buffer_load_dwordx4 {vr(QG+8*k+4,4)}, {vr(V_L16)}, {sr(SWS,4)}, {sr(S_TMP+6)} offen offset:1024 sc1")
    def q_chk(k):
        for i in range(4):
            A(f"v_xor_b32 {vr(LT+i)}, {sr(S_NONCE)}, {vr(QG+8*k+2*i+1)}")
        A(f"v_or3_b32 {vr(LT)}, {vr(LT)}, {vr(LT+1)}, {vr(LT+2)}")
        A(f"v_or_b32 {vr(LT)}, {vr(LT)}, {vr(LT+3)}")
        A(f"v_cmp_ne_u32 vcc, 0, {vr(LT)}")
    def q_done(k):
        A(f"v_mov_b32 {vr(QG+8*k+1)}, {vr(QG+8*k+2)}")
        A(f"v_mov_b32 {vr(QG+8*k+5)}, {vr(QG+8*k+6)}")
        A(f"ds_write_b64 {vr(LT+6)}, {vr(QG+8*k,2)}")
        A(f"ds_write_b64 {vr(LT+6)}, {vr(QG+8*k+4,2)} offset:512")
    A("s_waitcnt vmcnt(0)")
    if o.get("qdelay"): A(f"s_sleep {o['qdelay']}")
    if o.get("qmask"):
        A(f"s_mov_b32 {sr(S_SPIN)}, {SPIN_LIMIT}")
        A("s_mov_b64 vcc, -1")
        A.label("L_qml")
        A("s_mov_b64 exec, vcc")
        q_iss(0)
        A("s_mov_b64 exec, -1")
        A("s_waitcnt vmcnt(0)")
        q_chk(0)
        A("s_cbranch_vccz L_qmd")
        A(f"s_sleep {o['qmask']}")
        A(f"s_sub_u32 {sr(S_SPIN)}, {sr(S_SPIN)}, 1")
        A("s_cbranch_scc0 L_qml")
        A.label("L_qmd")
        q_done(0)
    else:
        poll_pipe(o.get("qsets", 3), 2, q_iss, q_chk, q_done)
    lds_inc(F_Q2, LT+8)
    stamp("q_ok")
    A("s_waitcnt vmcnt(0)")
    A.label("L_noqpoll")
    S_WOS = 5
    A(f"s_mov_b32 {sr(S_WOS)}, {sr(S_TMP+3)}")
    V_XF = 4
    V_CP = 8
    S_RB = 8
    A(f"v_and_b32 {vr(V_CP)}, 31, v0")
    A(f"v_lshlrev_b32 {vr(V_CP)}, 3, {vr(V_CP)}")
    A(f"v_lshrrev_b32 {vr(LT+6)}, 5, v0")
    A(f"v_lshl_add_u32 {vr(V_CP)}, {vr(LT+6)}, 2, {vr(V_CP)}")
    A(f"s_cmp_lt_u32 s2, 8")
    A("s_cbranch_scc0 L_noxf")
    A(f"s_lshl_b32 {sr(S_TMP+2)}, s2, 10")
    A(f"s_lshl_b32 {sr(S_TMP+4)}, {sr(S_WAVE)}, 8")
    A(f"s_add_u32 {sr(S_TMP+2)}, {sr(S_TMP+2)}, {sr(S_TMP+4)}")
    A(f"buffer_load_dword {vr(V_XF)}, {vr(V_CP)}, {sr(SX,4)}, {sr(S_TMP+2)} offen")
    A.label("L_noxf")
    A(f"s_cmp_eq_u32 {sr(S_WAVE)}, 0")
    A("s_cbranch_scc1 L_gskip")
    def gw_load():
        for (srd_, dst) in ((SW1, RAW1), (SB1, RAWB), (SW2, GW2)):
            if 'g' in o['skip']: continue
            for c in range(3):
                A.vmem(f"buffer_load_dwordx4 {vr(dst+4*c,4)}, {vr(V_L16)}, {sr(srd_,4)}, 0 offen offset:{1024*c}")
            A.vmem(f"buffer_load_dwordx2 {vr(dst+12,2)}, {vr(V_L8)}, {sr(srd_,4)}, 0 offen offset:3072")
    def gw_unpack():
        A("s_waitcnt vmcnt(0)")
        unpack(GW1, RAW1, 14)
        unpack(GB1, RAWB, 14)
        A(f"v_mov_b32 {vr(G_K0)}, {hex(f2u(K0))}")
    def wo_dma():
        for u in range(4):
            if u:
                A(f"s_add_u32 {sr(S_TMP+4)}, {sr(S_RING)}, {u*1024}")
                A(f"s_mov_b32 m0, {sr(S_TMP+4)}")
                A(f"s_add_u32 {sr(S_WOS)}, {sr(S_WOS)}, {32*1024}")
            if 'o' in o['skip']: continue
            A.vmem(f"buffer_load_dwordx4 {vr(T+17)}, {sr(SWO,4)}, {sr(S_WOS)} offen{WNT} lds")
    gw_load()
    A(f"s_lshl_b32 {sr(S_TMP+2)}, {sr(S_WAVE)}, 11")
    A(f"s_sub_u32 {sr(S_TMP+2)}, {sr(S_TMP+2)}, 2048")
    A(f"s_add_u32 {sr(S_TMP+8)}, {sr(S_TMP+2)}, s2")
    for k in range(8):
        A(f"s_add_u32 {sr(S_TMP+3)}, {sr(S_TMP+8)}, {256*k}")
        A(f"s_cmp_ge_u32 {sr(S_TMP+3)}, {GT_HALF}")
        A(f"s_cselect_b32 {sr(S_TMP+4)}, {0x8000 - GT_HALF}, 0")
        A(f"s_add_u32 {sr(S_TMP+3)}, {sr(S_TMP+3)}, {sr(S_TMP+4)}")
        A(f"s_add_u32 {sr(S_TMP+3)}, {sr(S_TMP+3)}, {E0*128}")
        A(f"s_lshl_b32 {sr(S_TMP+3)}, {sr(S_TMP+3)}, 16")
        A(f"v_mov_b32 {vr(G_T+k)}, {sr(S_TMP+3)}")
        A(f"v_mov_b32 {vr(G_ACC+k)}, 0")
    A(f"s_setprio {o['pg']}")
    gw_unpack()
    def g_chunk(c, nt):
        n = nt * 4
        E = [(k, f) for k in range(nt) for f in range(4)]
        for i, (k, f) in enumerate(E):
            A(f"v_mul_f32 {vr(G_A+i)}, {vr(G_T+k)}, {vr(GW1+4*c+f)}")
        for i in range(0, n, 2):
            A(f"v_cvt_pk_bf16_f32 {vr(G_P+i//2)}, {vr(G_A+i)}, {vr(G_A+i+1)}")
        for i, (k, f) in enumerate(E):
            one = S_ONE_LO if i % 2 == 0 else S_ONE_HI
            A(f"v_dot2_f32_bf16 {vr(G_A+i)}, {vr(G_P+i//2)}, {sr(one)}, {vr(GB1+4*c+f)}")
        A.nop(max(0, 3 - (n - 2)))
        for i in range(0, n, 2):
            if n == 4 and i == 2: A.nop(2)
            A(f"v_cvt_pk_bf16_f32 {vr(G_P+i//2)}, {vr(G_A+i)}, {vr(G_A+i+1)}")
        for i in range(0, n, 2):
            A(f"v_lshlrev_b32 {vr(G_A+i)}, 16, {vr(G_P+i//2)}")
            A(f"v_and_b32 {vr(G_A+i+1)}, 0xffff0000, {vr(G_P+i//2)}")
        for i in range(n):
            A(f"v_mul_f32 {vr(G_B+i)}, {vr(G_A+i)}, {vr(G_A+i)}")
        for i in range(n):
            A(f"v_fmamk_f32 {vr(G_B+i)}, {vr(G_B+i)}, {hex(f2u(K1))}, {vr(G_K0)}")
        for i in range(n):
            A(f"v_mul_f32 {vr(G_B+i)}, {vr(G_A+i)}, {vr(G_B+i)}")
        for i in range(n):
            A(f"v_exp_f32 {vr(G_B+i)}, {vr(G_B+i)}")
        for i in range(n):
            A(f"v_add_f32 {vr(G_B+i)}, 1.0, {vr(G_B+i)}")
        for i in range(n):
            A(f"v_rcp_f32 {vr(G_B+i)}, {vr(G_B+i)}")
        for i in range(n):
            A(f"v_mul_f32 {vr(G_B+i)}, {vr(G_A+i)}, {vr(G_B+i)}")
        for i in range(0, n, 2):
            A(f"v_cvt_pk_bf16_f32 {vr(G_P+i//2)}, {vr(G_B+i)}, {vr(G_B+i+1)}")
        for i in range(0, n, 2):
            k, f = E[i]
            A(f"v_dot2_f32_bf16 {vr(G_ACC+k)}, {vr(G_P+i//2)}, {vr(GW2+2*c+f//2)}, {vr(G_ACC+k)}")
        A.nop(3)
    def g_finish(nt):
        allreduce("v_add_f32", [G_ACC+k for k in range(nt)], [G_P+k for k in range(nt)])
        for k in range(nt):
            rne1(G_ACC+k, G_ACC+k)
        for k in range(nt):
            A(f"v_add_f32 {vr(G_ACC+k)}, {sr(S_B2)}, {vr(G_ACC+k)}")
        for k in range(nt):
            rne1(G_ACC+k, G_ACC+k)
    for c in range(7 if 'G' not in o['skip'] else 0):
        g_chunk(c, 8)
    g_finish(8)
    A("s_setprio 3")
    A(f"v_mov_b32 {vr(G_P)}, {vr(G_ACC)}")
    for k in range(1, 8):
        A(f"v_cmp_eq_u32 vcc, {k}, v0")
        A.nop(2)
        A(f"v_cndmask_b32 {vr(G_P)}, {vr(G_P)}, {vr(G_ACC+k)}, vcc")
    A(f"v_mov_b32 {vr(G_P+1)}, {sr(S_NONCE)}")
    A(f"v_lshlrev_b32 {vr(G_P+2)}, 11, v0")
    A(f"s_lshl_b32 {sr(S_TMP+2)}, {sr(S_TMP+8)}, 3")
    A(f"s_add_u32 {sr(S_TMP+2)}, {sr(S_TMP+2)}, {WS_GT}")
    A(f"s_mov_b64 exec, 0xff")
    A(f"buffer_store_dwordx2 {vr(G_P,2)}, {vr(G_P+2)}, {sr(SWS,4)}, {sr(S_TMP+2)} offen sc1")
    A("s_mov_b64 exec, -1")
    A.label("L_gskip")
    wo_dma()
    stamp("g_done")
    A("s_waitcnt vmcnt(0)")
    lds_inc(F_WOL, T)
    A(f"v_lshrrev_b32 {vr(T+2)}, 2, {vr(V_J)}")
    A(f"v_lshlrev_b32 {vr(V_TRA)}, 10, {vr(V_G)}")
    A(f"v_lshl_add_u32 {vr(V_TRA)}, {vr(T+2)}, 7, {vr(V_TRA)}")
    A(f"v_and_b32 {vr(T+2)}, 3, {vr(V_J)}")
    A(f"v_lshl_add_u32 {vr(V_TRA)}, {vr(T+2)}, 3, {vr(V_TRA)}")
    A(f"s_lshl_b32 {sr(S_TMP+2)}, {sr(S_WAVE)}, 5")
    A(f"s_add_u32 {sr(S_TMP+2)}, {sr(S_TMP+2)}, {L_STG}")
    A(f"v_add_u32 {vr(V_TRA)}, {sr(S_TMP+2)}, {vr(V_TRA)}")
    V_R1A = 5
    A(f"v_lshlrev_b32 {vr(V_R1A)}, 11, {vr(V_J)}")
    A(f"v_and_b32 {vr(T)}, 1, {vr(V_J)}")
    A(f"v_lshlrev_b32 {vr(T)}, 10, {vr(T)}")
    A(f"v_sub_u32 {vr(V_R1A)}, {vr(V_R1A)}, {vr(T)}")
    A(f"v_lshl_add_u32 {vr(V_R1A)}, {vr(V_G)}, 4, {vr(V_R1A)}")
    S_R1C, S_R1P, S_R2P = 72, 73, 74
    A(f"s_lshl_b32 {sr(S_R1C)}, {sr(S_HKV)}, 15")
    A(f"s_add_u32 {sr(S_R1C)}, {sr(S_R1C)}, {WS_R1}")
    A(f"s_lshl_b32 {sr(S_R1P)}, {sr(S_IDX)}, 10")
    A(f"s_add_u32 {sr(S_R1P)}, {sr(S_R1P)}, {sr(S_R1C)}")
    A(f"s_lshl_b32 {sr(S_TMP+3)}, {sr(S_WAVE)}, 8")
    A(f"s_add_u32 {sr(S_R1P)}, {sr(S_R1P)}, {sr(S_TMP+3)}")
    A(f"s_lshl_b32 {sr(S_TMP+3)}, {sr(S_S)}, 8")
    A(f"s_add_u32 {sr(S_R1C)}, {sr(S_R1C)}, {sr(S_TMP+3)}")
    A(f"s_lshl_b32 {sr(S_R2P)}, {sr(S_HKV)}, 13")
    A(f"s_lshl_b32 {sr(S_TMP+3)}, {sr(S_S)}, 11")
    A(f"s_add_u32 {sr(S_R2P)}, {sr(S_R2P)}, {sr(S_TMP+3)}")
    A(f"s_lshl_b32 {sr(S_TMP+3)}, {sr(S_CB)}, 8")
    A(f"s_add_u32 {sr(S_R2P)}, {sr(S_R2P)}, {sr(S_TMP+3)}")
    A(f"s_lshl_b32 {sr(S_TMP+3)}, {sr(S_WAVE)}, 6")
    A(f"s_add_u32 {sr(S_R2P)}, {sr(S_R2P)}, {sr(S_TMP+3)}")
    A(f"s_add_u32 {sr(S_R2P)}, {sr(S_R2P)}, {WS_R2}")
    A(f"s_add_u32 {sr(S_R2P+1)}, {sr(S_R2P)}, 65536")
    S_R1Q = 71
    S_LST, S_LFC, S_STC = 6, 7, 76
    A(f"s_mov_b32 {sr(S_LST)}, {L_STAT}")
    A(f"s_mov_b32 {sr(S_LFC)}, {L_FAC}")
    A(f"s_lshl_b32 {sr(S_STC)}, {sr(S_HKV)}, 10")
    A(f"s_lshl_b32 {sr(S_TMP+3)}, {sr(S_S)}, 3")
    A(f"s_add_u32 {sr(S_STC)}, {sr(S_STC)}, {sr(S_TMP+3)}")
    A(f"s_add_u32 {sr(S_STC)}, {sr(S_STC)}, {WS_ST}")
    V_AXW = 9
    A(f"s_lshr_b32 {sr(S_TMP+3)}, {sr(S_WAVE)}, 1")
    A(f"s_lshl_b32 {sr(S_TMP+3)}, {sr(S_TMP+3)}, 11")
    A(f"s_add_u32 {sr(S_R1Q)}, {sr(S_R1C)}, {sr(S_TMP+3)}")
    A(f"s_and_b32 {sr(S_TMP+3)}, {sr(S_WAVE)}, 1")
    A(f"s_lshl_b32 {sr(S_TMP+3)}, {sr(S_TMP+3)}, 7")
    A(f"s_add_u32 {sr(S_R1Q)}, {sr(S_R1Q)}, {sr(S_TMP+3)}")
    A(f"s_lshl_b32 {sr(S_TMP+3)}, {sr(S_WAVE)}, 11")
    A(f"v_add_u32 {vr(V_AXW)}, {sr(S_TMP+3)}, {vr(V_L16)}")
    V_PR = 6
    V_L4 = 7
    V_R2A = 10
    A(f"s_lshl_b32 {sr(S_TMP+3)}, {sr(S_WAVE)}, 9")
    A(f"v_add_u32 {vr(V_PR)}, {sr(S_TMP+3)}, {vr(V_L8)}")
    A(f"v_add_u32 {vr(V_PR+5)}, {2*RING}, {vr(V_PR)}")
    A(f"v_lshlrev_b32 {vr(V_L4)}, 2, v0")
    A(f"v_lshlrev_b32 {vr(V_R2A)}, 17, {vr(V_G)}")
    A(f"v_lshl_add_u32 {vr(V_R2A)}, {vr(V_J)}, 2, {vr(V_R2A)}")
    def wo_frag():
        lds_wait(F_WOL, 4, T, sleep=2)
        for u in range(4):
            for h in range(2):
                A(f"ds_read_b64_tr_b16 {vr(V_WO+4*u+2*h,2)}, {vr(V_TRA)} offset:{u*4096+h*512}")
        lds_inc(F_WO, T)
    A(f"s_cmp_eq_u32 {sr(S_WAVE)}, 0")
    A("s_cbranch_scc0 L_notstat")
    def st_weights():
        A(f"v_mov_b32 {vr(T)}, {vr(T+2)}")
        for dpp in ("quad_perm:[1,0,3,2]", "quad_perm:[2,3,0,1]"):
            A.nop(2)
            A(f"v_max_f32_dpp {vr(T)}, {vr(T)}, {vr(T)} {dpp} {DPPM}")
        A(f"v_sub_f32 {vr(T+2)}, {vr(T+2)}, {vr(T)}")
        A(f"v_mul_f32 {vr(T+2)}, {sr(S_C0)}, {vr(T+2)}")
        A(f"v_exp_f32 {vr(T+2)}, {vr(T+2)}")
        A.nop(1)
        A(f"v_mul_f32 {vr(T+2)}, {vr(T+2)}, {vr(T+3)}")
        A(f"v_mov_b32 {vr(T+1)}, {vr(T+2)}")
        for dpp in ("quad_perm:[1,0,3,2]", "quad_perm:[2,3,0,1]"):
            A.nop(2)
            A(f"v_add_f32_dpp {vr(T+1)}, {vr(T+1)}, {vr(T+1)} {dpp} {DPPM}")
        A(f"v_rcp_f32 {vr(T+1)}, {vr(T+1)}")
        A.nop(1)
        A(f"v_mul_f32 {vr(T+2)}, {vr(T+2)}, {vr(T+1)}")
    A(f"s_lshl_b32 {sr(S_TMP+2)}, {sr(S_HKV)}, 5")
    A(f"s_add_u32 {sr(S_TMP+2)}, {sr(S_TMP+2)}, {sr(S_IDX)}")
    A(f"s_lshl_b32 {sr(S_TMP+2)}, {sr(S_TMP+2)}, 5")
    A(f"s_add_u32 {sr(S_TMP+2)}, {sr(S_TMP+2)}, {WS_ST}")
    A(f"v_lshl_add_u32 {vr(T+11)}, {vr(V_J)}, 3, {sr(S_LST)}")
    A(f"v_lshl_add_u32 {vr(T+20)}, {vr(V_J)}, 2, {sr(S_LFC)}")
    lds_wait(F_ST, 4, T)
    A(f"ds_read_b64 {vr(T+12,2)}, {vr(T+11)}")
    A("s_waitcnt lgkmcnt(0)")
    A(f"v_mov_b32 {vr(T)}, {vr(T+12)}")
    for d in (8, 4):
        A.nop(2)
        A(f"v_max_f32_dpp {vr(T)}, {vr(T)}, {vr(T)} row_ror:{d} {DPPM}")
    A(f"v_sub_f32 {vr(T+2)}, {vr(T+12)}, {vr(T)}")
    A(f"v_mul_f32 {vr(T+2)}, {sr(S_C0)}, {vr(T+2)}")
    A(f"v_exp_f32 {vr(T+2)}, {vr(T+2)}")
    A.nop(1)
    A(f"v_mul_f32 {vr(T+1)}, {vr(T+2)}, {vr(T+13)}")
    for d in (8, 4):
        A.nop(2)
        A(f"v_add_f32_dpp {vr(T+1)}, {vr(T+1)}, {vr(T+1)} row_ror:{d} {DPPM}")
    A(f"v_rcp_f32 {vr(T+3)}, {vr(T+1)}")
    A.nop(1)
    A(f"v_mul_f32 {vr(T+2)}, {vr(T+2)}, {vr(T+3)}")
    A(f"ds_write_b32 {vr(T+20)}, {vr(T+2)}")
    lds_inc(F_FAC, T+8)
    A(f"v_min_u32 {vr(T)}, -2, {vr(T)}")
    A(f"v_min_u32 {vr(T+1)}, -2, {vr(T+1)}")
    A("s_mov_b64 exec, 15")
    A(f"buffer_store_dwordx2 {vr(T,2)}, {vr(V_L8)}, {sr(SWS,4)}, {sr(S_TMP+2)} offen sc1")
    A("s_mov_b64 exec, -1")
    stamp("fac_done")
    A("s_waitcnt vmcnt(0)")
    wo_frag()
    if o["stpre"]:
        A(f"v_and_b32 {vr(T+4)}, 31, v0")
        A(f"v_lshlrev_b32 {vr(T+5)}, 5, {vr(T+4)}")
        A(f"v_lshlrev_b32 {vr(T+6)}, 2, {vr(T+4)}")
        A(f"v_add_u32 {vr(T+6)}, {L_W}, {vr(T+6)}")
        A(f"v_mov_b32 {vr(T+7)}, {F_SD}")
        A(f"s_mov_b32 {sr(S_SPIN)}, {SPIN_LIMIT}")
        A.label("L_pst")
        A(f"buffer_load_dwordx2 {vr(T+2,2)}, {vr(T+5)}, {sr(SWS,4)}, {sr(S_STC)} offen sc1")
        A("s_waitcnt vmcnt(0)")
        A(f"v_max_u32 {vr(T)}, {vr(T+2)}, {vr(T+3)}")
        A(f"v_cmp_eq_u32 vcc, -1, {vr(T)}")
        A("s_cbranch_vccz L_pstok")
        A(f"s_sleep {o.get('pstsleep', 6)}")
        A(f"ds_read_b32 {vr(T+1)}, {vr(T+7)}")
        A("s_waitcnt lgkmcnt(0)")
        A(f"v_readfirstlane_b32 {sr(S_TMP+9)}, {vr(T+1)}")
        A.nop(1)
        A(f"s_cmp_lg_u32 {sr(S_TMP+9)}, 0")
        A("s_cbranch_scc1 L_pre_s4")
        A(f"s_sub_u32 {sr(S_SPIN)}, {sr(S_SPIN)}, 1")
        A("s_cbranch_scc0 L_pst")
        A("s_branch L_pre_s4")
        A.label("L_pstok")
        st_weights()
        A(f"ds_write_b32 {vr(T+6)}, {vr(T+2)}")
        lds_inc(F_W, T+8)
        A("s_waitcnt lgkmcnt(0)")
        stamp("w_pre")
    A("s_branch L_pre_s4")
    A.label("L_notstat")
    wo_frag()
    A(f"s_cmp_lt_u32 s2, 8")
    A("s_cbranch_scc0 L_pre_s4")
    GG = 86
    V_NA = T + 12
    A(f"s_sub_u32 {sr(S_TMP+2)}, {sr(S_WAVE)}, 1")
    A(f"s_lshl_b32 {sr(S_TMP+3)}, {sr(S_TMP+2)}, 14")
    A(f"s_add_u32 {sr(S_TMP+3)}, {sr(S_TMP+3)}, {WS_GT}")
    for k in range(1, 4):
        A(f"s_add_u32 {sr(S_TMP+3+k)}, {sr(S_TMP+3)}, {4096*k}")
    A(f"v_and_b32 {vr(T+10)}, 3, v0")
    A(f"v_lshlrev_b32 {vr(T+10)}, 6, {vr(T+10)}")
    A(f"s_lshl_b32 {sr(S_TMP+2)}, {sr(S_TMP+2)}, 13")
    A(f"s_add_u32 {sr(S_TMP+2)}, {sr(S_TMP+2)}, {L_GT}")
    A(f"v_add_u32 {vr(T+11)}, {sr(S_TMP+2)}, {vr(V_L8)}")
    lds_wait(F_ST, 1, T+4, sleep=4)
    A(f"s_mov_b32 {sr(S_SPIN)}, {SPIN_LIMIT}")
    A.label("L_gchk")
    for i in range(16):
        A(f"buffer_load_dwordx4 {vr(GG+4*i,4)}, {vr(V_L16)}, {sr(SWS,4)}, {sr(S_TMP+3+(i>>2))} offen offset:{(i&3)*1024} sc1")
    A(f"buffer_load_dword {vr(V_NA)}, {vr(T+10)}, {sr(SDBG,4)}, 0 offen sc1")
    A(f"buffer_load_dword {vr(V_NA+1)}, {vr(T+10)}, {sr(SDBG,4)}, 0 offen offset:32 sc1")
    A("s_waitcnt vmcnt(0)")
    A(f"v_and_b32 {vr(T)}, {vr(V_NA)}, {vr(V_NA+1)}")
    A(f"v_and_b32 {vr(T)}, 1, {vr(T)}")
    A(f"v_xor_b32 {vr(T)}, 1, {vr(T)}")
    for i in range(16):
        A(f"v_xor_b32 {vr(T+1)}, {vr(V_NA)}, {vr(GG+4*i+1)}")
        A(f"v_xor_b32 {vr(T+2)}, {vr(V_NA+1)}, {vr(GG+4*i+3)}")
        A(f"v_or3_b32 {vr(T)}, {vr(T)}, {vr(T+1)}, {vr(T+2)}")
    A(f"v_cmp_ne_u32 vcc, 0, {vr(T)}")
    A("s_cbranch_vccz L_gok")
    A("s_sleep 32")
    A(f"s_sub_u32 {sr(S_SPIN)}, {sr(S_SPIN)}, 1")
    A("s_cbranch_scc0 L_gchk")
    A.label("L_gok")
    lds_wait(F_WO, 4, T+4)
    for i in range(16):
        A(f"v_mov_b32 {vr(GG+4*i+1)}, {vr(GG+4*i+2)}")
    for i in range(16):
        A(f"ds_write_b64 {vr(T+11)}, {vr(GG+4*i,2)} offset:{i*512}")
    stamp("gt_done")
    A.label("L_pre_s4")
    A("s_waitcnt lgkmcnt(0)")
    A("s_barrier")
    stamp("s4")
    if 'T' in o['skip']: A("s_branch L_fin")
    RB = 86
    for w in range(4):
        ad = V_PR if w < 2 else V_PR + 5
        A(f"ds_read_b64 {vr(RB+2*w,2)}, {vr(ad)} offset:{(w&1)*RING}")
    S_M = 80
    WT = 160
    if o["stpre"]:
        A(f"v_mov_b32 {vr(T+1)}, {F_W}")
        A(f"v_lshl_add_u32 {vr(T+7)}, {vr(V_G)}, 5, {vr(T+1)}")
        A(f"ds_read_b32 {vr(T+1)}, {vr(T+1)}")
        A(f"ds_read_b128 {vr(WT,4)}, {vr(T+7)} offset:{L_W-F_W}")
        A(f"ds_read_b128 {vr(WT+4,4)}, {vr(T+7)} offset:{L_W-F_W+16}")
    for k in range(4):
        A(f"s_mov_b64 {sr(S_M+2*k,2)}, -1")
    A(f"s_mov_b32 {sr(S_SPIN)}, {SPIN_LIMIT}")
    A(f"s_waitcnt lgkmcnt({5 if o['stpre'] else 2})")
    A(f"v_pk_add_f32 {vr(RB,2)}, {vr(RB,2)}, {vr(RB+2,2)}")
    A(f"s_waitcnt lgkmcnt({3 if o['stpre'] else 0})")
    A(f"v_pk_add_f32 {vr(RB+4,2)}, {vr(RB+4,2)}, {vr(RB+6,2)}")
    A(f"v_pk_add_f32 {vr(RB,2)}, {vr(RB,2)}, {vr(RB+4,2)}")
    A(f"v_cvt_pk_bf16_f32 {vr(RB+2)}, {vr(RB)}, {vr(RB+1)}")
    A(f"v_min_u32 {vr(RB+2)}, -2, {vr(RB+2)}")
    A(f"buffer_store_dword {vr(RB+2)}, {vr(V_L4)}, {sr(SWS,4)}, {sr(S_R1P)} offen sc1")
    stamp("r1_pub")
    if o["stpre"]:
        A("s_waitcnt lgkmcnt(0)")
        A(f"v_readfirstlane_b32 {sr(S_TMP+9)}, {vr(T+1)}")
        A.nop(1)
        A(f"s_cmp_lg_u32 {sr(S_TMP+9)}, 0")
        A("s_cbranch_scc1 L_wdone2")
    L_WX = 20480
    A(f"v_and_b32 {vr(T+4)}, 31, v0")
    A(f"v_lshlrev_b32 {vr(T+5)}, 5, {vr(T+4)}")
    A(f"s_lshl_b32 {sr(S_TMP+3)}, {sr(S_WAVE)}, 7")
    A(f"s_add_u32 {sr(S_TMP+3)}, {sr(S_TMP+3)}, {L_WX}")
    A(f"v_lshl_add_u32 {vr(T+6)}, {vr(T+4)}, 2, {sr(S_TMP+3)}")
    A(f"v_lshl_add_u32 {vr(T+7)}, {vr(V_G)}, 5, {sr(S_TMP+3)}")
    R1E = o.get("r1early") and o["r1split"] and not o["stpre"] and not o["stag1"]
    if R1E:
        A(f"buffer_load_dwordx2 {vr(T+2,2)}, {vr(T+5)}, {sr(SWS,4)}, {sr(S_STC)} offen sc1")
        if o["r1early"] > 1: A(f"s_nop {o['r1early']-1}")
        A(f"buffer_load_dwordx4 {vr(128,4)}, {vr(V_R1A)}, {sr(SWS,4)}, {sr(S_R1Q)} offen sc1")
        A(f"buffer_load_dwordx4 {vr(132,4)}, {vr(V_R1A)}, {sr(SWS,4)}, {sr(S_R1Q)} offen offset:64 sc1")
        A("s_waitcnt vmcnt(2)")
        A("s_branch L_stchk")
    A.label("L_stloop")
    A(f"buffer_load_dwordx2 {vr(T+2,2)}, {vr(T+5)}, {sr(SWS,4)}, {sr(S_STC)} offen sc1")
    A("s_waitcnt vmcnt(0)")
    A.label("L_stchk")
    A(f"v_max_u32 {vr(T)}, {vr(T+2)}, {vr(T+3)}")
    A(f"v_cmp_eq_u32 vcc, -1, {vr(T)}")
    A("s_cbranch_vccz L_stok")
    A(f"s_sleep {o.get('stsleep', 2)}")
    A(f"s_sub_u32 {sr(S_SPIN)}, {sr(S_SPIN)}, 1")
    A("s_cbranch_scc0 L_stloop")
    A.label("L_stok")
    st_weights()
    A(f"ds_write_b32 {vr(T+6)}, {vr(T+2)}")
    A("s_waitcnt lgkmcnt(0)")
    A(f"ds_read_b128 {vr(WT,4)}, {vr(T+7)}")
    A(f"ds_read_b128 {vr(WT+4,4)}, {vr(T+7)} offset:16")
    A.label("L_wdone2")
    A(f"s_mov_b32 {sr(S_SPIN)}, {SPIN_LIMIT}")
    RA = 96
    if o["r1split"]:
        L_AX = 8192
        RQ = RA + 32
        if o["stag1"]:
            A(f"buffer_load_dwordx4 {vr(RQ,4)}, {vr(V_R1A)}, {sr(SWS,4)}, {sr(S_R1Q)} offen sc1")
            A(f"buffer_load_dwordx4 {vr(RQ+4,4)}, {vr(V_R1A)}, {sr(SWS,4)}, {sr(S_R1Q)} offen offset:64 sc1")
            A(f"s_sleep {o['stag1']}")
        assert RQ == 128
        if R1E: A("s_branch L_r1chk")
        A.label("L_r1loop")
        A(f"s_mov_b64 exec, {sr(S_M,2)}")
        A(f"buffer_load_dwordx4 {vr(RQ,4)}, {vr(V_R1A)}, {sr(SWS,4)}, {sr(S_R1Q)} offen sc1")
        A(f"buffer_load_dwordx4 {vr(RQ+4,4)}, {vr(V_R1A)}, {sr(SWS,4)}, {sr(S_R1Q)} offen offset:64 sc1")
        A("s_mov_b64 exec, -1")
        A.label("L_r1chk")
        A(f"s_waitcnt vmcnt({2 if o['stag1'] else 0})")
        A(f"v_max3_u32 {vr(T)}, {vr(RQ)}, {vr(RQ+1)}, {vr(RQ+2)}")
        A(f"v_max3_u32 {vr(T+1)}, {vr(RQ+3)}, {vr(RQ+4)}, {vr(RQ+5)}")
        A(f"v_max3_u32 {vr(T)}, {vr(T)}, {vr(RQ+6)}, {vr(RQ+7)}")
        A(f"v_max_u32 {vr(T)}, {vr(T)}, {vr(T+1)}")
        A(f"v_cmp_eq_u32 {sr(S_M,2)}, -1, {vr(T)}")
        A(f"s_cmp_eq_u64 {sr(S_M,2)}, 0")
        A("s_cbranch_scc1 L_r1ok")
        if o["r1sleep"]: A(f"s_sleep {o['r1sleep']}")
        if o.get("r1ad"):
            thr, sl = o["r1ad"]
            A(f"s_bcnt1_i32_b64 {sr(S_TMP+2)}, {sr(S_M,2)}")
            A(f"s_cmp_le_u32 {sr(S_TMP+2)}, {thr}")
            A("s_cbranch_scc1 L_r1ns")
            A(f"s_sleep {sl}")
            A.label("L_r1ns")
        A(f"s_sub_u32 {sr(S_SPIN)}, {sr(S_SPIN)}, 1")
        A("s_cbranch_scc0 L_r1loop")
        A.label("L_r1ok")
        A(f"ds_write_b128 {vr(V_AXW)}, {vr(RQ,4)} offset:{L_AX}")
        A(f"ds_write_b128 {vr(V_AXW)}, {vr(RQ+4,4)} offset:{L_AX+1024}")
        A("s_waitcnt lgkmcnt(0)")
        A("s_barrier")
        for i in range(8):
            A(f"ds_read_b128 {vr(RA+4*i,4)}, {vr(V_L16)} offset:{L_AX+1024*i}")
        A("s_waitcnt lgkmcnt(0)")
    else:
        def r1_batch():
            for k in range(4):
                tau, up = k >> 1, k & 1
                A(f"s_mov_b64 exec, {sr(S_M+2*k,2)}")
                for uu in range(2):
                    u = 2 * up + uu
                    A(f"buffer_load_dwordx4 {vr(RA+8*k+4*uu,4)}, {vr(V_R1A)}, {sr(SWS,4)}, {sr(S_R1C)} offen offset:{tau*2048+u*64} sc1")
            A("s_mov_b64 exec, -1")
        for _ in range(o["nb1"] - 1): r1_batch()
        A.label("L_r1loop")
        r1_batch()
        A(f"s_waitcnt vmcnt({8*(o['nb1']-1)})")
        for k in range(4):
            A(f"v_max3_u32 {vr(T+k)}, {vr(RA+8*k)}, {vr(RA+8*k+1)}, {vr(RA+8*k+2)}")
        for k in range(4):
            A(f"v_max3_u32 {vr(T+k)}, {vr(T+k)}, {vr(RA+8*k+3)}, {vr(RA+8*k+4)}")
        for k in range(4):
            A(f"v_max3_u32 {vr(T+k)}, {vr(T+k)}, {vr(RA+8*k+5)}, {vr(RA+8*k+6)}")
        for k in range(4):
            A(f"v_max_u32 {vr(T+k)}, {vr(T+k)}, {vr(RA+8*k+7)}")
        for k in range(4):
            A(f"v_cmp_eq_u32 {sr(S_M+2*k,2)}, -1, {vr(T+k)}")
        A(f"s_or_b64 {sr(S_TMP,2)}, {sr(S_M,2)}, {sr(S_M+2,2)}")
        A(f"s_or_b64 {sr(S_TMP+2,2)}, {sr(S_M+4,2)}, {sr(S_M+6,2)}")
        A(f"s_or_b64 {sr(S_TMP,2)}, {sr(S_TMP,2)}, {sr(S_TMP+2,2)}")
        A("s_cbranch_scc0 L_r1ok")
        if o["r1sleep"]:
            A(f"s_bcnt1_i32_b64 {sr(S_TMP+2)}, {sr(S_TMP,2)}")
            A(f"s_cmp_lt_u32 {sr(S_TMP+2)}, 17")
            A("s_cbranch_scc1 L_r1ns")
            A(f"s_sleep {o['r1sleep']}")
            A.label("L_r1ns")
        A(f"s_sub_u32 {sr(S_SPIN)}, {sr(S_SPIN)}, 1")
        A("s_cbranch_scc0 L_r1loop")
        A.label("L_r1ok")
    OD = T + 8
    for u in range(4):
        for tau in range(2):
            k, uu = 2 * tau + (u >> 1), u & 1
            od = OD + 4 * tau
            c = "0" if u == 0 else vr(od, 4)
            A(f"v_mfma_f32_16x16x32_bf16 {vr(od,4)}, {vr(RA+8*k+4*uu,4)}, {vr(V_WO+4*u,4)}, {c}")
    stamp("r1_ok")
    A.nop(8)
    A(f"v_mul_f32 {vr(T+1)}, {vr(WT+0)}, {vr(OD+0)}")
    A(f"v_mul_f32 {vr(T+2)}, {vr(WT+4)}, {vr(OD+2)}")
    A(f"v_fmac_f32 {vr(T+1)}, {vr(WT+1)}, {vr(OD+1)}")
    A(f"v_fmac_f32 {vr(T+2)}, {vr(WT+5)}, {vr(OD+3)}")
    A(f"v_fmac_f32 {vr(T+1)}, {vr(WT+2)}, {vr(OD+4)}")
    A(f"v_fmac_f32 {vr(T+2)}, {vr(WT+6)}, {vr(OD+6)}")
    A(f"v_fmac_f32 {vr(T+1)}, {vr(WT+3)}, {vr(OD+5)}")
    A(f"v_fmac_f32 {vr(T+2)}, {vr(WT+7)}, {vr(OD+7)}")
    A(f"v_min_u32 {vr(T+1)}, -2, {vr(T+1)}")
    A(f"v_min_u32 {vr(T+2)}, -2, {vr(T+2)}")
    A(f"buffer_store_dword {vr(T+1)}, {vr(V_R2A)}, {sr(SWS,4)}, {sr(S_R2P)} offen sc1")
    A(f"buffer_store_dword {vr(T+2)}, {vr(V_R2A)}, {sr(SWS,4)}, {sr(S_R2P+1)} offen sc1")
    stamp("r2_pub")
    if o["stag1"]: A("s_waitcnt vmcnt(2)")
    A(f"s_cmp_lt_u32 s2, 8")
    A("s_cbranch_scc0 L_fin")
    FB = 96
    H = 196
    OWN = 184
    D_ = T + 24
    N1 = T + 32
    LT2 = T
    A(f"s_lshl_b32 {sr(S_TMP+2)}, s2, 16")
    A(f"s_lshl_b32 {sr(S_TMP+6)}, {sr(S_WAVE)}, 9")
    A(f"s_add_u32 {sr(S_TMP+2)}, {sr(S_TMP+2)}, {sr(S_TMP+6)}")
    A(f"s_add_u32 {sr(S_TMP+2)}, {sr(S_TMP+2)}, {WS_R2}")
    A(f"s_add_u32 {sr(S_TMP+6)}, {sr(S_TMP+6)}, {L_H}")
    A(f"v_lshl_add_u32 {vr(OWN+8)}, {vr(V_CP)}, 1, {sr(S_TMP+6)}")
    A(f"v_lshlrev_b32 {vr(OWN+9)}, 5, v0")
    A(f"v_add_u32 {vr(OWN+9)}, {L_H}, {vr(OWN+9)}")
    A(f"v_lshlrev_b32 {vr(OWN+6)}, 16, {vr(V_XF)}")
    A(f"v_and_b32 {vr(OWN+7)}, 0xffff0000, {vr(V_XF)}")
    A(f"v_and_b32 {vr(OWN+10)}, 31, v0")
    A(f"v_lshlrev_b32 {vr(OWN+10)}, 4, {vr(OWN+10)}")
    A(f"v_lshrrev_b32 {vr(OWN+11)}, 5, v0")
    A(f"v_lshl_add_u32 {vr(OWN+10)}, {vr(OWN+11)}, 11, {vr(OWN+10)}")
    A(f"s_mov_b32 {sr(S_SPIN)}, {SPIN_LIMIT}")
    for k in range(4):
        A(f"s_mov_b64 {sr(S_M+2*k,2)}, -1")
    for i in range(16):
        A(f"s_add_u32 {sr(S_RB+i)}, {sr(S_TMP+2)}, {i*4096}")
    if not o["r2nw"]: A("s_waitcnt vmcnt(0)")
    def r2_batch():
        for k in range(4):
            A(f"s_mov_b64 exec, {sr(S_M+2*k,2)}")
            for pp in range(4):
                i = 4 * k + pp
                A(f"buffer_load_dwordx4 {vr(FB+4*i,4)}, {vr(OWN+10)}, {sr(SWS,4)}, {sr(S_RB+i)} offen sc1")
        A("s_mov_b64 exec, -1")
    for _ in range(o["nb2"] - 1):
        r2_batch()
        if o["stag2"]: A(f"s_sleep {o['stag2']}")
    A.label("L_r2loop")
    r2_batch()
    A(f"s_waitcnt vmcnt({16*(o['nb2']-1)})")
    for st in range(8):
        for k in range(4):
            r = FB + 16 * k
            if st == 0:
                A(f"v_max3_u32 {vr(T+k)}, {vr(r)}, {vr(r+1)}, {vr(r+2)}")
            elif st < 7:
                A(f"v_max3_u32 {vr(T+k)}, {vr(T+k)}, {vr(r+1+2*st)}, {vr(r+2+2*st)}")
            else:
                A(f"v_max_u32 {vr(T+k)}, {vr(T+k)}, {vr(r+15)}")
    for k in range(4):
        A(f"v_cmp_eq_u32 {sr(S_M+2*k,2)}, -1, {vr(T+k)}")
    A(f"s_or_b64 {sr(S_TMP,2)}, {sr(S_M,2)}, {sr(S_M+2,2)}")
    A(f"s_or_b64 {sr(S_TMP+4,2)}, {sr(S_M+4,2)}, {sr(S_M+6,2)}")
    A(f"s_or_b64 {sr(S_TMP,2)}, {sr(S_TMP,2)}, {sr(S_TMP+4,2)}")
    A("s_cbranch_scc0 L_r2ok")
    A(f"s_sub_u32 {sr(S_SPIN)}, {sr(S_SPIN)}, 1")
    A("s_cbranch_scc0 L_r2loop")
    A.label("L_r2ok")
    SM = T + 8
    for i in range(4):
        for hh_ in range(2):
            A(f"v_pk_add_f32 {vr(SM+4*i+2*hh_,2)}, {vr(FB+16*i+2*hh_,2)}, {vr(FB+16*i+4+2*hh_,2)}")
    for j in (2, 3):
        for i in range(4):
            for hh_ in range(2):
                A(f"v_pk_add_f32 {vr(SM+4*i+2*hh_,2)}, {vr(SM+4*i+2*hh_,2)}, {vr(FB+16*i+4*j+2*hh_,2)}")
    for hh_ in range(2):
        A(f"v_pk_add_f32 {vr(SM+2*hh_,2)}, {vr(SM+2*hh_,2)}, {vr(SM+4+2*hh_,2)}")
        A(f"v_pk_add_f32 {vr(SM+8+2*hh_,2)}, {vr(SM+8+2*hh_,2)}, {vr(SM+12+2*hh_,2)}")
    for hh_ in range(2):
        A(f"v_pk_add_f32 {vr(SM+2*hh_,2)}, {vr(SM+2*hh_,2)}, {vr(SM+8+2*hh_,2)}")
    A.nop(1)
    A(f"v_permlane32_swap_b32 {vr(SM)}, {vr(SM+2)}")
    A(f"v_permlane32_swap_b32 {vr(SM+1)}, {vr(SM+3)}")
    A.nop(1)
    FB = SM + 4
    A(f"v_pk_add_f32 {vr(FB,2)}, {vr(SM,2)}, {vr(SM+2,2)}")
    rne2(FB, FB+1, T)
    A(f"v_pk_add_f32 {vr(OWN,2)}, {vr(FB,2)}, {vr(OWN+6,2)}")
    rne2(OWN, OWN+1, T)
    A(f"ds_write_b64 {vr(OWN+8)}, {vr(OWN,2)}")
    A("s_waitcnt lgkmcnt(0)")
    A("s_barrier")
    stamp("r2_ok")
    A(f"ds_read_b128 {vr(H,4)}, {vr(OWN+9)}")
    A(f"ds_read_b128 {vr(H+4,4)}, {vr(OWN+9)} offset:16")
    def ln_stats(x, t):
        A(f"v_readfirstlane_b32 {sr(S_TMP+7)}, {vr(x)}")
        A.nop(2)
        A(f"v_mov_b32 {vr(t+2)}, {sr(S_TMP+7)}")
        A(f"v_mov_b32 {vr(t+3)}, {sr(S_TMP+7)}")
        for i in range(0, 8, 2):
            A(f"v_pk_add_f32 {vr(t+4+i,2)}, {vr(x+i,2)}, {vr(t+2,2)} neg_lo:[0,1] neg_hi:[0,1]")
        A(f"v_pk_add_f32 {vr(t,2)}, {vr(t+4,2)}, {vr(t+6,2)}")
        A(f"v_pk_mul_f32 {vr(t+12,2)}, {vr(t+4,2)}, {vr(t+4,2)}")
        A(f"v_pk_add_f32 {vr(t,2)}, {vr(t,2)}, {vr(t+8,2)}")
        A(f"v_pk_fma_f32 {vr(t+12,2)}, {vr(t+6,2)}, {vr(t+6,2)}, {vr(t+12,2)}")
        A(f"v_pk_add_f32 {vr(t,2)}, {vr(t,2)}, {vr(t+10,2)}")
        A(f"v_pk_fma_f32 {vr(t+12,2)}, {vr(t+8,2)}, {vr(t+8,2)}, {vr(t+12,2)}")
        A(f"v_add_f32 {vr(t)}, {vr(t)}, {vr(t+1)}")
        A(f"v_pk_fma_f32 {vr(t+12,2)}, {vr(t+10,2)}, {vr(t+10,2)}, {vr(t+12,2)}")
        A(f"v_add_f32 {vr(t+1)}, {vr(t+12)}, {vr(t+13)}")
        allreduce("v_add_f32", [t, t+1], [t+4, t+5])
        A(f"v_mul_f32 {vr(t)}, {hex(f2u(1/512))}, {vr(t)}")
        A(f"v_mul_f32 {vr(t+1)}, {hex(f2u(1/512))}, {vr(t+1)}")
        A(f"v_fma_f32 {vr(t+1)}, -{vr(t)}, {vr(t)}, {vr(t+1)}")
        A(f"v_add_f32 {vr(t)}, {vr(t)}, {vr(t+2)}")
        A(f"v_max_f32 {vr(t+1)}, 0, {vr(t+1)}")
        rne2(t, t+1, t+4)
        A(f"v_add_f32 {vr(t+1)}, {hex(f2u(1e-5))}, {vr(t+1)}")
        rne1(t+1, t+1)
        A(f"v_sqrt_f32 {vr(t+1)}, {vr(t+1)}")
        A.nop(1)
        rne1(t+1, t+1)
        A(f"v_rcp_f32 {vr(t+2)}, {vr(t+1)}")
        A(f"v_mov_b32 {vr(t+4)}, {vr(t)}")
        A(f"v_mov_b32 {vr(t+5)}, {vr(t)}")
        A(f"v_mov_b32 {vr(t+6)}, {vr(t+1)}")
        A(f"v_mov_b32 {vr(t+7)}, {vr(t+1)}")
        A(f"v_mov_b32 {vr(t+3)}, {vr(t+2)}")
    def ln_apply(pairs, t, pk):
        for (s_, d, n) in pairs:
            A(f"v_pk_add_f32 {vr(d,2)}, {vr(s_,2)}, {vr(t+4,2)} neg_lo:[0,1] neg_hi:[0,1]")
        for i, (s_, d, n) in enumerate(pairs):
            A(f"v_cvt_pk_bf16_f32 {vr(pk+i)}, {vr(d)}, {vr(d+1)}")
        for i, (s_, d, n) in enumerate(pairs):
            A(f"v_lshlrev_b32 {vr(d)}, 16, {vr(pk+i)}")
            A(f"v_and_b32 {vr(d+1)}, 0xffff0000, {vr(pk+i)}")
        for (s_, d, n) in pairs:
            A(f"v_pk_mul_f32 {vr(n,2)}, {vr(d,2)}, {vr(t+2,2)}")
        for (s_, d, n) in pairs:
            A(f"v_pk_fma_f32 {vr(d,2)}, {vr(n,2)}, {vr(t+6,2)}, {vr(d,2)} neg_lo:[1,0,0] neg_hi:[1,0,0]")
        for (s_, d, n) in pairs:
            A(f"v_pk_fma_f32 {vr(n,2)}, {vr(d,2)}, {vr(t+2,2)}, {vr(n,2)}")
        for i, (s_, d, n) in enumerate(pairs):
            A(f"v_cvt_pk_bf16_f32 {vr(pk+i)}, {vr(n)}, {vr(n+1)}")
        for i, (s_, d, n) in enumerate(pairs):
            A(f"v_lshlrev_b32 {vr(n)}, 16, {vr(pk+i)}")
            A(f"v_and_b32 {vr(n+1)}, 0xffff0000, {vr(pk+i)}")
    A("s_waitcnt lgkmcnt(0)")
    ln_stats(H, LT2)
    ln_apply([(H+i, D_+i, N1+i) for i in range(0, 8, 2)] + [(OWN, OWN+4, OWN+2)], LT2, LT2+8)
    ln_stats(N1, LT2)
    ln_apply([(OWN+2, OWN+4, OWN+2)], LT2, LT2+8)
    Y = OWN + 4
    S_MS = 80
    A(f"s_mov_b32 {sr(S_TMP+8)}, {o.get('fbtest', NEXP) * 128}")
    for x in range(2):
        A(f"v_bfe_u32 {vr(LT2+2*x)}, {vr(OWN+2+x)}, 16, 15")
        A(f"v_subrev_u32 {vr(LT2+2*x)}, {E0*128}, {vr(LT2+2*x)}")
        A(f"v_cmp_gt_u32 {sr(S_MS+2*x,2)}, {sr(S_TMP+8)}, {vr(LT2+2*x)}")
        A(f"v_lshrrev_b32 {vr(LT2+2*x+1)}, 31, {vr(OWN+2+x)}")
        A(f"v_mul_u32_u24 {vr(LT2+2*x+1)}, {GT_HALF}, {vr(LT2+2*x+1)}")
        A(f"v_cndmask_b32 {vr(LT2+2*x)}, 0, {vr(LT2+2*x)}, {sr(S_MS+2*x,2)}")
        A(f"v_add_lshl_u32 {vr(LT2+2*x)}, {vr(LT2+2*x)}, {vr(LT2+2*x+1)}, 2")
        A(f"v_add_u32 {vr(LT2+2*x)}, {L_GT}, {vr(LT2+2*x)}")
        A(f"ds_read_b32 {vr(Y+x)}, {vr(LT2+2*x)}")
    A(f"s_and_b64 {sr(S_TMP+4,2)}, {sr(S_MS,2)}, {sr(S_MS+2,2)}")
    A(f"s_lshl_b32 {sr(S_TMP+2)}, s2, 10")
    A(f"s_lshl_b32 {sr(S_TMP+3)}, {sr(S_WAVE)}, 8")
    A(f"s_add_u32 {sr(S_TMP+2)}, {sr(S_TMP+2)}, {sr(S_TMP+3)}")
    A(f"s_cmp_eq_u64 {sr(S_TMP+4,2)}, -1")
    A("s_waitcnt lgkmcnt(0)")
    A("s_cbranch_scc1 L_nofb")
    A("s_waitcnt vmcnt(0)")
    gw_load()
    gw_unpack()
    for x in range(2):
        lp, dn = A.newlabel("Lfb"), A.newlabel("Lfbd")
        A(f"s_not_b64 {sr(S_TMP+4,2)}, {sr(S_MS+2*x,2)}")
        A.label(lp)
        A(f"s_cmp_eq_u64 {sr(S_TMP+4,2)}, 0")
        A(f"s_cbranch_scc1 {dn}")
        A(f"s_ff1_i32_b64 {sr(S_TMP+6)}, {sr(S_TMP+4,2)}")
        A(f"s_bitset0_b64 {sr(S_TMP+4,2)}, {sr(S_TMP+6)}")
        A(f"v_readlane_b32 {sr(S_TMP+7)}, {vr(OWN+2+x)}, {sr(S_TMP+6)}")
        A(f"v_mov_b32 {vr(G_ACC)}, 0")
        A.nop(2)
        A(f"v_mov_b32 {vr(G_T)}, {sr(S_TMP+7)}")
        A(f"v_mov_b32 {vr(G_K0)}, {hex(f2u(K0))}")
        for c in range(7):
            g_chunk(c, 1)
        g_finish(1)
        A(f"s_lshl_b64 exec, 1, {sr(S_TMP+6)}")
        A(f"v_mov_b32 {vr(Y+x)}, {vr(G_ACC)}")
        A("s_mov_b64 exec, -1")
        A(f"s_branch {lp}")
        A.label(dn)
    A.label("L_nofb")
    A(f"v_pk_add_f32 {vr(Y,2)}, {vr(Y,2)}, {vr(OWN,2)}")
    A(f"v_cvt_pk_bf16_f32 {vr(Y)}, {vr(Y)}, {vr(Y+1)}")
    A(f"buffer_store_dword {vr(Y)}, {vr(V_CP)}, {sr(SOUT,4)}, {sr(S_TMP+2)} offen")
    A("s_branch L_fin")

    A.label("L_stream")
    cur[0] = "s"
    A.vm = 0
    A(f"s_setprio {o['pst']}")
    V_KD = 2
    V_KR = 6
    V_VO = 10
    V_M0, V_M1 = 11, 14
    V_MW, V_LS = 15, 236
    V_ACC = 16
    V_XA = 24
    V_XB = 30
    V_Q = 36
    V_S = 52
    V_KF = 92
    V_V = 124
    T = 238
    NVS = 7
    S_SW = 62
    A(f"s_sub_u32 {sr(S_SW)}, {sr(S_WAVE)}, 4")
    A(f"s_lshl_b32 {sr(S_KOFF)}, {sr(S_B)}, 23")
    A(f"s_lshl_b32 {sr(S_TMP+3)}, {sr(S_HKV)}, 20")
    A(f"s_add_u32 {sr(S_KOFF)}, {sr(S_KOFF)}, {sr(S_TMP+3)}")
    A(f"s_lshl_b32 {sr(S_TMP+3)}, {sr(S_SW)}, 12")
    A(f"s_add_u32 {sr(S_KOFF)}, {sr(S_KOFF)}, {sr(S_TMP+3)}")
    DYN, NS, CAP = o["dyn"], o["S"], o["cap"]
    POOL = 64 - 4 * NS
    S_NR, S_OFF, S_DYN, S_CNT, S_CL, S_FD = 28, 32, 36, 37, 38, 76
    V_CLM = V_S + 36
    if DYN:
        assert 4 * CAP >= POOL and 8 < NS <= 13
        A(f"s_add_u32 {sr(S_DYN)}, {sr(S_KOFF)}, {4*NS*16384}")
        A(f"s_mul_i32 {sr(S_TMP+3)}, {sr(S_S)}, {NS*16384}")
        A(f"s_lshl_b32 {sr(S_CNT)}, {sr(S_HKV)}, 3")
        A(f"s_add_u32 {sr(S_CNT)}, {sr(S_CNT)}, {sr(S_B)}")
        A(f"s_lshl_b32 {sr(S_CNT)}, {sr(S_CNT)}, 2")
        A(f"s_add_u32 {sr(S_CNT)}, {sr(S_CNT)}, {sr(S_SW)}")
        A(f"s_lshl_b32 {sr(S_CNT)}, {sr(S_CNT)}, 7")
        A(f"s_add_u32 {sr(S_CNT)}, {sr(S_CNT)}, {WS_CNT}")
    else:
        A(f"s_lshl_b32 {sr(S_TMP+3)}, {sr(S_S)}, {14 if o.get('il') else 18}")
    A(f"s_add_u32 {sr(S_KOFF)}, {sr(S_KOFF)}, {sr(S_TMP+3)}")
    A(f"s_lshl_b32 {sr(S_RING)}, {sr(S_SW)}, 15")
    S_ROT = 39
    if o["rot"] == 1:
        A(f"s_lshl_b32 {sr(S_ROT)}, {sr(S_HKV)}, 1")
        A(f"s_add_u32 {sr(S_ROT)}, {sr(S_ROT)}, {sr(S_IDX)}")
    elif o["rot"] == 2:
        A(f"s_mul_i32 {sr(S_ROT)}, {sr(S_IDX)}, 5")
        A(f"s_lshl_b32 {sr(S_TMP+3)}, {sr(S_HKV)}, 1")
        A(f"s_add_u32 {sr(S_ROT)}, {sr(S_ROT)}, {sr(S_TMP+3)}")
    elif o["rot"] == 3:
        A(f"s_lshl_b32 {sr(S_ROT)}, {sr(S_B)}, 1")
    elif o["rot"] == 4:
        A(f"s_lshl_b32 {sr(S_ROT)}, {sr(S_B)}, 1")
        A(f"s_add_u32 {sr(S_ROT)}, {sr(S_ROT)}, {sr(S_HKV)}")
    TSH = 16 if o.get("il") else 14
    if o["rot"]: A(f"s_lshl_b32 {sr(S_ROT)}, {sr(S_ROT)}, {TSH}")
    A(f"v_xor_b32 {vr(T)}, {vr(V_J)}, {vr(V_G)}")
    A(f"v_lshlrev_b32 {vr(T+1)}, 8, {vr(V_G)}")
    A(f"v_lshlrev_b32 {vr(T+2)}, 8, {vr(V_J)}")
    A(f"v_add_u32 {vr(T+2)}, {sr(S_RING)}, {vr(T+2)}")
    for a in range(4):
        A(f"v_xor_b32 {vr(T+3)}, {4*a}, {vr(T)}")
        A(f"v_lshlrev_b32 {vr(T+3)}, 4, {vr(T+3)}")
        A(f"v_add_u32 {vr(V_KD+a)}, {vr(T+1)}, {vr(T+3)}")
        A(f"v_add_u32 {vr(V_KR+a)}, {vr(T+2)}, {vr(T+3)}")
    A(f"v_lshlrev_b32 {vr(V_VO)}, 10, {vr(V_G)}")
    A(f"v_lshl_add_u32 {vr(V_VO)}, {vr(V_J)}, 4, {vr(V_VO)}")
    A("s_waitcnt lgkmcnt(0)")
    srd(SK, 1, 64 << 20)
    srd(SV, 2, 64 << 20)
    if o["debug"] or DYN: srd(SWS, 12, WS_SIZE)
    if not o["kfirst"]: A("s_barrier")
    stamp("start")
    NV1 = o["nv1"]
    seq = [("K", t) for t in range(8)] + [("V", t) for t in range(NV1)] + [("K", t) for t in range(8, 16)] + [("V", t) for t in range(NV1, 16)]
    if DYN:
        LAG = o.get("lag", 1)
        seq = [("K", t) for t in range(8)] + [("V", t) for t in range(NV1)] + [("K", t) for t in range(8, NS)] + [("V", t) for t in range(NV1, NS - LAG)]
        for j in range(CAP): seq += [("K", NS + j), ("V", NS + j - LAG)]
        if LAG: seq += [("V", NS + CAP - 1)]
    NSEQ = len(seq)
    pos = {k: n for n, k in enumerate(seq)}
    ops = {}
    qk_done, pv_done = set(), set()
    D = o["D"]
    def Dat(n): return D if n < o["nsw"] else o["D2"]
    def land_n(m):
        for n in range(NSEQ):
            if n - Dat(n) >= m: return n
        return NSEQ
    def vslot(t): return V_V + 16 * (t if t < 7 else (t - 7) % 7)
    def sslot(t):
        if DYN and t >= NS: return V_S + 4 * (5, 6, 8)[(t - NS) % 3]
        return V_S + 4 * (t if t < 8 else (t - 8 if t < 8 + NV1 else t - NV1))
    def nr(j): return S_NR + j % 4
    known = [-1]
    def issue(n):
        k, t = seq[n]
        if k == "K" and t >= 8: assert (t - 8) in qk_done, (n, t)
        if k == "V" and t >= 7: assert (t - 7) in pv_done, (n, t)
        dj = t - NS if DYN and t >= NS else -1
        if dj >= 0 and k == "K":
            A.wait_vm(max(ops[("C", dj)], ops[seq[n - Dat(n)]]))
            A(f"v_readfirstlane_b32 {sr(S_CL)}, {vr(V_CLM + dj % 3)}")
            A(f"s_add_u32 {sr(S_TMP+4)}, {sr(S_RING)}, {(t&7)*4096}")
            A(f"s_mov_b32 m0, {sr(S_TMP+4)}")
            A(f"s_cmp_lt_u32 {sr(S_CL)}, {POOL}")
            A(f"s_cselect_b32 {sr(nr(dj))}, {sr(nr(dj-1)) if dj else hex(64 << 20)}, 0")
            A(f"s_min_u32 {sr(S_CL)}, {sr(S_CL)}, {POOL-1}")
            A(f"s_lshl_b32 {sr(S_CL)}, {sr(S_CL)}, 14")
            A(f"s_add_u32 {sr(S_OFF + dj % 4)}, {sr(S_DYN)}, {sr(S_CL)}")
            A(f"s_mov_b32 {sr(SK+2)}, {sr(nr(dj))}")
            known[0] = dj
            so = S_OFF + dj % 4
        else:
            if n >= Dat(n):
                A.wait_vm(ops[seq[n - Dat(n)]])
            if k == "K":
                A(f"s_add_u32 {sr(S_TMP+4)}, {sr(S_RING)}, {(t&7)*4096}")
                A(f"s_mov_b32 m0, {sr(S_TMP+4)}")
            so = S_TMP + 5
            if dj >= 0:
                A(f"s_mov_b32 {sr(SV+2)}, {sr(nr(dj))}")
                so = S_OFF + dj % 4
            elif o["rot"]:
                A(f"s_add_u32 {sr(S_TMP+5)}, {sr(S_ROT)}, {t << TSH}")
                A(f"s_and_b32 {sr(S_TMP+5)}, {sr(S_TMP+5)}, {hex((16 << TSH) - 1)}")
                A(f"s_add_u32 {sr(S_TMP+5)}, {sr(S_TMP+5)}, {sr(S_KOFF)}")
            else:
                A(f"s_add_u32 {sr(S_TMP+5)}, {sr(S_KOFF)}, {t*(65536 if o.get('il') and not DYN else 16384)}")
        if k == "K":
            for a in range(4):
                ops[(k, t)] = A.vmem(f"buffer_load_dwordx4 {vr(V_KD+a)}, {sr(SK,4)}, {sr(so)} offen offset:{a*1024} nt lds")
        else:
            base = vslot(t)
            for u in range(4):
                ops[(k, t)] = A.vmem(f"buffer_load_dwordx4 {vr(base+4*u,4)}, {vr(V_VO)}, {sr(SV,4)}, {sr(so)} offen offset:{u*256} nt")
        if DYN:
            for j in range(CAP):
                nk = pos[("K", NS + j)]
                if nk - Dat(nk) - o.get("cearly", 0) == n:
                    assert n > o["qpos"] and known[0] >= j - 3
                    A(f"v_mov_b32 {vr(V_CLM + j % 3)}, 1")
                    if known[0] >= 0: A(f"s_mov_b32 {sr(SWS+2)}, {sr(nr(known[0]))}")
                    A("s_mov_b64 exec, 1")
                    ops[("C", j)] = A.vmem(f"buffer_atomic_add {vr(V_CLM + j % 3)}, off, {sr(SWS,4)}, {sr(S_CNT)} sc0")
                    A("s_mov_b64 exec, -1")
    SC = hex(f2u(128 ** -0.5))
    def k_read(t):
        A.wait_vm(ops[("K", t)])
        for ks in range(4):
            A(f"ds_read_b128 {vr(V_KF+16*(t&1)+4*ks,4)}, {vr(V_KR+ks)} offset:{(t&7)*4096}")
    def k_mfma(t):
        s_ = sslot(t)
        if 8 <= t < 8 + NV1: assert (t - 8) in pv_done, t
        qk_done.add(t)
        for ks in range(4):
            c = "0" if ks == 0 else vr(s_, 4)
            A(f"v_mfma_f32_16x16x32_bf16 {vr(s_,4)}, {vr(V_KF+16*(t&1)+4*ks,4)}, {vr(V_Q+4*ks,4)}, {c}")
    def s_round(tiles):
        regs = [sslot(t) + r for t in tiles for r in range(4)]
        P = T
        A.nop(4)
        for ph in range(2):
            for i in range(0, len(regs), 2):
                A(f"v_cvt_pk_bf16_f32 {vr(P+i//2)}, {vr(regs[i])}, {vr(regs[i+1])}")
            for i in range(0, len(regs), 2):
                A(f"v_lshlrev_b32 {vr(regs[i])}, 16, {vr(P+i//2)}")
                A(f"v_and_b32 {vr(regs[i+1])}, 0xffff0000, {vr(P+i//2)}")
            if ph == 0:
                for r in regs:
                    A(f"v_mul_f32 {vr(r)}, {SC}, {vr(r)}")
    def qk_burst(tiles):
        k_read(tiles[0])
        for i, t in enumerate(tiles):
            if i + 1 < len(tiles):
                k_read(tiles[i + 1])
                A("s_waitcnt lgkmcnt(4)")
            else:
                A("s_waitcnt lgkmcnt(0)")
            k_mfma(t)
    pend = []
    def qk_one(t):
        k_read(t)
        if pend:
            s_round(list(pend)); pend.clear()
        A("s_waitcnt lgkmcnt(0)")
        k_mfma(t)
        pend.append(t)
    def softmax(tiles, first):
        regs = [sslot(t) + r for t in tiles for r in range(4)]
        P = T
        n = len(regs)
        ch = [regs[i::4] for i in range(4)]
        for i in range(4):
            c = ch[i]
            A(f"v_max3_f32 {vr(P+i)}, {vr(c[0])}, {vr(c[1])}, {vr(c[2])}")
        k = 3
        while k < len(ch[0]):
            for i in range(4):
                c = ch[i]
                if k + 1 < len(c):
                    A(f"v_max3_f32 {vr(P+i)}, {vr(P+i)}, {vr(c[k])}, {vr(c[k+1])}")
                else:
                    A(f"v_max_f32 {vr(P+i)}, {vr(P+i)}, {vr(c[k])}")
            k += 2
        A(f"v_max3_f32 {vr(P+4)}, {vr(P)}, {vr(P+1)}, {vr(P+2)}")
        A(f"v_max_f32 {vr(P+4)}, {vr(P+4)}, {vr(P+3)}")
        xreduce("v_max_f32", [P+4], [P])
        if not first:
            A(f"v_max_f32 {vr(P+4)}, {vr(P+4)}, {vr(V_MW)}")
            A(f"v_sub_f32 {vr(P+5)}, {vr(V_MW)}, {vr(P+4)}")
            A(f"v_mul_f32 {vr(P+5)}, {sr(S_C0)}, {vr(P+5)}")
            A(f"v_exp_f32 {vr(P+5)}, {vr(P+5)}")
        A(f"v_mov_b32 {vr(V_MW)}, {vr(P+4)}")
        A(f"v_mul_f32 {vr(P)}, {hex(f2u(-LOG2E))}, {vr(P+4)}")
        if not first:
            for h in range(4):
                A(f"v_readlane_b32 {sr(S_F+h)}, {vr(P+5)}, {h}")
        A(f"v_mov_b32 {vr(P+6)}, {sr(S_C0)}")
        for r in regs:
            A(f"v_fma_f32 {vr(r)}, {vr(r)}, {vr(P+6)}, {vr(P)}")
        for r in regs:
            A(f"v_exp_f32 {vr(r)}, {vr(r)}")
        for i in range(4):
            A(f"v_add_f32 {vr(P+1+i)}, {vr(ch[i][0])}, {vr(ch[i][1])}")
        for k in range(2, len(ch[0])):
            for i in range(4):
                A(f"v_add_f32 {vr(P+1+i)}, {vr(P+1+i)}, {vr(ch[i][k])}")
        A(f"v_add_f32 {vr(P+1)}, {vr(P+1)}, {vr(P+2)}")
        A(f"v_add_f32 {vr(P+3)}, {vr(P+3)}, {vr(P+4)}")
        A(f"v_add_f32 {vr(P+1)}, {vr(P+1)}, {vr(P+3)}")
        if not DYN: xreduce("v_add_f32", [P+1], [P+2])
        if first:
            A(f"v_mov_b32 {vr(V_LS)}, {vr(P+1)}")
        else:
            A(f"v_fma_f32 {vr(V_LS)}, {vr(V_LS)}, {vr(P+5)}, {vr(P+1)}")
            if not DYN: publish()
            for r in range(8):
                A(f"v_mul_f32 {vr(V_ACC+r)}, {sr(S_F+(r&3))}, {vr(V_ACC+r)}")
        for r in regs:
            A(f"v_cvt_pk_bf16_f32 {vr(r)}, {vr(r)}, {vr(r)}")
    def publish():
        P = T
        A(f"v_mov_b32 {vr(P+3)}, {vr(V_LS)}")
        A(f"s_lshl_b32 {sr(S_TMP+2)}, {sr(S_SW)}, 5")
        A(f"s_add_u32 {sr(S_TMP+2)}, {sr(S_TMP+2)}, {L_STAT}")
        A(f"v_lshl_add_u32 {vr(P+4)}, v0, 3, {sr(S_TMP+2)}")
        if DYN: xreduce("v_add_f32", [P+3], [P+2])
        A(f"v_mov_b32 {vr(P+2)}, {vr(V_MW)}")
        A("s_mov_b64 exec, 15")
        A(f"ds_write_b64 {vr(P+4)}, {vr(P+2,2)}")
        A("s_mov_b64 exec, -1")
        lds_inc(F_ST, P+6)
        stamp("pub")
    def dyn_qk(j):
        t = NS + j
        assert known[0] >= min(j + 1, CAP - 1) and (t - 3 in pv_done)
        sk = A.newlabel("Ldq")
        A(f"s_cmp_eq_u32 {sr(nr(j))}, 0")
        A(f"s_cbranch_scc1 {sk}")
        k_read(t)
        A("s_waitcnt lgkmcnt(0)")
        k_mfma(t)
        A.nop(8)
        s_round([t])
        r = [sslot(t) + i for i in range(4)]
        P = T
        A(f"v_max3_f32 {vr(P+4)}, {vr(r[0])}, {vr(r[1])}, {vr(r[2])}")
        A(f"v_max3_f32 {vr(P+4)}, {vr(P+4)}, {vr(r[3])}, {vr(V_MW)}")
        xreduce("v_max_f32", [P+4], [P])
        A(f"v_sub_f32 {vr(P+5)}, {vr(V_MW)}, {vr(P+4)}")
        A(f"v_mul_f32 {vr(P+5)}, {sr(S_C0)}, {vr(P+5)}")
        A(f"v_exp_f32 {vr(P+5)}, {vr(P+5)}")
        A(f"v_mov_b32 {vr(V_MW)}, {vr(P+4)}")
        A(f"v_mul_f32 {vr(P)}, {hex(f2u(-LOG2E))}, {vr(P+4)}")
        A(f"v_mov_b32 {vr(P+6)}, {sr(S_C0)}")
        for x in r: A(f"v_fma_f32 {vr(x)}, {vr(x)}, {vr(P+6)}, {vr(P)}")
        for x in r: A(f"v_exp_f32 {vr(x)}, {vr(x)}")
        for h in range(4):
            A(f"v_readlane_b32 {sr(S_FD + 4*(j%3) + h)}, {vr(P+5)}, {h}")
        A(f"v_add_f32 {vr(P+1)}, {vr(r[0])}, {vr(r[1])}")
        A(f"v_add_f32 {vr(P+2)}, {vr(r[2])}, {vr(r[3])}")
        A(f"v_add_f32 {vr(P+1)}, {vr(P+1)}, {vr(P+2)}")
        A(f"v_fma_f32 {vr(V_LS)}, {vr(V_LS)}, {vr(P+5)}, {vr(P+1)}")
        for x in r: A(f"v_cvt_pk_bf16_f32 {vr(x)}, {vr(x)}, {vr(x)}")
        if j + 1 < CAP:
            A(f"s_cmp_lg_u32 {sr(nr(j+1))}, 0")
            A(f"s_cbranch_scc1 {sk}")
        publish()
        A.label(sk)
    def dyn_pub0():
        sk = A.newlabel("Ldp")
        assert known[0] >= 0
        A(f"s_cmp_lg_u32 {sr(nr(0))}, 0")
        A(f"s_cbranch_scc1 {sk}")
        publish()
        A.label(sk)
    def dyn_pv(t):
        j = t - NS
        if j >= 0:
            for r in range(8):
                A(f"v_mul_f32 {vr(V_ACC+r)}, {sr(S_FD + 4*(j%3) + (r&3))}, {vr(V_ACC+r)}")
        pv(t)
        if o["debug"] and j >= -1: A(f"v_writelane_b32 v{V_STAMP}, {j+2}, 30")
        if -1 <= j < CAP - 1:
            assert known[0] >= j + 1
            A(f"s_cmp_eq_u32 {sr(nr(j+1))}, 0")
            A("s_cbranch_scc1 L_epi")
    flip = [0]
    def pv(t):
        base = vslot(t)
        s_ = sslot(t)
        pv_done.add(t)
        A.wait_vm(ops[("V", t)])
        for u in range(4):
            X = V_XA if flip[0] == 0 else V_XB
            flip[0] ^= 1
            A(f"v_and_b32 {vr(X+2)}, {vr(s_+u)}, {vr(V_M0)}")
            A(f"v_and_b32 {vr(X+3)}, {vr(s_+u)}, {vr(V_M1)}")
            A.nop(2)
            A(f"v_mfma_f32_16x16x32_bf16 {vr(V_ACC,4)}, {vr(X+2,4)}, {vr(base+4*u,4)}, {vr(V_ACC,4)}")
            A(f"v_mfma_f32_16x16x32_bf16 {vr(V_ACC+4,4)}, {vr(X,4)}, {vr(base+4*u,4)}, {vr(V_ACC+4,4)}")
    def q_get():
        A(f"v_and_b32 {vr(T+2)}, 3, {vr(V_J)}")
        A(f"v_lshlrev_b32 {vr(T+2)}, 8, {vr(T+2)}")
        A(f"v_lshl_add_u32 {vr(T+2)}, {vr(V_G)}, 4, {vr(T+2)}")
        A(f"v_add_u32 {vr(T+2)}, {L_Q}, {vr(T+2)}")
        stamp("q_wait")
        lds_wait(F_Q2, 1, T)
        for ks in range(4):
            A(f"ds_read_b128 {vr(V_Q+4*ks,4)}, {vr(T+2)} offset:{64*ks}")
        stamp("q_got")
    qp = o["qpos"]
    quanta = {n: [] for n in range(NSEQ + 1)}
    quanta[qp] += [q_get, lambda: qk_burst([0, 1, 2, 3])]
    quanta[qp+1] += [lambda: qk_burst([4, 5, 6, 7]), lambda: s_round([0, 1, 2, 3])]
    K8 = 8 + NV1
    NST = NS if DYN else 16
    quanta[qp+2] += [lambda: s_round([4, 5, 6, 7]), lambda: softmax(list(range(NV1)), True), lambda: stamp("sm1")]
    assert qp < K8
    for t in range(NV1):
        quanta[max(qp + 3 + t // 2, land_n(8 + t))] += [lambda t=t: pv(t)]
    for j in range(NST - 8):
        quanta[max(land_n(K8 + j), qp + 7)] += [lambda j=j: qk_one(8 + j)]
    nq = max(land_n(K8 + NST - 9), qp + 7)
    def fin_round():
        A.nop(8)
        s_round(list(pend)); pend.clear()
    quanta[nq] += [fin_round, lambda: softmax(list(range(NV1, NST)), False), lambda: stamp("sm2")]
    tail = []
    if DYN:
        quanta[max(nq, pos[("K", NS)])] += [dyn_pub0]
        ev = []
        for t in range(NV1, NS + CAP):
            ev.append((max(nq + 1, pos[("V", t)] + D), 1, t, lambda t=t: dyn_pv(t)))
        for j in range(CAP):
            ev.append((pos[("K", NS + j)] + D, 0, j, lambda j=j: dyn_qk(j)))
        for n, _, _, f in sorted(ev, key=lambda e: e[:3]):
            quanta[min(n, NSEQ)] += [f]
    else:
        for t in range(NV1, 16):
            n = max(nq + 1, land_n(16 + t))
            if n <= 31: quanta[n] += [lambda t=t: pv(t)]
            else: tail.append(t)
        assert not quanta[32]
    for n in range(NSEQ):
        issue(n)
        if o["kfirst"] and n == o["kfirst"] - 1: A("s_barrier")
        if n == D - 1:
            A(f"v_lshrrev_b32 {vr(T)}, 2, {vr(V_J)}")
            A(f"v_and_b32 {vr(T+1)}, 1, {vr(T)}")
            A(f"v_lshlrev_b32 {vr(T+1)}, 4, {vr(T+1)}")
            A(f"v_mov_b32 {vr(T+2)}, 0xffff")
            A(f"v_lshlrev_b32 {vr(T+2)}, {vr(T+1)}, {vr(T+2)}")
            A(f"v_cmp_gt_u32 vcc, 2, {vr(T)}")
            A.nop(2)
            A(f"v_cndmask_b32 {vr(V_M0)}, 0, {vr(T+2)}, vcc")
            A(f"v_cndmask_b32 {vr(V_M1)}, {vr(T+2)}, 0, vcc")
            for r in (V_XA, V_XA+1, V_XA+4, V_XA+5, V_XB, V_XB+1, V_XB+4, V_XB+5):
                A(f"v_mov_b32 {vr(r)}, 0")
            for r in range(8):
                A(f"v_mov_b32 {vr(V_ACC+r)}, 0")
            A(f"s_mov_b32 {sr(S_C0)}, {hex(f2u(LOG2E))}")
            stamp("ln_done")
        if n in (3, 5, 7, 9, 13, 17, 21, 25, 31): stamp(f"iss{n}")
        for f in quanta[n]: f()
    if DYN:
        for f in quanta[NSEQ]: f()
        A.label("L_epi")
        stamp("pv_done")
    A(f"s_lshl_b32 {sr(S_TMP+2)}, {sr(S_SW)}, 4")
    A(f"s_add_u32 {sr(S_TMP+2)}, {sr(S_TMP+2)}, {L_FAC}")
    A(f"v_mov_b32 {vr(T+2)}, {sr(S_TMP+2)}")
    A(f"v_lshlrev_b32 {vr(T+3)}, 3, v0")
    A(f"v_add_u32 {vr(T+3)}, {sr(S_RING)}, {vr(T+3)}")
    if o["stpre"]: lds_inc(F_SD, T+8)
    for t in tail[:-1]: pv(t)
    lds_wait(F_FAC, 1, T, sleep=0)
    FAC = T + 4
    A(f"ds_read_b128 {vr(FAC,4)}, {vr(T+2)}")
    stamp("fac_got")
    if DYN:
        A("s_waitcnt vmcnt(0)")
    else:
        pv(tail[-1])
        stamp("pv_done")
    A("s_waitcnt lgkmcnt(0)")
    A.nop(10)
    PO = V_KF
    for r in range(4):
        for hf in range(2):
            A(f"v_mul_f32 {vr(PO+2*r+hf)}, {vr(FAC+r)}, {vr(V_ACC+4*hf+r)}")
    for r in range(4):
        A(f"ds_write_b64 {vr(T+3)}, {vr(PO+2*r,2)} offset:{512*r}")
    A("s_waitcnt lgkmcnt(0)")
    A("s_barrier")

    A.label("L_fin")
    if o["debug"]:
        A(f"s_memrealtime s[100:101]")
        A("s_waitcnt lgkmcnt(0)")
        A(f"v_writelane_b32 v{V_STAMP}, s100, 31")
        A(f"s_mov_b32 {sr(SWS+2)}, {WS_SIZE}")
        A(f"s_lshl_b32 {sr(S_TMP+2)}, s4, 3")
        A(f"s_add_u32 {sr(S_TMP+2)}, {sr(S_TMP+2)}, {sr(S_WAVE)}")
        A(f"s_lshl_b32 {sr(S_TMP+2)}, {sr(S_TMP+2)}, 8")
        A(f"s_add_u32 {sr(S_TMP+2)}, {sr(S_TMP+2)}, {WS_DBG}")
        A(f"v_lshlrev_b32 v254, 2, v0")
        A(f"buffer_store_dword v{V_STAMP}, v254, {sr(SWS,4)}, {sr(S_TMP+2)} offen")
    A.label("L_end")
    A("s_endpgm")

    A.L.append('.section .rodata,"a"')
    A.L.append(".p2align 6")
    A.L.append(f".amdhsa_kernel {NAME}_kernel")
    A.L.append("  .amdhsa_next_free_vgpr 256")
    A.L.append("  .amdhsa_next_free_sgpr 102")
    A.L.append("  .amdhsa_accum_offset 256")
    A.L.append("  .amdhsa_group_segment_fixed_size 0")
    A.L.append("  .amdhsa_kernarg_size 104")
    A.L.append("  .amdhsa_user_sgpr_count 2")
    A.L.append("  .amdhsa_user_sgpr_kernarg_segment_ptr 1")
    A.L.append("  .amdhsa_system_sgpr_workgroup_id_x 1")
    A.L.append("  .amdhsa_float_denorm_mode_32 3")
    A.L.append(".end_amdhsa_kernel")
    if opts is not None: opts["stamps"] = stamps
    return "\n".join(A.L) + "\n"

if __name__ == "__main__":
    out = sys.argv[1] if len(sys.argv) > 1 else "k3.s"
    opts = {}
    for a in sys.argv[2:]:
        k, v = a.split("="); opts[k] = eval(v)
    open(out, "w").write(gen(opts))
    if opts.get("debug"):
        open(out + ".stamps", "w").write(" ".join(opts["stamps"]["a"]) + "\n" + " ".join(opts["stamps"]["s"]) + "\n")
    print("wrote", out)
```

```python
import sys, struct, math

NAME = "sequential_preLN__gqa_block_cached__mixer_token_mlp__decode"

def f2u(x):
    return struct.unpack("<I", struct.pack("<f", x))[0]

WS_QM = 0x00000
WS_ST = 0x20000
WS_CNT = 0x28000
WS_R1 = 0x40000
WS_GT = 0x80000
WS_R2 = 0x200000
WS_DBG = 0x100000
WS_SIZE = 0x400000

RING = 32768
L_STG = 4 * RING
L_XN = L_STG + 16384
L_GT = L_STG
L_QRED = L_XN + 8192
L_Q = L_QRED + 2048
L_STAT = L_Q + 1024
L_FAC = L_STAT + 128
L_FLAG = L_FAC + 64
L_ORED = L_FLAG + 64
L_H = L_ORED + 2048
L_W = L_H + 2048
LDS_SIZE = L_W + 128
assert LDS_SIZE <= 163840, LDS_SIZE
F_XN, F_Q1, F_Q2, F_ST, F_FAC, F_NONCE, F_WO, F_WOL, F_W, F_SD, F_N2 = [L_FLAG + 4 * i for i in range(11)]

E0 = 108
NEXP = 24
GT_HALF = NEXP * 128
SPIN_LIMIT = 200000

class Asm:
    def __init__(self):
        self.L = []
        self.vm = 0
        self.lab = 0
    def __call__(self, s):
        self.L.append("  " + s)
    def label(self, n):
        self.L.append(n + ":")
    def newlabel(self, p="L"):
        self.lab += 1
        return f"{p}_{self.lab}"
    def vmem(self, s):
        self(s); self.vm += 1
        return self.vm
    def wait_vm(self, idx, extra=0):
        n = self.vm - idx + extra
        assert 0 <= n <= 63, n
        self(f"s_waitcnt vmcnt({n})")
    def nop(self, n):
        while n > 0:
            k = min(n, 16)
            self(f"s_nop {k-1}")
            n -= k
    def comment(self, s):
        self.L.append("  ; " + s)

def vr(a, n=1):
    return f"v{a}" if n == 1 else f"v[{a}:{a+n-1}]"
def sr(a, n=1):
    return f"s{a}" if n == 1 else f"s[{a}:{a+n-1}]"

DPPM = "row_mask:0xf bank_mask:0xf"
LOG2E = math.log2(math.e)

def gen(opts=None):
    o = dict(debug=False, D=3, qpos=12, wnt=True, pst=2, pg=0, skip='', rot=0, wolate=1, D2=3, nsw=14, nv1=7, kfirst=0, r1sleep=0, nb1=1, nb2=1, r1split=1, dyn=0, S=12, cap=8, remap=5, il=1, stpre=0, r2nw=0, stag1=0, stag2=0, stsleep=20, r1ad=(8, 20), qmask=4, qdelay=16, worole=1, nonce1=0)
    if opts: o.update(opts)
    A = Asm()
    stamps = {"s": [], "a": []}
    cur = ["c"]
    V_STAMP = 255
    def stamp(name):
        if not o["debug"]: return
        lst = stamps[cur[0]]
        if name in lst: k = lst.index(name)
        else:
            k = len(lst); lst.append(name)
        assert k < 30
        A(f"s_memrealtime s[100:101]")
        A("s_waitcnt lgkmcnt(0)")
        A(f"v_writelane_b32 v{V_STAMP}, s100, {k}")
    S_WAVE = 3
    SK, SV, SWQ, SWO, SWS, SX, SDBG, SOUT, SW1, SB1, SW2 = 8, 12, 16, 20, 24, 28, 32, 36, 40, 44, 48
    S_HKV, S_IDX, S_B, S_S, S_KOFF, S_RING, S_NONCE, S_B2 = 52, 53, 54, 55, 56, 57, 58, 59
    S_RT = 60
    S_SPIN = 63
    S_P = 64
    S_TMP = 90
    S_F = 64
    S_C0 = 68
    V_J, V_G, V_L16 = 12, 13, 1

    A.L.append(f"; @launch grid=(256,1,1) block=(512,1,1) lds={LDS_SIZE}")
    A.L.append('.amdgcn_target "amdgcn-amd-amdhsa--gfx950"')
    A.L.append(".text")
    A.L.append(f".globl {NAME}_kernel")
    A.L.append(".p2align 8")
    A.L.append(f".type {NAME}_kernel,@function")
    A.label(f"{NAME}_kernel")
    A("s_cmp_ge_u32 s2, 256")
    A("s_cbranch_scc1 L_end")
    A(f"s_load_dwordx16 {sr(S_P,16)}, s[0:1], 0")
    A(f"s_load_dwordx8 {sr(S_P+16,8)}, s[0:1], 64")
    A(f"s_load_dwordx2 {sr(S_P+24,2)}, s[0:1], 96")
    A(f"s_memrealtime {sr(S_RT,2)}")
    A("v_lshrrev_b32 v1, 6, v0")
    A("v_and_b32 v0, 63, v0")
    if o["debug"]: A(f"v_mov_b32 v{V_STAMP}, 0")
    A(f"v_readfirstlane_b32 {sr(S_WAVE)}, v1")
    A(f"v_and_b32 {vr(V_J)}, 15, v0")
    A(f"v_lshrrev_b32 {vr(V_G)}, 4, v0")
    A("s_mov_b32 s4, s2")
    if o["remap"] in (2, 3, 5):
        t0, t1, t2, t3 = S_TMP, S_TMP+1, S_TMP+2, S_TMP+3
        A(f"s_and_b32 {sr(t0)}, s2, 7")
        if o["remap"] == 5:
            A(f"s_lshr_b32 {sr(t1)}, s2, 5")
            A(f"s_lshr_b32 {sr(t2)}, s2, 3")
            A(f"s_and_b32 {sr(t2)}, {sr(t2)}, 3")
        else:
            A(f"s_lshr_b32 {sr(t1)}, s2, 3")
            A(f"s_and_b32 {sr(t1)}, {sr(t1)}, 7")
            A(f"s_lshr_b32 {sr(t2)}, s2, 6")
        if o["remap"] == 2: A(f"s_xor_b32 {sr(t0)}, {sr(t0)}, {sr(t1)}")
        A(f"s_lshl_b32 {sr(t0)}, {sr(t0)}, 2")
        A(f"s_or_b32 {sr(t0)}, {sr(t0)}, {sr(t2)}")
        A(f"s_lshl_b32 {sr(t0)}, {sr(t0)}, 3")
        A(f"s_or_b32 s2, {sr(t0)}, {sr(t1)}")
    elif o["remap"] == 4:
        t0, t1, t2, t3 = S_TMP, S_TMP+1, S_TMP+2, S_TMP+3
        A(f"s_lshr_b32 {sr(t1)}, s2, 2")
        A(f"s_and_b32 {sr(t1)}, {sr(t1)}, 1")
        A(f"s_lshr_b32 {sr(t2)}, s2, 3")
        A(f"s_add_u32 {sr(t0)}, s2, {sr(t2)}")
        A(f"s_and_b32 {sr(t0)}, {sr(t0)}, 3")
        A(f"s_lshl_b32 {sr(t2)}, {sr(t2)}, 1")
        A(f"s_or_b32 {sr(t2)}, {sr(t2)}, {sr(t1)}")
        A(f"s_lshr_b32 {sr(t3)}, {sr(t2)}, 3")
        A(f"s_lshl_b32 {sr(t3)}, {sr(t3)}, 2")
        A(f"s_or_b32 {sr(t3)}, {sr(t3)}, {sr(t0)}")
        A(f"s_lshl_b32 {sr(t3)}, {sr(t3)}, 3")
        A(f"s_and_b32 {sr(t2)}, {sr(t2)}, 7")
        A(f"s_or_b32 s2, {sr(t3)}, {sr(t2)}")
    elif o["remap"]:
        t0, t1, t2, t3 = S_TMP, S_TMP+1, S_TMP+2, S_TMP+3
        A(f"s_lshr_b32 {sr(t0)}, s2, 1")
        A(f"s_xor_b32 {sr(t1)}, {sr(t0)}, s2")
        A(f"s_and_b32 {sr(t1)}, {sr(t1)}, 1")
        A(f"s_and_b32 {sr(t0)}, {sr(t0)}, 3")
        A(f"s_lshr_b32 {sr(t2)}, s2, 3")
        A(f"s_add_u32 {sr(t0)}, {sr(t0)}, {sr(t2)}")
        A(f"s_and_b32 {sr(t0)}, {sr(t0)}, 3")
        A(f"s_lshl_b32 {sr(t2)}, {sr(t2)}, 1")
        A(f"s_or_b32 {sr(t2)}, {sr(t2)}, {sr(t1)}")
        A(f"s_lshr_b32 {sr(t3)}, {sr(t2)}, 3")
        A(f"s_lshl_b32 {sr(t3)}, {sr(t3)}, 2")
        A(f"s_or_b32 {sr(t3)}, {sr(t3)}, {sr(t0)}")
        A(f"s_lshl_b32 {sr(t3)}, {sr(t3)}, 3")
        A(f"s_and_b32 {sr(t2)}, {sr(t2)}, 7")
        A(f"s_or_b32 s2, {sr(t3)}, {sr(t2)}")
    A(f"s_and_b32 {sr(S_HKV)}, s2, 7")
    A(f"s_lshr_b32 {sr(S_IDX)}, s2, 3")
    A(f"s_lshr_b32 {sr(S_B)}, {sr(S_IDX)}, 2")
    A(f"s_and_b32 {sr(S_S)}, {sr(S_IDX)}, 3")
    def srd(dst, p, nbytes):
        A(f"s_mov_b32 {sr(dst)}, {sr(S_P+2*p)}")
        A(f"s_and_b32 {sr(dst+1)}, {sr(S_P+2*p+1)}, 0xffff")
        A(f"s_mov_b32 {sr(dst+2)}, {nbytes}")
        A(f"s_mov_b32 {sr(dst+3)}, 0x20000")

    def xreduce(op, regs, tmps, steps=("v_permlane16_swap_b32", "v_permlane32_swap_b32")):
        for pl in steps:
            for r, t in zip(regs, tmps):
                A(f"v_mov_b32 {vr(t)}, {vr(r)}")
            A.nop(2)
            for r, t in zip(regs, tmps):
                A(f"{pl} {vr(r)}, {vr(t)}")
            A.nop(1)
            for r, t in zip(regs, tmps):
                A(f"{op} {vr(r)}, {vr(r)}, {vr(t)}")
    def allreduce(op, regs, tmps):
        for dpp in ("quad_perm:[1,0,3,2]", "quad_perm:[2,3,0,1]", "row_half_mirror", "row_mirror"):
            A.nop(max(0, 2 - (len(regs) - 1)))
            for r in regs:
                A(f"{op}_dpp {vr(r)}, {vr(r)}, {vr(r)} {dpp} {DPPM}")
        xreduce(op, regs, tmps)
    def rne1(dst, src):
        A(f"v_cvt_pk_bf16_f32 {vr(dst)}, {vr(src)}, {vr(src)}")
        A(f"v_lshlrev_b32 {vr(dst)}, 16, {vr(dst)}")
    def rne2(a, b, t):
        A(f"v_cvt_pk_bf16_f32 {vr(t)}, {vr(a)}, {vr(b)}")
        A(f"v_lshlrev_b32 {vr(a)}, 16, {vr(t)}")
        A(f"v_and_b32 {vr(b)}, 0xffff0000, {vr(t)}")
    def unpack(dst, src, n):
        for i in range(n):
            A(f"v_lshlrev_b32 {vr(dst+2*i)}, 16, {vr(src+i)}")
            A(f"v_and_b32 {vr(dst+2*i+1)}, 0xffff0000, {vr(src+i)}")
    def layernorm(x, out, t):
        A(f"v_add_f32 {vr(t)}, {vr(x)}, {vr(x+1)}")
        A(f"v_add_f32 {vr(t+1)}, {vr(x+2)}, {vr(x+3)}")
        A(f"v_add_f32 {vr(t+2)}, {vr(x+4)}, {vr(x+5)}")
        A(f"v_add_f32 {vr(t+3)}, {vr(x+6)}, {vr(x+7)}")
        A(f"v_add_f32 {vr(t)}, {vr(t)}, {vr(t+1)}")
        A(f"v_add_f32 {vr(t+2)}, {vr(t+2)}, {vr(t+3)}")
        A(f"v_add_f32 {vr(t)}, {vr(t)}, {vr(t+2)}")
        allreduce("v_add_f32", [t], [t+1])
        A(f"v_mul_f32 {vr(t)}, {hex(f2u(1/512))}, {vr(t)}")
        for i in range(8):
            A(f"v_sub_f32 {vr(t+4+i)}, {vr(x+i)}, {vr(t)}")
        A(f"v_mul_f32 {vr(t+1)}, {vr(t+4)}, {vr(t+4)}")
        A(f"v_mul_f32 {vr(t+2)}, {vr(t+5)}, {vr(t+5)}")
        for i in range(2, 8, 2):
            A(f"v_fmac_f32 {vr(t+1)}, {vr(t+4+i)}, {vr(t+4+i)}")
            A(f"v_fmac_f32 {vr(t+2)}, {vr(t+5+i)}, {vr(t+5+i)}")
        A(f"v_add_f32 {vr(t+1)}, {vr(t+1)}, {vr(t+2)}")
        allreduce("v_add_f32", [t+1], [t+2])
        A(f"v_mul_f32 {vr(t+1)}, {hex(f2u(1/512))}, {vr(t+1)}")
        rne2(t, t+1, t+2)
        A(f"v_add_f32 {vr(t+1)}, {hex(f2u(1e-5))}, {vr(t+1)}")
        rne1(t+1, t+1)
        A(f"v_sqrt_f32 {vr(t+1)}, {vr(t+1)}")
        A.nop(1)
        rne1(t+1, t+1)
        A(f"v_rcp_f32 {vr(t+2)}, {vr(t+1)}")
        for i in range(8):
            A(f"v_sub_f32 {vr(t+4+i)}, {vr(x+i)}, {vr(t)}")
        for i in range(0, 8, 2):
            rne2(t+4+i, t+5+i, t+3)
        for i in range(8):
            A(f"v_mul_f32 {vr(out+i)}, {vr(t+4+i)}, {vr(t+2)}")
        for i in range(8):
            A(f"v_fma_f32 {vr(t+4+i)}, -{vr(out+i)}, {vr(t+1)}, {vr(t+4+i)}")
        for i in range(8):
            A(f"v_fmac_f32 {vr(out+i)}, {vr(t+4+i)}, {vr(t+2)}")
    def lds_inc(flag, t):
        A(f"v_mov_b32 {vr(t)}, {flag}")
        A(f"v_mov_b32 {vr(t+1)}, 1")
        A("s_waitcnt lgkmcnt(0)")
        A("s_mov_b64 exec, 1")
        A(f"ds_add_u32 {vr(t)}, {vr(t+1)}")
        A("s_mov_b64 exec, -1")
    def lds_wait(flag, target, t, sleep=1):
        lp, dn = A.newlabel("Lw"), A.newlabel("Lwd")
        A(f"v_mov_b32 {vr(t)}, {flag}")
        A(f"s_mov_b32 {sr(S_SPIN)}, {SPIN_LIMIT*4}")
        A.label(lp)
        A(f"ds_read_b32 {vr(t+1)}, {vr(t)}")
        A("s_waitcnt lgkmcnt(0)")
        A(f"v_readfirstlane_b32 {sr(S_TMP+9)}, {vr(t+1)}")
        A.nop(1)
        A(f"s_cmp_ge_u32 {sr(S_TMP+9)}, {target}")
        A(f"s_cbranch_scc1 {dn}")
        if sleep: A(f"s_sleep {sleep}")
        A(f"s_sub_u32 {sr(S_SPIN)}, {sr(S_SPIN)}, 1")
        A(f"s_cbranch_scc0 {lp}")
        A.label(dn)
    def poll_pipe(nsets, nld, issue_fn, check_fn, done_fn):
        lp, fin = A.newlabel("Lpp"), A.newlabel("Lppf")
        dn = [A.newlabel("Lppd") for _ in range(nsets)]
        A(f"s_mov_b32 {sr(S_SPIN)}, {SPIN_LIMIT}")
        for k in range(nsets): issue_fn(k)
        A.label(lp)
        for k in range(nsets):
            A(f"s_waitcnt vmcnt({nld*(nsets-1)})")
            check_fn(k)
            A(f"s_cbranch_vccz {dn[k]}")
            issue_fn(k)
        A(f"s_sub_u32 {sr(S_SPIN)}, {sr(S_SPIN)}, 1")
        A(f"s_cbranch_scc0 {lp}")
        A("s_waitcnt vmcnt(0)")
        for k in range(nsets):
            A.label(dn[k])
            done_fn(k)
            if k + 1 < nsets: A(f"s_branch {fin}")
        A.label(fin)
    def ln_row(op_x, VX, XF, LT, row):
        A.wait_vm(op_x)
        unpack(XF, VX, 4)
        layernorm(XF, XF, LT)
        for i in range(4):
            A(f"v_cvt_pk_bf16_f32 {vr(LT+i)}, {vr(XF+2*i)}, {vr(XF+2*i+1)}")
        A(f"s_lshl_b32 {sr(S_TMP+2)}, {sr(S_WAVE)}, 11")
        A(f"s_add_u32 {sr(S_TMP+2)}, {sr(S_TMP+2)}, {L_XN + 1024*row}")
        A(f"v_lshl_add_u32 {vr(LT+4)}, v0, 4, {sr(S_TMP+2)}")
        A(f"ds_write_b128 {vr(LT+4)}, {vr(LT,4)}")

    A(f"v_lshlrev_b32 {vr(V_L16)}, 4, v0")
    A(f"s_lshl_b32 {sr(S_TMP+2)}, {sr(S_WAVE)}, 11")
    A(f"s_cmp_ge_u32 {sr(S_WAVE)}, 4")
    A("s_cbranch_scc1 L_stream")

    cur[0] = "a"
    A("s_setprio 3")
    S_CB, S_HC, S_N2 = S_B, S_HKV, S_RT + 1
    W2 = o.get("worole") in (2, 3)
    N1 = o.get("nonce1")
    LZ = o.get("worole") == 3
    assert not (LZ and N1)
    W2N = W2 and not N1 and not LZ
    if N1: S_N2 = S_NONCE
    if W2:
        assert not (o["stpre"] or o["dyn"] or o.get("r1early"))
        S_CB, S_HC = S_HKV, S_B
    elif o.get("worole"):
        assert o["remap"] not in (1, 4)
        S_CB = 62
        A(f"s_and_b32 {sr(S_CB)}, {sr(S_B)}, 4")
        A(f"s_add_u32 {sr(S_CB)}, {sr(S_CB)}, {sr(S_S)}")
        A(f"s_and_b32 {sr(S_S)}, {sr(S_B)}, 3")
    T = 208
    V_X = T
    V_SEN = T + 4
    for r in range(4):
        A(f"v_mov_b32 {vr(V_SEN+r)}, -1")
    A(f"v_lshrrev_b32 {vr(T+8)}, 1, v0")
    A(f"v_and_b32 {vr(T+9)}, 1, v0")
    A(f"v_lshlrev_b32 {vr(T+9)}, 4, {vr(T+9)}")
    A(f"v_lshl_add_u32 {vr(T+10)}, {vr(T+8)}, 13, {vr(T+9)}")
    A(f"s_lshl_b32 {sr(S_TMP+3)}, {sr(S_WAVE)}, 20")
    A(f"s_lshl_b32 {sr(S_TMP+4)}, {sr(S_HKV)}, 10")
    A(f"s_add_u32 {sr(S_TMP+3)}, {sr(S_TMP+3)}, {sr(S_TMP+4)}")
    def iq_shl(dst, sh):
        if o["remap"] in (1, 4):
            A(f"s_lshl_b32 {sr(dst)}, {sr(S_S)}, 3")
            A(f"s_or_b32 {sr(dst)}, {sr(dst)}, {sr(S_B)}")
            A(f"s_lshl_b32 {sr(dst)}, {sr(dst)}, {sh}")
        else:
            A(f"s_lshl_b32 {sr(dst)}, {sr(S_IDX)}, {sh}")
    iq_shl(S_TMP+4, 5)
    A(f"s_add_u32 {sr(S_TMP+3)}, {sr(S_TMP+3)}, {sr(S_TMP+4)}")
    A(f"s_lshl_b32 {sr(S_RING)}, {sr(S_WAVE)}, 12")
    A(f"s_add_u32 {sr(S_RING)}, {sr(S_RING)}, {L_STG}")
    A(f"s_mov_b32 m0, {sr(S_RING)}")
    A("s_waitcnt lgkmcnt(0)")
    srd(SX, 0, 8192)
    op_x = A.vmem(f"buffer_load_dwordx4 {vr(V_X,4)}, {vr(V_L16)}, {sr(SX,4)}, {sr(S_TMP+2)} offen")
    op_x2 = A.vmem(f"buffer_load_dwordx4 {vr(T+24,4)}, {vr(V_L16)}, {sr(SX,4)}, {sr(S_TMP+2)} offen offset:1024")
    srd(SWQ, 3, 4 << 20)
    WNT = " nt" if o["wnt"] else ""
    for u in range(4):
        if u:
            A(f"s_add_u32 {sr(S_TMP+4)}, {sr(S_RING)}, {u*1024}")
            A(f"s_mov_b32 m0, {sr(S_TMP+4)}")
            A(f"s_add_u32 {sr(S_TMP+3)}, {sr(S_TMP+3)}, {32*8192}")
        if 'q' in o['skip']: continue
        op_wq = A.vmem(f"buffer_load_dwordx4 {vr(T+10)}, {sr(SWQ,4)}, {sr(S_TMP+3)} offen{WNT} lds")
    srd(SDBG, 11, 256)
    srd(SWS, 12, WS_SIZE)
    V_NC = T + 12
    A(f"s_cmp_eq_u32 {sr(S_WAVE)}, 0")
    A("s_cbranch_scc0 L_w1")
    A(f"s_or_b32 {sr(S_RT)}, {sr(S_RT)}, 1")
    A(f"v_mov_b32 {vr(V_NC)}, {sr(S_RT)}")
    A(f"v_mov_b32 {vr(V_NC+1)}, 0")
    A(f"s_lshl_b32 {sr(S_TMP+2)}, {sr(S_HKV)}, 5")
    A(f"v_mov_b32 {vr(T+11)}, {sr(S_TMP+2)}")
    if W2N:
        A(f"s_lshl_b32 {sr(S_TMP+2)}, {sr(S_HC)}, 5")
        A(f"v_writelane_b32 {vr(T+11)}, {sr(S_TMP+2)}, 1")
    if N1:
        A(f"v_lshlrev_b32 {vr(T+18)}, 5, v0")
        A("s_cmp_eq_u32 s2, 0")
        A("s_cbranch_scc0 L_nn0")
        A("s_mov_b64 exec, 0xff")
        A(f"buffer_atomic_cmpswap {vr(V_NC,2)}, {vr(T+18)}, {sr(SDBG,4)}, 0 offen")
        A("s_branch L_nn1")
        A.label("L_nn0")
        A("s_mov_b64 exec, 1")
        A(f"buffer_load_dword {vr(T+19)}, {vr(T+11)}, {sr(SX,4)}, 0 offen")
        A.label("L_nn1")
        A("s_mov_b64 exec, 1")
        A(f"buffer_load_dword {vr(V_NC+1)}, {vr(T+11)}, {sr(SDBG,4)}, 0 offen sc1")
    else:
        A(f"s_mov_b64 exec, {3 if W2N else 1}")
        A(f"buffer_atomic_cmpswap {vr(V_NC,2)}, {vr(T+11)}, {sr(SDBG,4)}, 0 offen sc0")
        A(f"buffer_load_dword {vr(T+18)}, {vr(T+11)}, {sr(SX,4)}, 0 offen")
    A("s_mov_b64 exec, 0xffff")
    A(f"v_lshlrev_b32 {vr(T+14)}, 2, v0")
    A(f"v_add_u32 {vr(T+14)}, {L_FLAG}, {vr(T+14)}")
    A(f"v_mov_b32 {vr(T+15)}, 0")
    A(f"ds_write_b32 {vr(T+14)}, {vr(T+15)}")
    A("s_mov_b64 exec, -1")
    A("s_waitcnt lgkmcnt(0)")
    A("s_branch L_wdone")
    A.label("L_w1")
    A(f"s_cmp_eq_u32 {sr(S_WAVE)}, 1")
    A("s_cbranch_scc0 L_w2")
    A(f"s_lshl_b32 {sr(S_TMP+2)}, {sr(S_HKV)}, 5")
    A(f"s_add_u32 {sr(S_TMP+2)}, {sr(S_TMP+2)}, {sr(S_IDX)}")
    A(f"s_lshl_b32 {sr(S_TMP+2)}, {sr(S_TMP+2)}, 10")
    A(f"s_add_u32 {sr(S_TMP+2)}, {sr(S_TMP+2)}, {WS_R1}")
    A("s_mov_b32 exec_hi, 0")
    A(f"buffer_store_dwordx4 {vr(V_SEN,4)}, {vr(V_L16)}, {sr(SWS,4)}, {sr(S_TMP+2)} offen sc1")
    A("s_mov_b64 exec, -1")
    A("s_mov_b32 exec_lo, 0")
    A(f"buffer_store_dwordx4 {vr(V_SEN,4)}, {vr(V_L16)}, {sr(SWS,4)}, {sr(S_TMP+2)} offen sc1")
    A("s_mov_b64 exec, -1")
    A("s_branch L_wdone")
    A.label("L_w2")
    A(f"s_cmp_eq_u32 {sr(S_WAVE)}, 2")
    A("s_cbranch_scc0 L_w3")
    A(f"v_lshlrev_b32 {vr(T+11)}, 16, {vr(V_G)}")
    A(f"v_lshl_add_u32 {vr(T+11)}, {vr(V_J)}, 4, {vr(T+11)}")
    A(f"s_lshl_b32 {sr(S_TMP+2)}, {sr(S_HC)}, 13")
    A(f"s_lshl_b32 {sr(S_TMP+4)}, {sr(S_S)}, 11")
    A(f"s_add_u32 {sr(S_TMP+2)}, {sr(S_TMP+2)}, {sr(S_TMP+4)}")
    A(f"s_lshl_b32 {sr(S_TMP+4)}, {sr(S_CB)}, 8")
    A(f"s_add_u32 {sr(S_TMP+2)}, {sr(S_TMP+2)}, {sr(S_TMP+4)}")
    A(f"s_add_u32 {sr(S_TMP+2)}, {sr(S_TMP+2)}, {WS_R2}")
    A(f"s_add_u32 {sr(S_TMP+4)}, {sr(S_TMP+2)}, {4*65536}")
    A(f"buffer_store_dwordx4 {vr(V_SEN,4)}, {vr(T+11)}, {sr(SWS,4)}, {sr(S_TMP+2)} offen sc1")
    A(f"buffer_store_dwordx4 {vr(V_SEN,4)}, {vr(T+11)}, {sr(SWS,4)}, {sr(S_TMP+4)} offen sc1")
    A("s_branch L_wdone")
    A.label("L_w3")
    A(f"s_lshl_b32 {sr(S_TMP+2)}, {sr(S_HKV)}, 5")
    A(f"s_add_u32 {sr(S_TMP+2)}, {sr(S_TMP+2)}, {sr(S_IDX)}")
    A(f"s_lshl_b32 {sr(S_TMP+4)}, {sr(S_TMP+2)}, 7")
    A(f"s_add_u32 {sr(S_TMP+4)}, {sr(S_TMP+4)}, {WS_CNT}")
    A(f"s_lshl_b32 {sr(S_TMP+2)}, {sr(S_TMP+2)}, {6 if W2 else 5}")
    A(f"s_add_u32 {sr(S_TMP+2)}, {sr(S_TMP+2)}, {WS_ST}")
    if o["dyn"]:
        A(f"v_mov_b32 {vr(T+11)}, 0")
        A("s_mov_b64 exec, 3")
        A(f"buffer_store_dwordx4 {vr(V_SEN,4)}, {vr(V_L16)}, {sr(SWS,4)}, {sr(S_TMP+2)} offen sc1")
        A("s_mov_b64 exec, 1")
        A(f"buffer_atomic_swap {vr(T+11)}, off, {sr(SWS,4)}, {sr(S_TMP+4)} sc0")
    else:
        A("s_mov_b64 exec, 1")
        A(f"buffer_store_dwordx4 {vr(V_SEN,4)}, {vr(V_L16)}, {sr(SWS,4)}, {sr(S_TMP+2)} offen sc1")
        A("s_mov_b64 exec, 2")
        A(f"buffer_store_dwordx4 {vr(V_SEN,4)}, {vr(V_L16)}, {sr(SWS,4)}, {sr(S_TMP+2)} offen sc1")
    A("s_mov_b64 exec, -1")
    A.label("L_wdone")
    A.vm += 2
    A("s_barrier")
    stamp("start")
    if 'A' in o['skip']:
        lds_inc(F_Q2, T+20)
        lds_inc(F_FAC, T+20)
        A("s_barrier")
        A("s_branch L_fin")
    srd(SWO, 4, 4 << 20)
    srd(SW1, 6, 3584)
    srd(SB1, 7, 3584)
    srd(SW2, 8, 3584)
    srd(SOUT, 10, 8192)
    A(f"s_load_dword {sr(S_B2)}, {sr(S_P+18,2)}, 0")
    XF = 176; LT = 184
    ln_row(op_x, V_X, XF, LT, 0)
    ln_row(op_x2, T+24, XF, LT, 1)
    lds_inc(F_XN, LT+5)
    stamp("ln_done")
    if N1 == 2:
        A(f"s_lshl_b32 {sr(S_TMP+4)}, {sr(S_HKV)}, 5")
        A("s_mov_b64 exec, 1")
        A(f"buffer_load_dword {vr(V_NC+1)}, off, {sr(SDBG,4)}, {sr(S_TMP+4)} sc1")
        A("s_mov_b64 exec, -1")
    V_TRA = 2
    A(f"v_lshlrev_b32 {vr(V_TRA)}, 8, {vr(V_G)}")
    A(f"v_lshl_add_u32 {vr(V_TRA)}, {vr(V_J)}, 3, {vr(V_TRA)}")
    A(f"v_add_u32 {vr(V_TRA)}, {sr(S_RING)}, {vr(V_TRA)}")
    A(f"v_and_b32 {vr(LT)}, 7, {vr(V_J)}")
    A(f"v_lshlrev_b32 {vr(LT)}, 10, {vr(LT)}")
    A(f"v_lshl_add_u32 {vr(LT)}, {vr(V_G)}, 4, {vr(LT)}")
    A(f"s_lshl_b32 {sr(S_TMP+2)}, {sr(S_WAVE)}, 8")
    A(f"s_add_u32 {sr(S_TMP+2)}, {sr(S_TMP+2)}, {L_XN}")
    A(f"v_add_u32 {vr(LT)}, {sr(S_TMP+2)}, {vr(LT)}")
    A(f"v_lshrrev_b32 {vr(T+16)}, 3, v0")
    A(f"v_and_b32 {vr(T+16)}, 1, {vr(T+16)}")
    A(f"v_lshlrev_b32 {vr(T+17)}, 13, {vr(V_G)}")
    A(f"v_lshl_add_u32 {vr(T+17)}, {vr(T+16)}, 12, {vr(T+17)}")
    A(f"v_and_b32 {vr(T+16)}, 7, v0")
    A(f"v_lshl_add_u32 {vr(T+17)}, {vr(T+16)}, 4, {vr(T+17)}")
    A(f"s_waitcnt vmcnt({3 if N1 == 2 else 2})")
    stamp("wq_landed")
    V_WQ = 144
    for u in range(4):
        for h in range(2):
            A(f"ds_read_b64_tr_b16 {vr(V_WQ+4*u+2*h,2)}, {vr(V_TRA)} offset:{u*1024+h*128}")
    lds_wait(F_XN, 4, LT+8, sleep=0)
    V_XA_ = 16
    for u in range(4):
        A(f"ds_read_b128 {vr(V_XA_+4*u,4)}, {vr(LT)} offset:{64*u}")
    V_QD = LT + 12
    A(f"s_lshl_b32 {sr(S_TMP+2)}, {sr(S_WAVE)}, 9")
    A(f"s_add_u32 {sr(S_TMP+2)}, {sr(S_TMP+2)}, {L_QRED}")
    A(f"v_add_u32 {vr(LT+3)}, {sr(S_TMP+2)}, {vr(V_L16)}")
    A("s_waitcnt lgkmcnt(0)")
    for u in range(4):
        c = "0" if u == 0 else vr(V_QD, 4)
        A(f"v_mfma_f32_16x16x32_bf16 {vr(V_QD,4)}, {vr(V_XA_+4*u,4)}, {vr(V_WQ+4*u,4)}, {c}")
    A(f"s_lshl_b32 {sr(S_TMP+3)}, {sr(S_HC)}, 9")
    A(f"s_lshl_b32 {sr(S_TMP+4)}, {sr(S_S)}, 7")
    A(f"s_add_u32 {sr(S_TMP+3)}, {sr(S_TMP+3)}, {sr(S_TMP+4)}")
    A(f"s_add_u32 {sr(S_TMP+3)}, {sr(S_TMP+3)}, {sr(S_WAVE)}")
    A(f"s_lshl_b32 {sr(S_TMP+3)}, {sr(S_TMP+3)}, 10")
    A(f"s_lshl_b32 {sr(S_TMP+4)}, {sr(S_CB)}, 7")
    A(f"s_add_u32 {sr(S_TMP+3)}, {sr(S_TMP+3)}, {sr(S_TMP+4)}")
    A(f"s_mov_b32 m0, {sr(S_RING)}")
    A.nop(4)
    A("s_mov_b32 exec_hi, 0")
    A(f"ds_write_b128 {vr(LT+3)}, {vr(V_QD,4)}")
    A("s_mov_b64 exec, -1")
    stamp("mfma")
    A("s_waitcnt vmcnt(0)")
    A(f"s_cmp_eq_u32 {sr(S_WAVE)}, 0")
    A("s_cbranch_scc0 L_nonce_done")
    if N1:
        A(f"s_mov_b32 {sr(S_SPIN)}, {SPIN_LIMIT}")
        A(f"s_lshl_b32 {sr(S_TMP+4)}, {sr(S_HKV)}, 5")
        A.label("L_nnl")
        A(f"v_readfirstlane_b32 {sr(S_TMP+2)}, {vr(V_NC+1)}")
        A.nop(1)
        A(f"s_cmp_lg_u32 {sr(S_TMP+2)}, 0")
        A("s_cbranch_scc1 L_nnd")
        A("s_mov_b64 exec, 1")
        A(f"buffer_load_dword {vr(V_NC+1)}, off, {sr(SDBG,4)}, {sr(S_TMP+4)} sc1")
        A("s_mov_b64 exec, -1")
        A("s_waitcnt vmcnt(0)")
        A(f"s_sub_u32 {sr(S_SPIN)}, {sr(S_SPIN)}, 1")
        A("s_cbranch_scc0 L_nnl")
        A.label("L_nnd")
    else:
        A(f"v_readfirstlane_b32 {sr(S_TMP+2)}, {vr(V_NC)}")
        A.nop(1)
        A(f"s_cmp_eq_u32 {sr(S_TMP+2)}, 0")
        A(f"s_cselect_b32 {sr(S_TMP+2)}, {sr(S_RT)}, {sr(S_TMP+2)}")
    A(f"v_mov_b32 {vr(LT+6)}, {sr(S_TMP+2)}")
    A(f"v_mov_b32 {vr(LT+7)}, {F_NONCE}")
    A(f"ds_write_b32 {vr(LT+7)}, {vr(LT+6)}")
    if W2N:
        A(f"v_readlane_b32 {sr(S_TMP+2)}, {vr(V_NC)}, 1")
        A.nop(1)
        A(f"s_cmp_eq_u32 {sr(S_TMP+2)}, 0")
        A(f"s_cselect_b32 {sr(S_TMP+2)}, {sr(S_RT)}, {sr(S_TMP+2)}")
        A(f"v_mov_b32 {vr(LT+10)}, {sr(S_TMP+2)}")
        A(f"ds_write_b32 {vr(LT+7)}, {vr(LT+10)} offset:{F_N2-F_NONCE}")
    A.label("L_nonce_done")
    lds_inc(F_Q1, LT+8)
    stamp("qpart")
    A(f"s_lshr_b32 {sr(S_TMP+2)}, {sr(S_WAVE)}, 1")
    A(f"s_lshl_b32 {sr(S_TMP+2)}, {sr(S_TMP+2)}, 8")
    A(f"s_and_b32 {sr(S_TMP+4)}, {sr(S_WAVE)}, 1")
    A(f"s_lshl_b32 {sr(S_TMP+4)}, {sr(S_TMP+4)}, 3")
    A(f"s_add_u32 {sr(S_TMP+2)}, {sr(S_TMP+2)}, {sr(S_TMP+4)}")
    A(f"s_add_u32 {sr(S_TMP+2)}, {sr(S_TMP+2)}, {L_QRED}")
    A(f"v_and_b32 {vr(LT)}, 1, {vr(V_G)}")
    A(f"v_lshlrev_b32 {vr(LT)}, 10, {vr(LT)}")
    A(f"v_lshl_add_u32 {vr(LT)}, {vr(V_J)}, 4, {vr(LT)}")
    A(f"v_lshrrev_b32 {vr(LT+1)}, 1, {vr(V_G)}")
    A(f"v_lshl_add_u32 {vr(LT)}, {vr(LT+1)}, 2, {vr(LT)}")
    A(f"v_add_u32 {vr(LT)}, {sr(S_TMP+2)}, {vr(LT)}")
    A(f"v_lshlrev_b32 {vr(LT+3)}, 14, {vr(LT+1)}")
    A(f"v_lshl_add_u32 {vr(LT+3)}, {vr(V_J)}, 2, {vr(LT+3)}")
    A(f"s_lshl_b32 {sr(S_TMP+5)}, {sr(S_WAVE)}, 15")
    A(f"s_lshl_b32 {sr(S_TMP+4)}, {sr(S_HKV)}, 11")
    A(f"s_add_u32 {sr(S_TMP+5)}, {sr(S_TMP+5)}, {sr(S_TMP+4)}")
    iq_shl(S_TMP+4, 6)
    A(f"s_add_u32 {sr(S_TMP+5)}, {sr(S_TMP+5)}, {sr(S_TMP+4)}")
    A(f"v_mov_b32 {vr(LT+7)}, {F_NONCE}")
    lds_wait(F_Q1, 4, LT+8, sleep=0)
    A(f"ds_read_b32 {vr(LT+1)}, {vr(LT)}")
    A(f"ds_read_b32 {vr(LT+2)}, {vr(LT)} offset:512")
    A(f"ds_read_b32 {vr(LT+5)}, {vr(LT+7)}")
    if W2N: A(f"ds_read_b32 {vr(LT+6)}, {vr(LT+7)} offset:{F_N2-F_NONCE}")
    A("s_waitcnt lgkmcnt(0)")
    A(f"v_add_f32 {vr(LT+1)}, {vr(LT+1)}, {vr(LT+2)}")
    xreduce("v_add_f32", [LT+1], [LT+2], steps=("v_permlane16_swap_b32",))
    A.nop(2)
    A(f"v_mov_b32_dpp {vr(LT+2)}, {vr(LT+1)} quad_perm:[1,0,3,2] {DPPM}")
    A(f"v_readfirstlane_b32 {sr(S_NONCE)}, {vr(LT+5)}")
    if W2N: A(f"v_readfirstlane_b32 {sr(S_N2)}, {vr(LT+6)}")
    A(f"v_cvt_pk_bf16_f32 {vr(LT+4)}, {vr(LT+1)}, {vr(LT+2)}")
    A("s_mov_b32 exec_lo, 0x5555")
    A("s_mov_b32 exec_hi, 0x5555")
    A.vmem(f"buffer_store_dwordx2 {vr(LT+4,2)}, {vr(LT+3)}, {sr(SWS,4)}, {sr(S_TMP+5)} offen sc1")
    A("s_mov_b64 exec, -1")
    stamp("q_published")
    V_L8 = 3
    A(f"v_lshlrev_b32 {vr(V_L8)}, 3, v0")
    GW1, GB1, GW2 = 16, 44, 72
    RAW1, RAWB = 86, 100
    G_A, G_B, G_P, G_ACC, G_T, G_K0 = 86, 118, 150, 166, 174, 182
    V_WO = 184
    K0 = -2.0 * math.sqrt(2.0 / math.pi) * LOG2E
    K1 = K0 * 0.044715
    S_ONE_LO, S_ONE_HI = S_C0 + 1, S_C0 + 2
    A(f"s_mov_b32 {sr(S_ONE_LO)}, 0x00003f80")
    A(f"s_mov_b32 {sr(S_ONE_HI)}, 0x3f800000")
    A(f"s_mov_b32 {sr(S_C0)}, {hex(f2u(LOG2E))}")
    A(f"s_lshl_b32 {sr(S_B2)}, {sr(S_B2)}, 16")
    A(f"s_cmp_eq_u32 {sr(S_WAVE)}, 0")
    A("s_cbranch_scc0 L_noqpoll")
    A(f"s_lshl_b32 {sr(S_TMP+6)}, {sr(S_B)}, 14")
    A(f"s_lshl_b32 {sr(S_TMP+4)}, {sr(S_HKV)}, 11")
    A(f"s_add_u32 {sr(S_TMP+6)}, {sr(S_TMP+6)}, {sr(S_TMP+4)}")
    QG = G_A
    A(f"v_add_u32 {vr(LT+6)}, {L_Q}, {vr(V_L8)}")
    def q_iss(k):
        A(f"buffer_load_dwordx4 {vr(QG+8*k,4)}, {vr(V_L16)}, {sr(SWS,4)}, {sr(S_TMP+6)} offen sc1")
        A(f"buffer_load_dwordx4 {vr(QG+8*k+4,4)}, {vr(V_L16)}, {sr(SWS,4)}, {sr(S_TMP+6)} offen offset:1024 sc1")
    def q_chk(k):
        for i in range(4):
            A(f"v_xor_b32 {vr(LT+i)}, {sr(S_NONCE)}, {vr(QG+8*k+2*i+1)}")
        A(f"v_or3_b32 {vr(LT)}, {vr(LT)}, {vr(LT+1)}, {vr(LT+2)}")
        A(f"v_or_b32 {vr(LT)}, {vr(LT)}, {vr(LT+3)}")
        A(f"v_cmp_ne_u32 vcc, 0, {vr(LT)}")
    def q_done(k):
        A(f"v_mov_b32 {vr(QG+8*k+1)}, {vr(QG+8*k+2)}")
        A(f"v_mov_b32 {vr(QG+8*k+5)}, {vr(QG+8*k+6)}")
        A(f"ds_write_b64 {vr(LT+6)}, {vr(QG+8*k,2)}")
        A(f"ds_write_b64 {vr(LT+6)}, {vr(QG+8*k+4,2)} offset:512")
    A("s_waitcnt vmcnt(0)")
    if o.get("qdelay"): A(f"s_sleep {o['qdelay']}")
    if o.get("qmask"):
        A(f"s_mov_b32 {sr(S_SPIN)}, {SPIN_LIMIT}")
        A("s_mov_b64 vcc, -1")
        A.label("L_qml")
        A("s_mov_b64 exec, vcc")
        q_iss(0)
        A("s_mov_b64 exec, -1")
        A("s_waitcnt vmcnt(0)")
        q_chk(0)
        A("s_cbranch_vccz L_qmd")
        A(f"s_sleep {o['qmask']}")
        A(f"s_sub_u32 {sr(S_SPIN)}, {sr(S_SPIN)}, 1")
        A("s_cbranch_scc0 L_qml")
        A.label("L_qmd")
        q_done(0)
    else:
        poll_pipe(o.get("qsets", 3), 2, q_iss, q_chk, q_done)
    lds_inc(F_Q2, LT+8)
    stamp("q_ok")
    A("s_waitcnt vmcnt(0)")
    A.label("L_noqpoll")
    S_WOS = 5
    A(f"s_mov_b32 {sr(S_WOS)}, {sr(S_TMP+3)}")
    V_XF = 4
    V_CP = 8
    S_RB = 8
    A(f"v_and_b32 {vr(V_CP)}, 31, v0")
    A(f"v_lshlrev_b32 {vr(V_CP)}, 3, {vr(V_CP)}")
    A(f"v_lshrrev_b32 {vr(LT+6)}, 5, v0")
    A(f"v_lshl_add_u32 {vr(V_CP)}, {vr(LT+6)}, 2, {vr(V_CP)}")
    A(f"s_cmp_lt_u32 s2, 8")
    A("s_cbranch_scc0 L_noxf")
    A(f"s_lshl_b32 {sr(S_TMP+2)}, s2, 10")
    A(f"s_lshl_b32 {sr(S_TMP+4)}, {sr(S_WAVE)}, 8")
    A(f"s_add_u32 {sr(S_TMP+2)}, {sr(S_TMP+2)}, {sr(S_TMP+4)}")
    A(f"buffer_load_dword {vr(V_XF)}, {vr(V_CP)}, {sr(SX,4)}, {sr(S_TMP+2)} offen")
    A.label("L_noxf")
    A(f"s_cmp_eq_u32 {sr(S_WAVE)}, 0")
    A("s_cbranch_scc1 L_gskip")
    def gw_load():
        for (srd_, dst) in ((SW1, RAW1), (SB1, RAWB), (SW2, GW2)):
            if 'g' in o['skip']: continue
            for c in range(3):
                A.vmem(f"buffer_load_dwordx4 {vr(dst+4*c,4)}, {vr(V_L16)}, {sr(srd_,4)}, 0 offen offset:{1024*c}")
            A.vmem(f"buffer_load_dwordx2 {vr(dst+12,2)}, {vr(V_L8)}, {sr(srd_,4)}, 0 offen offset:3072")
    def gw_unpack():
        A("s_waitcnt vmcnt(0)")
        unpack(GW1, RAW1, 14)
        unpack(GB1, RAWB, 14)
        A(f"v_mov_b32 {vr(G_K0)}, {hex(f2u(K0))}")
    def wo_dma():
        for u in range(4):
            if u:
                A(f"s_add_u32 {sr(S_TMP+4)}, {sr(S_RING)}, {u*1024}")
                A(f"s_mov_b32 m0, {sr(S_TMP+4)}")
                A(f"s_add_u32 {sr(S_WOS)}, {sr(S_WOS)}, {32*1024}")
            if 'o' in o['skip']: continue
            A.vmem(f"buffer_load_dwordx4 {vr(T+17)}, {sr(SWO,4)}, {sr(S_WOS)} offen{WNT} lds")
    gw_load()
    A(f"s_lshl_b32 {sr(S_TMP+2)}, {sr(S_WAVE)}, 11")
    A(f"s_sub_u32 {sr(S_TMP+2)}, {sr(S_TMP+2)}, 2048")
    A(f"s_add_u32 {sr(S_TMP+8)}, {sr(S_TMP+2)}, s2")
    for k in range(8):
        A(f"s_add_u32 {sr(S_TMP+3)}, {sr(S_TMP+8)}, {256*k}")
        A(f"s_cmp_ge_u32 {sr(S_TMP+3)}, {GT_HALF}")
        A(f"s_cselect_b32 {sr(S_TMP+4)}, {0x8000 - GT_HALF}, 0")
        A(f"s_add_u32 {sr(S_TMP+3)}, {sr(S_TMP+3)}, {sr(S_TMP+4)}")
        A(f"s_add_u32 {sr(S_TMP+3)}, {sr(S_TMP+3)}, {E0*128}")
        A(f"s_lshl_b32 {sr(S_TMP+3)}, {sr(S_TMP+3)}, 16")
        A(f"v_mov_b32 {vr(G_T+k)}, {sr(S_TMP+3)}")
        A(f"v_mov_b32 {vr(G_ACC+k)}, 0")
    A(f"s_setprio {o['pg']}")
    gw_unpack()
    def g_chunk(c, nt):
        n = nt * 4
        E = [(k, f) for k in range(nt) for f in range(4)]
        for i, (k, f) in enumerate(E):
            A(f"v_mul_f32 {vr(G_A+i)}, {vr(G_T+k)}, {vr(GW1+4*c+f)}")
        for i in range(0, n, 2):
            A(f"v_cvt_pk_bf16_f32 {vr(G_P+i//2)}, {vr(G_A+i)}, {vr(G_A+i+1)}")
        for i, (k, f) in enumerate(E):
            one = S_ONE_LO if i % 2 == 0 else S_ONE_HI
            A(f"v_dot2_f32_bf16 {vr(G_A+i)}, {vr(G_P+i//2)}, {sr(one)}, {vr(GB1+4*c+f)}")
        A.nop(max(0, 3 - (n - 2)))
        for i in range(0, n, 2):
            if n == 4 and i == 2: A.nop(2)
            A(f"v_cvt_pk_bf16_f32 {vr(G_P+i//2)}, {vr(G_A+i)}, {vr(G_A+i+1)}")
        for i in range(0, n, 2):
            A(f"v_lshlrev_b32 {vr(G_A+i)}, 16, {vr(G_P+i//2)}")
            A(f"v_and_b32 {vr(G_A+i+1)}, 0xffff0000, {vr(G_P+i//2)}")
        for i in range(n):
            A(f"v_mul_f32 {vr(G_B+i)}, {vr(G_A+i)}, {vr(G_A+i)}")
        for i in range(n):
            A(f"v_fmamk_f32 {vr(G_B+i)}, {vr(G_B+i)}, {hex(f2u(K1))}, {vr(G_K0)}")
        for i in range(n):
            A(f"v_mul_f32 {vr(G_B+i)}, {vr(G_A+i)}, {vr(G_B+i)}")
        for i in range(n):
            A(f"v_exp_f32 {vr(G_B+i)}, {vr(G_B+i)}")
        for i in range(n):
            A(f"v_add_f32 {vr(G_B+i)}, 1.0, {vr(G_B+i)}")
        for i in range(n):
            A(f"v_rcp_f32 {vr(G_B+i)}, {vr(G_B+i)}")
        for i in range(n):
            A(f"v_mul_f32 {vr(G_B+i)}, {vr(G_A+i)}, {vr(G_B+i)}")
        for i in range(0, n, 2):
            A(f"v_cvt_pk_bf16_f32 {vr(G_P+i//2)}, {vr(G_B+i)}, {vr(G_B+i+1)}")
        for i in range(0, n, 2):
            k, f = E[i]
            A(f"v_dot2_f32_bf16 {vr(G_ACC+k)}, {vr(G_P+i//2)}, {vr(GW2+2*c+f//2)}, {vr(G_ACC+k)}")
        A.nop(3)
    def g_finish(nt):
        allreduce("v_add_f32", [G_ACC+k for k in range(nt)], [G_P+k for k in range(nt)])
        for k in range(nt):
            rne1(G_ACC+k, G_ACC+k)
        for k in range(nt):
            A(f"v_add_f32 {vr(G_ACC+k)}, {sr(S_B2)}, {vr(G_ACC+k)}")
        for k in range(nt):
            rne1(G_ACC+k, G_ACC+k)
    for c in range(7 if 'G' not in o['skip'] else 0):
        g_chunk(c, 8)
    g_finish(8)
    A("s_setprio 3")
    A(f"v_mov_b32 {vr(G_P)}, {vr(G_ACC)}")
    for k in range(1, 8):
        A(f"v_cmp_eq_u32 vcc, {k}, v0")
        A.nop(2)
        A(f"v_cndmask_b32 {vr(G_P)}, {vr(G_P)}, {vr(G_ACC+k)}, vcc")
    A(f"v_mov_b32 {vr(G_P+1)}, {sr(S_NONCE)}")
    A(f"v_lshlrev_b32 {vr(G_P+2)}, 11, v0")
    A(f"s_lshl_b32 {sr(S_TMP+2)}, {sr(S_TMP+8)}, 3")
    A(f"s_add_u32 {sr(S_TMP+2)}, {sr(S_TMP+2)}, {WS_GT}")
    A(f"s_mov_b64 exec, 0xff")
    A(f"buffer_store_dwordx2 {vr(G_P,2)}, {vr(G_P+2)}, {sr(SWS,4)}, {sr(S_TMP+2)} offen sc1")
    A("s_mov_b64 exec, -1")
    A.label("L_gskip")
    wo_dma()
    stamp("g_done")
    A("s_waitcnt vmcnt(0)")
    lds_inc(F_WOL, T)
    A(f"v_lshrrev_b32 {vr(T+2)}, 2, {vr(V_J)}")
    A(f"v_lshlrev_b32 {vr(V_TRA)}, 10, {vr(V_G)}")
    A(f"v_lshl_add_u32 {vr(V_TRA)}, {vr(T+2)}, 7, {vr(V_TRA)}")
    A(f"v_and_b32 {vr(T+2)}, 3, {vr(V_J)}")
    A(f"v_lshl_add_u32 {vr(V_TRA)}, {vr(T+2)}, 3, {vr(V_TRA)}")
    A(f"s_lshl_b32 {sr(S_TMP+2)}, {sr(S_WAVE)}, 5")
    A(f"s_add_u32 {sr(S_TMP+2)}, {sr(S_TMP+2)}, {L_STG}")
    A(f"v_add_u32 {vr(V_TRA)}, {sr(S_TMP+2)}, {vr(V_TRA)}")
    V_R1A = 5
    A(f"v_lshlrev_b32 {vr(V_R1A)}, 11, {vr(V_J)}")
    A(f"v_and_b32 {vr(T)}, 1, {vr(V_J)}")
    A(f"v_lshlrev_b32 {vr(T)}, 10, {vr(T)}")
    A(f"v_sub_u32 {vr(V_R1A)}, {vr(V_R1A)}, {vr(T)}")
    A(f"v_lshl_add_u32 {vr(V_R1A)}, {vr(V_G)}, 4, {vr(V_R1A)}")
    S_R1C, S_R1P, S_R2P = 72, 73, 74
    A(f"s_lshl_b32 {sr(S_R1C)}, {sr(S_HKV)}, 15")
    A(f"s_add_u32 {sr(S_R1C)}, {sr(S_R1C)}, {WS_R1}")
    A(f"s_lshl_b32 {sr(S_R1P)}, {sr(S_IDX)}, 10")
    A(f"s_add_u32 {sr(S_R1P)}, {sr(S_R1P)}, {sr(S_R1C)}")
    A(f"s_lshl_b32 {sr(S_TMP+3)}, {sr(S_WAVE)}, 8")
    A(f"s_add_u32 {sr(S_R1P)}, {sr(S_R1P)}, {sr(S_TMP+3)}")
    if W2:
        A(f"s_lshl_b32 {sr(S_R1C)}, {sr(S_HC)}, 15")
        A(f"s_add_u32 {sr(S_R1C)}, {sr(S_R1C)}, {WS_R1}")
    A(f"s_lshl_b32 {sr(S_TMP+3)}, {sr(S_S)}, 8")
    A(f"s_add_u32 {sr(S_R1C)}, {sr(S_R1C)}, {sr(S_TMP+3)}")
    A(f"s_lshl_b32 {sr(S_R2P)}, {sr(S_HC)}, 13")
    A(f"s_lshl_b32 {sr(S_TMP+3)}, {sr(S_S)}, 11")
    A(f"s_add_u32 {sr(S_R2P)}, {sr(S_R2P)}, {sr(S_TMP+3)}")
    A(f"s_lshl_b32 {sr(S_TMP+3)}, {sr(S_CB)}, 8")
    A(f"s_add_u32 {sr(S_R2P)}, {sr(S_R2P)}, {sr(S_TMP+3)}")
    A(f"s_lshl_b32 {sr(S_TMP+3)}, {sr(S_WAVE)}, 6")
    A(f"s_add_u32 {sr(S_R2P)}, {sr(S_R2P)}, {sr(S_TMP+3)}")
    A(f"s_add_u32 {sr(S_R2P)}, {sr(S_R2P)}, {WS_R2}")
    A(f"s_add_u32 {sr(S_R2P+1)}, {sr(S_R2P)}, 65536")
    S_R1Q = 71
    S_LST, S_LFC, S_STC = 6, 7, 76
    A(f"s_mov_b32 {sr(S_LST)}, {L_STAT}")
    A(f"s_mov_b32 {sr(S_LFC)}, {L_FAC}")
    A(f"s_lshl_b32 {sr(S_STC)}, {sr(S_HC)}, {11 if W2 else 10}")
    A(f"s_lshl_b32 {sr(S_TMP+3)}, {sr(S_S)}, {4 if W2 else 3}")
    A(f"s_add_u32 {sr(S_STC)}, {sr(S_STC)}, {sr(S_TMP+3)}")
    A(f"s_add_u32 {sr(S_STC)}, {sr(S_STC)}, {WS_ST}")
    V_AXW = 9
    A(f"s_lshr_b32 {sr(S_TMP+3)}, {sr(S_WAVE)}, 1")
    A(f"s_lshl_b32 {sr(S_TMP+3)}, {sr(S_TMP+3)}, 11")
    A(f"s_add_u32 {sr(S_R1Q)}, {sr(S_R1C)}, {sr(S_TMP+3)}")
    A(f"s_and_b32 {sr(S_TMP+3)}, {sr(S_WAVE)}, 1")
    A(f"s_lshl_b32 {sr(S_TMP+3)}, {sr(S_TMP+3)}, 7")
    A(f"s_add_u32 {sr(S_R1Q)}, {sr(S_R1Q)}, {sr(S_TMP+3)}")
    A(f"s_lshl_b32 {sr(S_TMP+3)}, {sr(S_WAVE)}, 11")
    A(f"v_add_u32 {vr(V_AXW)}, {sr(S_TMP+3)}, {vr(V_L16)}")
    V_PR = 6
    V_L4 = 7
    V_R2A = 10
    A(f"s_lshl_b32 {sr(S_TMP+3)}, {sr(S_WAVE)}, 9")
    A(f"v_add_u32 {vr(V_PR)}, {sr(S_TMP+3)}, {vr(V_L8)}")
    A(f"v_add_u32 {vr(V_PR+5)}, {2*RING}, {vr(V_PR)}")
    A(f"v_lshlrev_b32 {vr(V_L4)}, 2, v0")
    A(f"v_lshlrev_b32 {vr(V_R2A)}, 17, {vr(V_G)}")
    A(f"v_lshl_add_u32 {vr(V_R2A)}, {vr(V_J)}, 2, {vr(V_R2A)}")
    def wo_frag():
        lds_wait(F_WOL, 4, T, sleep=2)
        for u in range(4):
            for h in range(2):
                A(f"ds_read_b64_tr_b16 {vr(V_WO+4*u+2*h,2)}, {vr(V_TRA)} offset:{u*4096+h*512}")
        lds_inc(F_WO, T)
    A(f"s_cmp_eq_u32 {sr(S_WAVE)}, 0")
    A("s_cbranch_scc0 L_notstat")
    def st_weights():
        A(f"v_mov_b32 {vr(T)}, {vr(T+2)}")
        for dpp in ("quad_perm:[1,0,3,2]", "quad_perm:[2,3,0,1]"):
            A.nop(2)
            A(f"v_max_f32_dpp {vr(T)}, {vr(T)}, {vr(T)} {dpp} {DPPM}")
        A(f"v_sub_f32 {vr(T+2)}, {vr(T+2)}, {vr(T)}")
        A(f"v_mul_f32 {vr(T+2)}, {sr(S_C0)}, {vr(T+2)}")
        A(f"v_exp_f32 {vr(T+2)}, {vr(T+2)}")
        A.nop(1)
        A(f"v_mul_f32 {vr(T+2)}, {vr(T+2)}, {vr(T+3)}")
        A(f"v_mov_b32 {vr(T+1)}, {vr(T+2)}")
        for dpp in ("quad_perm:[1,0,3,2]", "quad_perm:[2,3,0,1]"):
            A.nop(2)
            A(f"v_add_f32_dpp {vr(T+1)}, {vr(T+1)}, {vr(T+1)} {dpp} {DPPM}")
        A(f"v_rcp_f32 {vr(T+1)}, {vr(T+1)}")
        A.nop(1)
        A(f"v_mul_f32 {vr(T+2)}, {vr(T+2)}, {vr(T+1)}")
    A(f"s_lshl_b32 {sr(S_TMP+2)}, {sr(S_HKV)}, 5")
    A(f"s_add_u32 {sr(S_TMP+2)}, {sr(S_TMP+2)}, {sr(S_IDX)}")
    A(f"s_lshl_b32 {sr(S_TMP+2)}, {sr(S_TMP+2)}, {6 if W2 else 5}")
    A(f"s_add_u32 {sr(S_TMP+2)}, {sr(S_TMP+2)}, {WS_ST}")
    A(f"v_lshl_add_u32 {vr(T+11)}, {vr(V_J)}, 3, {sr(S_LST)}")
    A(f"v_lshl_add_u32 {vr(T+20)}, {vr(V_J)}, 2, {sr(S_LFC)}")
    lds_wait(F_ST, 4, T)
    A(f"ds_read_b64 {vr(T+12,2)}, {vr(T+11)}")
    A("s_waitcnt lgkmcnt(0)")
    A(f"v_mov_b32 {vr(T)}, {vr(T+12)}")
    for d in (8, 4):
        A.nop(2)
        A(f"v_max_f32_dpp {vr(T)}, {vr(T)}, {vr(T)} row_ror:{d} {DPPM}")
    A(f"v_sub_f32 {vr(T+2)}, {vr(T+12)}, {vr(T)}")
    A(f"v_mul_f32 {vr(T+2)}, {sr(S_C0)}, {vr(T+2)}")
    A(f"v_exp_f32 {vr(T+2)}, {vr(T+2)}")
    A.nop(1)
    A(f"v_mul_f32 {vr(T+1)}, {vr(T+2)}, {vr(T+13)}")
    for d in (8, 4):
        A.nop(2)
        A(f"v_add_f32_dpp {vr(T+1)}, {vr(T+1)}, {vr(T+1)} row_ror:{d} {DPPM}")
    A(f"v_rcp_f32 {vr(T+3)}, {vr(T+1)}")
    A.nop(1)
    A(f"v_mul_f32 {vr(T+2)}, {vr(T+2)}, {vr(T+3)}")
    A(f"ds_write_b32 {vr(T+20)}, {vr(T+2)}")
    lds_inc(F_FAC, T+8)
    A(f"v_min_u32 {vr(T)}, -2, {vr(T)}")
    A(f"v_min_u32 {vr(T+1)}, -2, {vr(T+1)}")
    if W2:
        A(f"v_mov_b32 {vr(T+2)}, {sr(S_NONCE)}")
        A(f"v_mov_b32 {vr(T+3)}, {sr(S_NONCE)}")
    A("s_mov_b64 exec, 15")
    if W2: A(f"buffer_store_dwordx4 {vr(T,4)}, {vr(V_L16)}, {sr(SWS,4)}, {sr(S_TMP+2)} offen sc1")
    else: A(f"buffer_store_dwordx2 {vr(T,2)}, {vr(V_L8)}, {sr(SWS,4)}, {sr(S_TMP+2)} offen sc1")
    A("s_mov_b64 exec, -1")
    stamp("fac_done")
    A("s_waitcnt vmcnt(0)")
    wo_frag()
    if o["stpre"]:
        A(f"v_and_b32 {vr(T+4)}, 31, v0")
        A(f"v_lshlrev_b32 {vr(T+5)}, 5, {vr(T+4)}")
        A(f"v_lshlrev_b32 {vr(T+6)}, 2, {vr(T+4)}")
        A(f"v_add_u32 {vr(T+6)}, {L_W}, {vr(T+6)}")
        A(f"v_mov_b32 {vr(T+7)}, {F_SD}")
        A(f"s_mov_b32 {sr(S_SPIN)}, {SPIN_LIMIT}")
        A.label("L_pst")
        A(f"buffer_load_dwordx2 {vr(T+2,2)}, {vr(T+5)}, {sr(SWS,4)}, {sr(S_STC)} offen sc1")
        A("s_waitcnt vmcnt(0)")
        A(f"v_max_u32 {vr(T)}, {vr(T+2)}, {vr(T+3)}")
        A(f"v_cmp_eq_u32 vcc, -1, {vr(T)}")
        A("s_cbranch_vccz L_pstok")
        A(f"s_sleep {o.get('pstsleep', 6)}")
        A(f"ds_read_b32 {vr(T+1)}, {vr(T+7)}")
        A("s_waitcnt lgkmcnt(0)")
        A(f"v_readfirstlane_b32 {sr(S_TMP+9)}, {vr(T+1)}")
        A.nop(1)
        A(f"s_cmp_lg_u32 {sr(S_TMP+9)}, 0")
        A("s_cbranch_scc1 L_pre_s4")
        A(f"s_sub_u32 {sr(S_SPIN)}, {sr(S_SPIN)}, 1")
        A("s_cbranch_scc0 L_pst")
        A("s_branch L_pre_s4")
        A.label("L_pstok")
        st_weights()
        A(f"ds_write_b32 {vr(T+6)}, {vr(T+2)}")
        lds_inc(F_W, T+8)
        A("s_waitcnt lgkmcnt(0)")
        stamp("w_pre")
    A("s_branch L_pre_s4")
    A.label("L_notstat")
    wo_frag()
    A(f"s_cmp_lt_u32 s2, 8")
    A("s_cbranch_scc0 L_pre_s4")
    GG = 86
    V_NA = T + 12
    A(f"s_sub_u32 {sr(S_TMP+2)}, {sr(S_WAVE)}, 1")
    A(f"s_lshl_b32 {sr(S_TMP+3)}, {sr(S_TMP+2)}, 14")
    A(f"s_add_u32 {sr(S_TMP+3)}, {sr(S_TMP+3)}, {WS_GT}")
    for k in range(1, 4):
        A(f"s_add_u32 {sr(S_TMP+3+k)}, {sr(S_TMP+3)}, {4096*k}")
    A(f"v_and_b32 {vr(T+10)}, 3, v0")
    A(f"v_lshlrev_b32 {vr(T+10)}, 6, {vr(T+10)}")
    A(f"s_lshl_b32 {sr(S_TMP+2)}, {sr(S_TMP+2)}, 13")
    A(f"s_add_u32 {sr(S_TMP+2)}, {sr(S_TMP+2)}, {L_GT}")
    A(f"v_add_u32 {vr(T+11)}, {sr(S_TMP+2)}, {vr(V_L8)}")
    lds_wait(F_ST, 1, T+4, sleep=4)
    A(f"s_mov_b32 {sr(S_SPIN)}, {SPIN_LIMIT}")
    A.label("L_gchk")
    for i in range(16):
        A(f"buffer_load_dwordx4 {vr(GG+4*i,4)}, {vr(V_L16)}, {sr(SWS,4)}, {sr(S_TMP+3+(i>>2))} offen offset:{(i&3)*1024} sc1")
    A(f"buffer_load_dword {vr(V_NA)}, {vr(T+10)}, {sr(SDBG,4)}, 0 offen sc1")
    A(f"buffer_load_dword {vr(V_NA+1)}, {vr(T+10)}, {sr(SDBG,4)}, 0 offen offset:32 sc1")
    A("s_waitcnt vmcnt(0)")
    A(f"v_and_b32 {vr(T)}, {vr(V_NA)}, {vr(V_NA+1)}")
    A(f"v_and_b32 {vr(T)}, 1, {vr(T)}")
    A(f"v_xor_b32 {vr(T)}, 1, {vr(T)}")
    for i in range(16):
        A(f"v_xor_b32 {vr(T+1)}, {vr(V_NA)}, {vr(GG+4*i+1)}")
        A(f"v_xor_b32 {vr(T+2)}, {vr(V_NA+1)}, {vr(GG+4*i+3)}")
        A(f"v_or3_b32 {vr(T)}, {vr(T)}, {vr(T+1)}, {vr(T+2)}")
    A(f"v_cmp_ne_u32 vcc, 0, {vr(T)}")
    A("s_cbranch_vccz L_gok")
    A("s_sleep 32")
    A(f"s_sub_u32 {sr(S_SPIN)}, {sr(S_SPIN)}, 1")
    A("s_cbranch_scc0 L_gchk")
    A.label("L_gok")
    lds_wait(F_WO, 4, T+4)
    for i in range(16):
        A(f"v_mov_b32 {vr(GG+4*i+1)}, {vr(GG+4*i+2)}")
    for i in range(16):
        A(f"ds_write_b64 {vr(T+11)}, {vr(GG+4*i,2)} offset:{i*512}")
    stamp("gt_done")
    A.label("L_pre_s4")
    A("s_waitcnt lgkmcnt(0)")
    A("s_barrier")
    stamp("s4")
    if 'T' in o['skip']: A("s_branch L_fin")
    RB = 86
    for w in range(4):
        ad = V_PR if w < 2 else V_PR + 5
        A(f"ds_read_b64 {vr(RB+2*w,2)}, {vr(ad)} offset:{(w&1)*RING}")
    S_M = 80
    WT = 160
    if o["stpre"]:
        A(f"v_mov_b32 {vr(T+1)}, {F_W}")
        A(f"v_lshl_add_u32 {vr(T+7)}, {vr(V_G)}, 5, {vr(T+1)}")
        A(f"ds_read_b32 {vr(T+1)}, {vr(T+1)}")
        A(f"ds_read_b128 {vr(WT,4)}, {vr(T+7)} offset:{L_W-F_W}")
        A(f"ds_read_b128 {vr(WT+4,4)}, {vr(T+7)} offset:{L_W-F_W+16}")
    for k in range(4):
        A(f"s_mov_b64 {sr(S_M+2*k,2)}, -1")
    A(f"s_mov_b32 {sr(S_SPIN)}, {SPIN_LIMIT}")
    A(f"s_waitcnt lgkmcnt({5 if o['stpre'] else 2})")
    A(f"v_pk_add_f32 {vr(RB,2)}, {vr(RB,2)}, {vr(RB+2,2)}")
    A(f"s_waitcnt lgkmcnt({3 if o['stpre'] else 0})")
    A(f"v_pk_add_f32 {vr(RB+4,2)}, {vr(RB+4,2)}, {vr(RB+6,2)}")
    A(f"v_pk_add_f32 {vr(RB,2)}, {vr(RB,2)}, {vr(RB+4,2)}")
    A(f"v_cvt_pk_bf16_f32 {vr(RB+2)}, {vr(RB)}, {vr(RB+1)}")
    A(f"v_min_u32 {vr(RB+2)}, -2, {vr(RB+2)}")
    A(f"buffer_store_dword {vr(RB+2)}, {vr(V_L4)}, {sr(SWS,4)}, {sr(S_R1P)} offen sc1")
    stamp("r1_pub")
    if o["stpre"]:
        A("s_waitcnt lgkmcnt(0)")
        A(f"v_readfirstlane_b32 {sr(S_TMP+9)}, {vr(T+1)}")
        A.nop(1)
        A(f"s_cmp_lg_u32 {sr(S_TMP+9)}, 0")
        A("s_cbranch_scc1 L_wdone2")
    L_WX = 20480
    A(f"v_and_b32 {vr(T+4)}, 31, v0")
    A(f"v_lshlrev_b32 {vr(T+5)}, {6 if W2 else 5}, {vr(T+4)}")
    A(f"s_lshl_b32 {sr(S_TMP+3)}, {sr(S_WAVE)}, 7")
    A(f"s_add_u32 {sr(S_TMP+3)}, {sr(S_TMP+3)}, {L_WX}")
    A(f"v_lshl_add_u32 {vr(T+6)}, {vr(T+4)}, 2, {sr(S_TMP+3)}")
    A(f"v_lshl_add_u32 {vr(T+7)}, {vr(V_G)}, 5, {sr(S_TMP+3)}")
    R1E = o.get("r1early") and o["r1split"] and not o["stpre"] and not o["stag1"]
    if R1E:
        A(f"buffer_load_dwordx2 {vr(T+2,2)}, {vr(T+5)}, {sr(SWS,4)}, {sr(S_STC)} offen sc1")
        if o["r1early"] > 1: A(f"s_nop {o['r1early']-1}")
        A(f"buffer_load_dwordx4 {vr(128,4)}, {vr(V_R1A)}, {sr(SWS,4)}, {sr(S_R1Q)} offen sc1")
        A(f"buffer_load_dwordx4 {vr(132,4)}, {vr(V_R1A)}, {sr(SWS,4)}, {sr(S_R1Q)} offen offset:64 sc1")
        A("s_waitcnt vmcnt(2)")
        A("s_branch L_stchk")
    if LZ: A(f"s_lshl_b32 {sr(S_TMP+5)}, {sr(S_HC)}, 5")
    A.label("L_stloop")
    if LZ:
        A(f"buffer_load_dword {vr(T+1)}, off, {sr(SDBG,4)}, {sr(S_TMP+5)} sc1")
        A(f"buffer_load_dwordx3 {vr(T+2,3)}, {vr(T+5)}, {sr(SWS,4)}, {sr(S_STC)} offen sc1")
        A("s_waitcnt vmcnt(0)")
        A(f"v_xor_b32 {vr(T)}, {vr(T+1)}, {vr(T+4)}")
        A(f"v_not_b32 {vr(T+8)}, {vr(T+1)}")
        A(f"v_and_or_b32 {vr(T)}, {vr(T+8)}, 1, {vr(T)}")
        A(f"v_cmp_ne_u32 vcc, 0, {vr(T)}")
    elif W2:
        A(f"buffer_load_dwordx3 {vr(T+2,3)}, {vr(T+5)}, {sr(SWS,4)}, {sr(S_STC)} offen sc1")
        A("s_waitcnt vmcnt(0)")
        A(f"v_cmp_ne_u32 vcc, {sr(S_N2)}, {vr(T+4)}")
    else:
        A(f"buffer_load_dwordx2 {vr(T+2,2)}, {vr(T+5)}, {sr(SWS,4)}, {sr(S_STC)} offen sc1")
        A("s_waitcnt vmcnt(0)")
        A.label("L_stchk")
        A(f"v_max_u32 {vr(T)}, {vr(T+2)}, {vr(T+3)}")
        A(f"v_cmp_eq_u32 vcc, -1, {vr(T)}")
    A("s_cbranch_vccz L_stok")
    A(f"s_sleep {o.get('stsleep', 2)}")
    A(f"s_sub_u32 {sr(S_SPIN)}, {sr(S_SPIN)}, 1")
    A("s_cbranch_scc0 L_stloop")
    A.label("L_stok")
    st_weights()
    A(f"ds_write_b32 {vr(T+6)}, {vr(T+2)}")
    A("s_waitcnt lgkmcnt(0)")
    A(f"ds_read_b128 {vr(WT,4)}, {vr(T+7)}")
    A(f"ds_read_b128 {vr(WT+4,4)}, {vr(T+7)} offset:16")
    A.label("L_wdone2")
    A(f"s_mov_b32 {sr(S_SPIN)}, {SPIN_LIMIT}")
    RA = 96
    if o["r1split"]:
        L_AX = 8192
        RQ = RA + 32
        if o["stag1"]:
            A(f"buffer_load_dwordx4 {vr(RQ,4)}, {vr(V_R1A)}, {sr(SWS,4)}, {sr(S_R1Q)} offen sc1")
            A(f"buffer_load_dwordx4 {vr(RQ+4,4)}, {vr(V_R1A)}, {sr(SWS,4)}, {sr(S_R1Q)} offen offset:64 sc1")
            A(f"s_sleep {o['stag1']}")
        assert RQ == 128
        if R1E: A("s_branch L_r1chk")
        A.label("L_r1loop")
        A(f"s_mov_b64 exec, {sr(S_M,2)}")
        A(f"buffer_load_dwordx4 {vr(RQ,4)}, {vr(V_R1A)}, {sr(SWS,4)}, {sr(S_R1Q)} offen sc1")
        A(f"buffer_load_dwordx4 {vr(RQ+4,4)}, {vr(V_R1A)}, {sr(SWS,4)}, {sr(S_R1Q)} offen offset:64 sc1")
        A("s_mov_b64 exec, -1")
        A.label("L_r1chk")
        A(f"s_waitcnt vmcnt({2 if o['stag1'] else 0})")
        A(f"v_max3_u32 {vr(T)}, {vr(RQ)}, {vr(RQ+1)}, {vr(RQ+2)}")
        A(f"v_max3_u32 {vr(T+1)}, {vr(RQ+3)}, {vr(RQ+4)}, {vr(RQ+5)}")
        A(f"v_max3_u32 {vr(T)}, {vr(T)}, {vr(RQ+6)}, {vr(RQ+7)}")
        A(f"v_max_u32 {vr(T)}, {vr(T)}, {vr(T+1)}")
        A(f"v_cmp_eq_u32 {sr(S_M,2)}, -1, {vr(T)}")
        A(f"s_cmp_eq_u64 {sr(S_M,2)}, 0")
        A("s_cbranch_scc1 L_r1ok")
        if o["r1sleep"]: A(f"s_sleep {o['r1sleep']}")
        if o.get("r1ad"):
            thr, sl = o["r1ad"]
            A(f"s_bcnt1_i32_b64 {sr(S_TMP+2)}, {sr(S_M,2)}")
            A(f"s_cmp_le_u32 {sr(S_TMP+2)}, {thr}")
            A("s_cbranch_scc1 L_r1ns")
            A(f"s_sleep {sl}")
            A.label("L_r1ns")
        A(f"s_sub_u32 {sr(S_SPIN)}, {sr(S_SPIN)}, 1")
        A("s_cbranch_scc0 L_r1loop")
        A.label("L_r1ok")
        A(f"ds_write_b128 {vr(V_AXW)}, {vr(RQ,4)} offset:{L_AX}")
        A(f"ds_write_b128 {vr(V_AXW)}, {vr(RQ+4,4)} offset:{L_AX+1024}")
        A("s_waitcnt lgkmcnt(0)")
        A("s_barrier")
        for i in range(8):
            A(f"ds_read_b128 {vr(RA+4*i,4)}, {vr(V_L16)} offset:{L_AX+1024*i}")
        A("s_waitcnt lgkmcnt(0)")
    else:
        def r1_batch():
            for k in range(4):
                tau, up = k >> 1, k & 1
                A(f"s_mov_b64 exec, {sr(S_M+2*k,2)}")
                for uu in range(2):
                    u = 2 * up + uu
                    A(f"buffer_load_dwordx4 {vr(RA+8*k+4*uu,4)}, {vr(V_R1A)}, {sr(SWS,4)}, {sr(S_R1C)} offen offset:{tau*2048+u*64} sc1")
            A("s_mov_b64 exec, -1")
        for _ in range(o["nb1"] - 1): r1_batch()
        A.label("L_r1loop")
        r1_batch()
        A(f"s_waitcnt vmcnt({8*(o['nb1']-1)})")
        for k in range(4):
            A(f"v_max3_u32 {vr(T+k)}, {vr(RA+8*k)}, {vr(RA+8*k+1)}, {vr(RA+8*k+2)}")
        for k in range(4):
            A(f"v_max3_u32 {vr(T+k)}, {vr(T+k)}, {vr(RA+8*k+3)}, {vr(RA+8*k+4)}")
        for k in range(4):
            A(f"v_max3_u32 {vr(T+k)}, {vr(T+k)}, {vr(RA+8*k+5)}, {vr(RA+8*k+6)}")
        for k in range(4):
            A(f"v_max_u32 {vr(T+k)}, {vr(T+k)}, {vr(RA+8*k+7)}")
        for k in range(4):
            A(f"v_cmp_eq_u32 {sr(S_M+2*k,2)}, -1, {vr(T+k)}")
        A(f"s_or_b64 {sr(S_TMP,2)}, {sr(S_M,2)}, {sr(S_M+2,2)}")
        A(f"s_or_b64 {sr(S_TMP+2,2)}, {sr(S_M+4,2)}, {sr(S_M+6,2)}")
        A(f"s_or_b64 {sr(S_TMP,2)}, {sr(S_TMP,2)}, {sr(S_TMP+2,2)}")
        A("s_cbranch_scc0 L_r1ok")
        if o["r1sleep"]:
            A(f"s_bcnt1_i32_b64 {sr(S_TMP+2)}, {sr(S_TMP,2)}")
            A(f"s_cmp_lt_u32 {sr(S_TMP+2)}, 17")
            A("s_cbranch_scc1 L_r1ns")
            A(f"s_sleep {o['r1sleep']}")
            A.label("L_r1ns")
        A(f"s_sub_u32 {sr(S_SPIN)}, {sr(S_SPIN)}, 1")
        A("s_cbranch_scc0 L_r1loop")
        A.label("L_r1ok")
    OD = T + 8
    for u in range(4):
        for tau in range(2):
            k, uu = 2 * tau + (u >> 1), u & 1
            od = OD + 4 * tau
            c = "0" if u == 0 else vr(od, 4)
            A(f"v_mfma_f32_16x16x32_bf16 {vr(od,4)}, {vr(RA+8*k+4*uu,4)}, {vr(V_WO+4*u,4)}, {c}")
    stamp("r1_ok")
    A.nop(8)
    A(f"v_mul_f32 {vr(T+1)}, {vr(WT+0)}, {vr(OD+0)}")
    A(f"v_mul_f32 {vr(T+2)}, {vr(WT+4)}, {vr(OD+2)}")
    A(f"v_fmac_f32 {vr(T+1)}, {vr(WT+1)}, {vr(OD+1)}")
    A(f"v_fmac_f32 {vr(T+2)}, {vr(WT+5)}, {vr(OD+3)}")
    A(f"v_fmac_f32 {vr(T+1)}, {vr(WT+2)}, {vr(OD+4)}")
    A(f"v_fmac_f32 {vr(T+2)}, {vr(WT+6)}, {vr(OD+6)}")
    A(f"v_fmac_f32 {vr(T+1)}, {vr(WT+3)}, {vr(OD+5)}")
    A(f"v_fmac_f32 {vr(T+2)}, {vr(WT+7)}, {vr(OD+7)}")
    A(f"v_min_u32 {vr(T+1)}, -2, {vr(T+1)}")
    A(f"v_min_u32 {vr(T+2)}, -2, {vr(T+2)}")
    A(f"buffer_store_dword {vr(T+1)}, {vr(V_R2A)}, {sr(SWS,4)}, {sr(S_R2P)} offen sc1")
    A(f"buffer_store_dword {vr(T+2)}, {vr(V_R2A)}, {sr(SWS,4)}, {sr(S_R2P+1)} offen sc1")
    stamp("r2_pub")
    if o["stag1"]: A("s_waitcnt vmcnt(2)")
    A(f"s_cmp_lt_u32 s2, 8")
    A("s_cbranch_scc0 L_fin")
    FB = 96
    H = 196
    OWN = 184
    D_ = T + 24
    N1 = T + 32
    LT2 = T
    A(f"s_lshl_b32 {sr(S_TMP+2)}, s2, 16")
    A(f"s_lshl_b32 {sr(S_TMP+6)}, {sr(S_WAVE)}, 9")
    A(f"s_add_u32 {sr(S_TMP+2)}, {sr(S_TMP+2)}, {sr(S_TMP+6)}")
    A(f"s_add_u32 {sr(S_TMP+2)}, {sr(S_TMP+2)}, {WS_R2}")
    A(f"s_add_u32 {sr(S_TMP+6)}, {sr(S_TMP+6)}, {L_H}")
    A(f"v_lshl_add_u32 {vr(OWN+8)}, {vr(V_CP)}, 1, {sr(S_TMP+6)}")
    A(f"v_lshlrev_b32 {vr(OWN+9)}, 5, v0")
    A(f"v_add_u32 {vr(OWN+9)}, {L_H}, {vr(OWN+9)}")
    A(f"v_lshlrev_b32 {vr(OWN+6)}, 16, {vr(V_XF)}")
    A(f"v_and_b32 {vr(OWN+7)}, 0xffff0000, {vr(V_XF)}")
    A(f"v_and_b32 {vr(OWN+10)}, 31, v0")
    A(f"v_lshlrev_b32 {vr(OWN+10)}, 4, {vr(OWN+10)}")
    A(f"v_lshrrev_b32 {vr(OWN+11)}, 5, v0")
    A(f"v_lshl_add_u32 {vr(OWN+10)}, {vr(OWN+11)}, 11, {vr(OWN+10)}")
    A(f"s_mov_b32 {sr(S_SPIN)}, {SPIN_LIMIT}")
    for k in range(4):
        A(f"s_mov_b64 {sr(S_M+2*k,2)}, -1")
    for i in range(16):
        A(f"s_add_u32 {sr(S_RB+i)}, {sr(S_TMP+2)}, {i*4096}")
    if not o["r2nw"]: A("s_waitcnt vmcnt(0)")
    def r2_batch():
        for k in range(4):
            A(f"s_mov_b64 exec, {sr(S_M+2*k,2)}")
            for pp in range(4):
                i = 4 * k + pp
                A(f"buffer_load_dwordx4 {vr(FB+4*i,4)}, {vr(OWN+10)}, {sr(SWS,4)}, {sr(S_RB+i)} offen sc1")
        A("s_mov_b64 exec, -1")
    for _ in range(o["nb2"] - 1):
        r2_batch()
        if o["stag2"]: A(f"s_sleep {o['stag2']}")
    A.label("L_r2loop")
    r2_batch()
    A(f"s_waitcnt vmcnt({16*(o['nb2']-1)})")
    for st in range(8):
        for k in range(4):
            r = FB + 16 * k
            if st == 0:
                A(f"v_max3_u32 {vr(T+k)}, {vr(r)}, {vr(r+1)}, {vr(r+2)}")
            elif st < 7:
                A(f"v_max3_u32 {vr(T+k)}, {vr(T+k)}, {vr(r+1+2*st)}, {vr(r+2+2*st)}")
            else:
                A(f"v_max_u32 {vr(T+k)}, {vr(T+k)}, {vr(r+15)}")
    for k in range(4):
        A(f"v_cmp_eq_u32 {sr(S_M+2*k,2)}, -1, {vr(T+k)}")
    A(f"s_or_b64 {sr(S_TMP,2)}, {sr(S_M,2)}, {sr(S_M+2,2)}")
    A(f"s_or_b64 {sr(S_TMP+4,2)}, {sr(S_M+4,2)}, {sr(S_M+6,2)}")
    A(f"s_or_b64 {sr(S_TMP,2)}, {sr(S_TMP,2)}, {sr(S_TMP+4,2)}")
    A("s_cbranch_scc0 L_r2ok")
    A(f"s_sub_u32 {sr(S_SPIN)}, {sr(S_SPIN)}, 1")
    A("s_cbranch_scc0 L_r2loop")
    A.label("L_r2ok")
    SM = T + 8
    for i in range(4):
        for hh_ in range(2):
            A(f"v_pk_add_f32 {vr(SM+4*i+2*hh_,2)}, {vr(FB+16*i+2*hh_,2)}, {vr(FB+16*i+4+2*hh_,2)}")
    for j in (2, 3):
        for i in range(4):
            for hh_ in range(2):
                A(f"v_pk_add_f32 {vr(SM+4*i+2*hh_,2)}, {vr(SM+4*i+2*hh_,2)}, {vr(FB+16*i+4*j+2*hh_,2)}")
    for hh_ in range(2):
        A(f"v_pk_add_f32 {vr(SM+2*hh_,2)}, {vr(SM+2*hh_,2)}, {vr(SM+4+2*hh_,2)}")
        A(f"v_pk_add_f32 {vr(SM+8+2*hh_,2)}, {vr(SM+8+2*hh_,2)}, {vr(SM+12+2*hh_,2)}")
    for hh_ in range(2):
        A(f"v_pk_add_f32 {vr(SM+2*hh_,2)}, {vr(SM+2*hh_,2)}, {vr(SM+8+2*hh_,2)}")
    A.nop(1)
    A(f"v_permlane32_swap_b32 {vr(SM)}, {vr(SM+2)}")
    A(f"v_permlane32_swap_b32 {vr(SM+1)}, {vr(SM+3)}")
    A.nop(1)
    FB = SM + 4
    A(f"v_pk_add_f32 {vr(FB,2)}, {vr(SM,2)}, {vr(SM+2,2)}")
    rne2(FB, FB+1, T)
    A(f"v_pk_add_f32 {vr(OWN,2)}, {vr(FB,2)}, {vr(OWN+6,2)}")
    rne2(OWN, OWN+1, T)
    A(f"ds_write_b64 {vr(OWN+8)}, {vr(OWN,2)}")
    A("s_waitcnt lgkmcnt(0)")
    A("s_barrier")
    stamp("r2_ok")
    A(f"ds_read_b128 {vr(H,4)}, {vr(OWN+9)}")
    A(f"ds_read_b128 {vr(H+4,4)}, {vr(OWN+9)} offset:16")
    def ln_stats(x, t):
        A(f"v_readfirstlane_b32 {sr(S_TMP+7)}, {vr(x)}")
        A.nop(2)
        A(f"v_mov_b32 {vr(t+2)}, {sr(S_TMP+7)}")
        A(f"v_mov_b32 {vr(t+3)}, {sr(S_TMP+7)}")
        for i in range(0, 8, 2):
            A(f"v_pk_add_f32 {vr(t+4+i,2)}, {vr(x+i,2)}, {vr(t+2,2)} neg_lo:[0,1] neg_hi:[0,1]")
        A(f"v_pk_add_f32 {vr(t,2)}, {vr(t+4,2)}, {vr(t+6,2)}")
        A(f"v_pk_mul_f32 {vr(t+12,2)}, {vr(t+4,2)}, {vr(t+4,2)}")
        A(f"v_pk_add_f32 {vr(t,2)}, {vr(t,2)}, {vr(t+8,2)}")
        A(f"v_pk_fma_f32 {vr(t+12,2)}, {vr(t+6,2)}, {vr(t+6,2)}, {vr(t+12,2)}")
        A(f"v_pk_add_f32 {vr(t,2)}, {vr(t,2)}, {vr(t+10,2)}")
        A(f"v_pk_fma_f32 {vr(t+12,2)}, {vr(t+8,2)}, {vr(t+8,2)}, {vr(t+12,2)}")
        A(f"v_add_f32 {vr(t)}, {vr(t)}, {vr(t+1)}")
        A(f"v_pk_fma_f32 {vr(t+12,2)}, {vr(t+10,2)}, {vr(t+10,2)}, {vr(t+12,2)}")
        A(f"v_add_f32 {vr(t+1)}, {vr(t+12)}, {vr(t+13)}")
        allreduce("v_add_f32", [t, t+1], [t+4, t+5])
        A(f"v_mul_f32 {vr(t)}, {hex(f2u(1/512))}, {vr(t)}")
        A(f"v_mul_f32 {vr(t+1)}, {hex(f2u(1/512))}, {vr(t+1)}")
        A(f"v_fma_f32 {vr(t+1)}, -{vr(t)}, {vr(t)}, {vr(t+1)}")
        A(f"v_add_f32 {vr(t)}, {vr(t)}, {vr(t+2)}")
        A(f"v_max_f32 {vr(t+1)}, 0, {vr(t+1)}")
        rne2(t, t+1, t+4)
        A(f"v_add_f32 {vr(t+1)}, {hex(f2u(1e-5))}, {vr(t+1)}")
        rne1(t+1, t+1)
        A(f"v_sqrt_f32 {vr(t+1)}, {vr(t+1)}")
        A.nop(1)
        rne1(t+1, t+1)
        A(f"v_rcp_f32 {vr(t+2)}, {vr(t+1)}")
        A(f"v_mov_b32 {vr(t+4)}, {vr(t)}")
        A(f"v_mov_b32 {vr(t+5)}, {vr(t)}")
        A(f"v_mov_b32 {vr(t+6)}, {vr(t+1)}")
        A(f"v_mov_b32 {vr(t+7)}, {vr(t+1)}")
        A(f"v_mov_b32 {vr(t+3)}, {vr(t+2)}")
    def ln_apply(pairs, t, pk):
        for (s_, d, n) in pairs:
            A(f"v_pk_add_f32 {vr(d,2)}, {vr(s_,2)}, {vr(t+4,2)} neg_lo:[0,1] neg_hi:[0,1]")
        for i, (s_, d, n) in enumerate(pairs):
            A(f"v_cvt_pk_bf16_f32 {vr(pk+i)}, {vr(d)}, {vr(d+1)}")
        for i, (s_, d, n) in enumerate(pairs):
            A(f"v_lshlrev_b32 {vr(d)}, 16, {vr(pk+i)}")
            A(f"v_and_b32 {vr(d+1)}, 0xffff0000, {vr(pk+i)}")
        for (s_, d, n) in pairs:
            A(f"v_pk_mul_f32 {vr(n,2)}, {vr(d,2)}, {vr(t+2,2)}")
        for (s_, d, n) in pairs:
            A(f"v_pk_fma_f32 {vr(d,2)}, {vr(n,2)}, {vr(t+6,2)}, {vr(d,2)} neg_lo:[1,0,0] neg_hi:[1,0,0]")
        for (s_, d, n) in pairs:
            A(f"v_pk_fma_f32 {vr(n,2)}, {vr(d,2)}, {vr(t+2,2)}, {vr(n,2)}")
        for i, (s_, d, n) in enumerate(pairs):
            A(f"v_cvt_pk_bf16_f32 {vr(pk+i)}, {vr(n)}, {vr(n+1)}")
        for i, (s_, d, n) in enumerate(pairs):
            A(f"v_lshlrev_b32 {vr(n)}, 16, {vr(pk+i)}")
            A(f"v_and_b32 {vr(n+1)}, 0xffff0000, {vr(pk+i)}")
    A("s_waitcnt lgkmcnt(0)")
    ln_stats(H, LT2)
    ln_apply([(H+i, D_+i, N1+i) for i in range(0, 8, 2)] + [(OWN, OWN+4, OWN+2)], LT2, LT2+8)
    ln_stats(N1, LT2)
    ln_apply([(OWN+2, OWN+4, OWN+2)], LT2, LT2+8)
    Y = OWN + 4
    S_MS = 80
    A(f"s_mov_b32 {sr(S_TMP+8)}, {o.get('fbtest', NEXP) * 128}")
    for x in range(2):
        A(f"v_bfe_u32 {vr(LT2+2*x)}, {vr(OWN+2+x)}, 16, 15")
        A(f"v_subrev_u32 {vr(LT2+2*x)}, {E0*128}, {vr(LT2+2*x)}")
        A(f"v_cmp_gt_u32 {sr(S_MS+2*x,2)}, {sr(S_TMP+8)}, {vr(LT2+2*x)}")
        A(f"v_lshrrev_b32 {vr(LT2+2*x+1)}, 31, {vr(OWN+2+x)}")
        A(f"v_mul_u32_u24 {vr(LT2+2*x+1)}, {GT_HALF}, {vr(LT2+2*x+1)}")
        A(f"v_cndmask_b32 {vr(LT2+2*x)}, 0, {vr(LT2+2*x)}, {sr(S_MS+2*x,2)}")
        A(f"v_add_lshl_u32 {vr(LT2+2*x)}, {vr(LT2+2*x)}, {vr(LT2+2*x+1)}, 2")
        A(f"v_add_u32 {vr(LT2+2*x)}, {L_GT}, {vr(LT2+2*x)}")
        A(f"ds_read_b32 {vr(Y+x)}, {vr(LT2+2*x)}")
    A(f"s_and_b64 {sr(S_TMP+4,2)}, {sr(S_MS,2)}, {sr(S_MS+2,2)}")
    A(f"s_lshl_b32 {sr(S_TMP+2)}, s2, 10")
    A(f"s_lshl_b32 {sr(S_TMP+3)}, {sr(S_WAVE)}, 8")
    A(f"s_add_u32 {sr(S_TMP+2)}, {sr(S_TMP+2)}, {sr(S_TMP+3)}")
    A(f"s_cmp_eq_u64 {sr(S_TMP+4,2)}, -1")
    A("s_waitcnt lgkmcnt(0)")
    A("s_cbranch_scc1 L_nofb")
    A("s_waitcnt vmcnt(0)")
    gw_load()
    gw_unpack()
    for x in range(2):
        lp, dn = A.newlabel("Lfb"), A.newlabel("Lfbd")
        A(f"s_not_b64 {sr(S_TMP+4,2)}, {sr(S_MS+2*x,2)}")
        A.label(lp)
        A(f"s_cmp_eq_u64 {sr(S_TMP+4,2)}, 0")
        A(f"s_cbranch_scc1 {dn}")
        A(f"s_ff1_i32_b64 {sr(S_TMP+6)}, {sr(S_TMP+4,2)}")
        A(f"s_bitset0_b64 {sr(S_TMP+4,2)}, {sr(S_TMP+6)}")
        A(f"v_readlane_b32 {sr(S_TMP+7)}, {vr(OWN+2+x)}, {sr(S_TMP+6)}")
        A(f"v_mov_b32 {vr(G_ACC)}, 0")
        A.nop(2)
        A(f"v_mov_b32 {vr(G_T)}, {sr(S_TMP+7)}")
        A(f"v_mov_b32 {vr(G_K0)}, {hex(f2u(K0))}")
        for c in range(7):
            g_chunk(c, 1)
        g_finish(1)
        A(f"s_lshl_b64 exec, 1, {sr(S_TMP+6)}")
        A(f"v_mov_b32 {vr(Y+x)}, {vr(G_ACC)}")
        A("s_mov_b64 exec, -1")
        A(f"s_branch {lp}")
        A.label(dn)
    A.label("L_nofb")
    A(f"v_pk_add_f32 {vr(Y,2)}, {vr(Y,2)}, {vr(OWN,2)}")
    A(f"v_cvt_pk_bf16_f32 {vr(Y)}, {vr(Y)}, {vr(Y+1)}")
    A(f"buffer_store_dword {vr(Y)}, {vr(V_CP)}, {sr(SOUT,4)}, {sr(S_TMP+2)} offen")
    A("s_branch L_fin")

    A.label("L_stream")
    cur[0] = "s"
    A.vm = 0
    A(f"s_setprio {o['pst']}")
    V_KD = 2
    V_KR = 6
    V_VO = 10
    V_M0, V_M1 = 11, 14
    V_MW, V_LS = 15, 236
    V_ACC = 16
    V_XA = 24
    V_XB = 30
    V_Q = 36
    V_S = 52
    V_KF = 92
    V_V = 124
    T = 238
    NVS = 7
    S_SW = 62
    A(f"s_sub_u32 {sr(S_SW)}, {sr(S_WAVE)}, 4")
    A(f"s_lshl_b32 {sr(S_KOFF)}, {sr(S_B)}, 23")
    A(f"s_lshl_b32 {sr(S_TMP+3)}, {sr(S_HKV)}, 20")
    A(f"s_add_u32 {sr(S_KOFF)}, {sr(S_KOFF)}, {sr(S_TMP+3)}")
    A(f"s_lshl_b32 {sr(S_TMP+3)}, {sr(S_SW)}, 12")
    A(f"s_add_u32 {sr(S_KOFF)}, {sr(S_KOFF)}, {sr(S_TMP+3)}")
    DYN, NS, CAP = o["dyn"], o["S"], o["cap"]
    POOL = 64 - 4 * NS
    S_NR, S_OFF, S_DYN, S_CNT, S_CL, S_FD = 28, 32, 36, 37, 38, 76
    V_CLM = V_S + 36
    if DYN:
        assert 4 * CAP >= POOL and 8 < NS <= 13
        A(f"s_add_u32 {sr(S_DYN)}, {sr(S_KOFF)}, {4*NS*16384}")
        A(f"s_mul_i32 {sr(S_TMP+3)}, {sr(S_S)}, {NS*16384}")
        A(f"s_lshl_b32 {sr(S_CNT)}, {sr(S_HKV)}, 3")
        A(f"s_add_u32 {sr(S_CNT)}, {sr(S_CNT)}, {sr(S_B)}")
        A(f"s_lshl_b32 {sr(S_CNT)}, {sr(S_CNT)}, 2")
        A(f"s_add_u32 {sr(S_CNT)}, {sr(S_CNT)}, {sr(S_SW)}")
        A(f"s_lshl_b32 {sr(S_CNT)}, {sr(S_CNT)}, 7")
        A(f"s_add_u32 {sr(S_CNT)}, {sr(S_CNT)}, {WS_CNT}")
    else:
        A(f"s_lshl_b32 {sr(S_TMP+3)}, {sr(S_S)}, {14 if o.get('il') else 18}")
    A(f"s_add_u32 {sr(S_KOFF)}, {sr(S_KOFF)}, {sr(S_TMP+3)}")
    A(f"s_lshl_b32 {sr(S_RING)}, {sr(S_SW)}, 15")
    S_ROT = 39
    if o["rot"] == 1:
        A(f"s_lshl_b32 {sr(S_ROT)}, {sr(S_HKV)}, 1")
        A(f"s_add_u32 {sr(S_ROT)}, {sr(S_ROT)}, {sr(S_IDX)}")
    elif o["rot"] == 2:
        A(f"s_mul_i32 {sr(S_ROT)}, {sr(S_IDX)}, 5")
        A(f"s_lshl_b32 {sr(S_TMP+3)}, {sr(S_HKV)}, 1")
        A(f"s_add_u32 {sr(S_ROT)}, {sr(S_ROT)}, {sr(S_TMP+3)}")
    elif o["rot"] == 3:
        A(f"s_lshl_b32 {sr(S_ROT)}, {sr(S_B)}, 1")
    elif o["rot"] == 4:
        A(f"s_lshl_b32 {sr(S_ROT)}, {sr(S_B)}, 1")
        A(f"s_add_u32 {sr(S_ROT)}, {sr(S_ROT)}, {sr(S_HKV)}")
    TSH = 16 if o.get("il") else 14
    if o["rot"]: A(f"s_lshl_b32 {sr(S_ROT)}, {sr(S_ROT)}, {TSH}")
    A(f"v_xor_b32 {vr(T)}, {vr(V_J)}, {vr(V_G)}")
    A(f"v_lshlrev_b32 {vr(T+1)}, 8, {vr(V_G)}")
    A(f"v_lshlrev_b32 {vr(T+2)}, 8, {vr(V_J)}")
    A(f"v_add_u32 {vr(T+2)}, {sr(S_RING)}, {vr(T+2)}")
    for a in range(4):
        A(f"v_xor_b32 {vr(T+3)}, {4*a}, {vr(T)}")
        A(f"v_lshlrev_b32 {vr(T+3)}, 4, {vr(T+3)}")
        A(f"v_add_u32 {vr(V_KD+a)}, {vr(T+1)}, {vr(T+3)}")
        A(f"v_add_u32 {vr(V_KR+a)}, {vr(T+2)}, {vr(T+3)}")
    A(f"v_lshlrev_b32 {vr(V_VO)}, 10, {vr(V_G)}")
    A(f"v_lshl_add_u32 {vr(V_VO)}, {vr(V_J)}, 4, {vr(V_VO)}")
    A("s_waitcnt lgkmcnt(0)")
    srd(SK, 1, 64 << 20)
    srd(SV, 2, 64 << 20)
    if o["debug"] or DYN: srd(SWS, 12, WS_SIZE)
    if not o["kfirst"]: A("s_barrier")
    stamp("start")
    NV1 = o["nv1"]
    seq = [("K", t) for t in range(8)] + [("V", t) for t in range(NV1)] + [("K", t) for t in range(8, 16)] + [("V", t) for t in range(NV1, 16)]
    if DYN:
        LAG = o.get("lag", 1)
        seq = [("K", t) for t in range(8)] + [("V", t) for t in range(NV1)] + [("K", t) for t in range(8, NS)] + [("V", t) for t in range(NV1, NS - LAG)]
        for j in range(CAP): seq += [("K", NS + j), ("V", NS + j - LAG)]
        if LAG: seq += [("V", NS + CAP - 1)]
    NSEQ = len(seq)
    pos = {k: n for n, k in enumerate(seq)}
    ops = {}
    qk_done, pv_done = set(), set()
    D = o["D"]
    def Dat(n): return D if n < o["nsw"] else o["D2"]
    def land_n(m):
        for n in range(NSEQ):
            if n - Dat(n) >= m: return n
        return NSEQ
    def vslot(t): return V_V + 16 * (t if t < 7 else (t - 7) % 7)
    def sslot(t):
        if DYN and t >= NS: return V_S + 4 * (5, 6, 8)[(t - NS) % 3]
        return V_S + 4 * (t if t < 8 else (t - 8 if t < 8 + NV1 else t - NV1))
    def nr(j): return S_NR + j % 4
    known = [-1]
    def issue(n):
        k, t = seq[n]
        if k == "K" and t >= 8: assert (t - 8) in qk_done, (n, t)
        if k == "V" and t >= 7: assert (t - 7) in pv_done, (n, t)
        dj = t - NS if DYN and t >= NS else -1
        if dj >= 0 and k == "K":
            A.wait_vm(max(ops[("C", dj)], ops[seq[n - Dat(n)]]))
            A(f"v_readfirstlane_b32 {sr(S_CL)}, {vr(V_CLM + dj % 3)}")
            A(f"s_add_u32 {sr(S_TMP+4)}, {sr(S_RING)}, {(t&7)*4096}")
            A(f"s_mov_b32 m0, {sr(S_TMP+4)}")
            A(f"s_cmp_lt_u32 {sr(S_CL)}, {POOL}")
            A(f"s_cselect_b32 {sr(nr(dj))}, {sr(nr(dj-1)) if dj else hex(64 << 20)}, 0")
            A(f"s_min_u32 {sr(S_CL)}, {sr(S_CL)}, {POOL-1}")
            A(f"s_lshl_b32 {sr(S_CL)}, {sr(S_CL)}, 14")
            A(f"s_add_u32 {sr(S_OFF + dj % 4)}, {sr(S_DYN)}, {sr(S_CL)}")
            A(f"s_mov_b32 {sr(SK+2)}, {sr(nr(dj))}")
            known[0] = dj
            so = S_OFF + dj % 4
        else:
            if n >= Dat(n):
                A.wait_vm(ops[seq[n - Dat(n)]])
            if k == "K":
                A(f"s_add_u32 {sr(S_TMP+4)}, {sr(S_RING)}, {(t&7)*4096}")
                A(f"s_mov_b32 m0, {sr(S_TMP+4)}")
            so = S_TMP + 5
            if dj >= 0:
                A(f"s_mov_b32 {sr(SV+2)}, {sr(nr(dj))}")
                so = S_OFF + dj % 4
            elif o["rot"]:
                A(f"s_add_u32 {sr(S_TMP+5)}, {sr(S_ROT)}, {t << TSH}")
                A(f"s_and_b32 {sr(S_TMP+5)}, {sr(S_TMP+5)}, {hex((16 << TSH) - 1)}")
                A(f"s_add_u32 {sr(S_TMP+5)}, {sr(S_TMP+5)}, {sr(S_KOFF)}")
            else:
                A(f"s_add_u32 {sr(S_TMP+5)}, {sr(S_KOFF)}, {t*(65536 if o.get('il') and not DYN else 16384)}")
        if k == "K":
            for a in range(4):
                ops[(k, t)] = A.vmem(f"buffer_load_dwordx4 {vr(V_KD+a)}, {sr(SK,4)}, {sr(so)} offen offset:{a*1024} nt lds")
        else:
            base = vslot(t)
            for u in range(4):
                ops[(k, t)] = A.vmem(f"buffer_load_dwordx4 {vr(base+4*u,4)}, {vr(V_VO)}, {sr(SV,4)}, {sr(so)} offen offset:{u*256} nt")
        if DYN:
            for j in range(CAP):
                nk = pos[("K", NS + j)]
                if nk - Dat(nk) - o.get("cearly", 0) == n:
                    assert n > o["qpos"] and known[0] >= j - 3
                    A(f"v_mov_b32 {vr(V_CLM + j % 3)}, 1")
                    if known[0] >= 0: A(f"s_mov_b32 {sr(SWS+2)}, {sr(nr(known[0]))}")
                    A("s_mov_b64 exec, 1")
                    ops[("C", j)] = A.vmem(f"buffer_atomic_add {vr(V_CLM + j % 3)}, off, {sr(SWS,4)}, {sr(S_CNT)} sc0")
                    A("s_mov_b64 exec, -1")
    SC = hex(f2u(128 ** -0.5))
    def k_read(t):
        A.wait_vm(ops[("K", t)])
        for ks in range(4):
            A(f"ds_read_b128 {vr(V_KF+16*(t&1)+4*ks,4)}, {vr(V_KR+ks)} offset:{(t&7)*4096}")
    def k_mfma(t):
        s_ = sslot(t)
        if 8 <= t < 8 + NV1: assert (t - 8) in pv_done, t
        qk_done.add(t)
        for ks in range(4):
            c = "0" if ks == 0 else vr(s_, 4)
            A(f"v_mfma_f32_16x16x32_bf16 {vr(s_,4)}, {vr(V_KF+16*(t&1)+4*ks,4)}, {vr(V_Q+4*ks,4)}, {c}")
    def s_round(tiles):
        regs = [sslot(t) + r for t in tiles for r in range(4)]
        P = T
        A.nop(4)
        for ph in range(2):
            for i in range(0, len(regs), 2):
                A(f"v_cvt_pk_bf16_f32 {vr(P+i//2)}, {vr(regs[i])}, {vr(regs[i+1])}")
            for i in range(0, len(regs), 2):
                A(f"v_lshlrev_b32 {vr(regs[i])}, 16, {vr(P+i//2)}")
                A(f"v_and_b32 {vr(regs[i+1])}, 0xffff0000, {vr(P+i//2)}")
            if ph == 0:
                for r in regs:
                    A(f"v_mul_f32 {vr(r)}, {SC}, {vr(r)}")
    def qk_burst(tiles):
        k_read(tiles[0])
        for i, t in enumerate(tiles):
            if i + 1 < len(tiles):
                k_read(tiles[i + 1])
                A("s_waitcnt lgkmcnt(4)")
            else:
                A("s_waitcnt lgkmcnt(0)")
            k_mfma(t)
    pend = []
    def qk_one(t):
        k_read(t)
        if pend:
            s_round(list(pend)); pend.clear()
        A("s_waitcnt lgkmcnt(0)")
        k_mfma(t)
        pend.append(t)
    def softmax(tiles, first):
        regs = [sslot(t) + r for t in tiles for r in range(4)]
        P = T
        n = len(regs)
        ch = [regs[i::4] for i in range(4)]
        for i in range(4):
            c = ch[i]
            A(f"v_max3_f32 {vr(P+i)}, {vr(c[0])}, {vr(c[1])}, {vr(c[2])}")
        k = 3
        while k < len(ch[0]):
            for i in range(4):
                c = ch[i]
                if k + 1 < len(c):
                    A(f"v_max3_f32 {vr(P+i)}, {vr(P+i)}, {vr(c[k])}, {vr(c[k+1])}")
                else:
                    A(f"v_max_f32 {vr(P+i)}, {vr(P+i)}, {vr(c[k])}")
            k += 2
        A(f"v_max3_f32 {vr(P+4)}, {vr(P)}, {vr(P+1)}, {vr(P+2)}")
        A(f"v_max_f32 {vr(P+4)}, {vr(P+4)}, {vr(P+3)}")
        xreduce("v_max_f32", [P+4], [P])
        if not first:
            A(f"v_max_f32 {vr(P+4)}, {vr(P+4)}, {vr(V_MW)}")
            A(f"v_sub_f32 {vr(P+5)}, {vr(V_MW)}, {vr(P+4)}")
            A(f"v_mul_f32 {vr(P+5)}, {sr(S_C0)}, {vr(P+5)}")
            A(f"v_exp_f32 {vr(P+5)}, {vr(P+5)}")
        A(f"v_mov_b32 {vr(V_MW)}, {vr(P+4)}")
        A(f"v_mul_f32 {vr(P)}, {hex(f2u(-LOG2E))}, {vr(P+4)}")
        if not first:
            for h in range(4):
                A(f"v_readlane_b32 {sr(S_F+h)}, {vr(P+5)}, {h}")
        A(f"v_mov_b32 {vr(P+6)}, {sr(S_C0)}")
        for r in regs:
            A(f"v_fma_f32 {vr(r)}, {vr(r)}, {vr(P+6)}, {vr(P)}")
        for r in regs:
            A(f"v_exp_f32 {vr(r)}, {vr(r)}")
        for i in range(4):
            A(f"v_add_f32 {vr(P+1+i)}, {vr(ch[i][0])}, {vr(ch[i][1])}")
        for k in range(2, len(ch[0])):
            for i in range(4):
                A(f"v_add_f32 {vr(P+1+i)}, {vr(P+1+i)}, {vr(ch[i][k])}")
        A(f"v_add_f32 {vr(P+1)}, {vr(P+1)}, {vr(P+2)}")
        A(f"v_add_f32 {vr(P+3)}, {vr(P+3)}, {vr(P+4)}")
        A(f"v_add_f32 {vr(P+1)}, {vr(P+1)}, {vr(P+3)}")
        if not DYN: xreduce("v_add_f32", [P+1], [P+2])
        if first:
            A(f"v_mov_b32 {vr(V_LS)}, {vr(P+1)}")
        else:
            A(f"v_fma_f32 {vr(V_LS)}, {vr(V_LS)}, {vr(P+5)}, {vr(P+1)}")
            if not DYN: publish()
            for r in range(8):
                A(f"v_mul_f32 {vr(V_ACC+r)}, {sr(S_F+(r&3))}, {vr(V_ACC+r)}")
        for r in regs:
            A(f"v_cvt_pk_bf16_f32 {vr(r)}, {vr(r)}, {vr(r)}")
    def publish():
        P = T
        A(f"v_mov_b32 {vr(P+3)}, {vr(V_LS)}")
        A(f"s_lshl_b32 {sr(S_TMP+2)}, {sr(S_SW)}, 5")
        A(f"s_add_u32 {sr(S_TMP+2)}, {sr(S_TMP+2)}, {L_STAT}")
        A(f"v_lshl_add_u32 {vr(P+4)}, v0, 3, {sr(S_TMP+2)}")
        if DYN: xreduce("v_add_f32", [P+3], [P+2])
        A(f"v_mov_b32 {vr(P+2)}, {vr(V_MW)}")
        A("s_mov_b64 exec, 15")
        A(f"ds_write_b64 {vr(P+4)}, {vr(P+2,2)}")
        A("s_mov_b64 exec, -1")
        lds_inc(F_ST, P+6)
        stamp("pub")
    def dyn_qk(j):
        t = NS + j
        assert known[0] >= min(j + 1, CAP - 1) and (t - 3 in pv_done)
        sk = A.newlabel("Ldq")
        A(f"s_cmp_eq_u32 {sr(nr(j))}, 0")
        A(f"s_cbranch_scc1 {sk}")
        k_read(t)
        A("s_waitcnt lgkmcnt(0)")
        k_mfma(t)
        A.nop(8)
        s_round([t])
        r = [sslot(t) + i for i in range(4)]
        P = T
        A(f"v_max3_f32 {vr(P+4)}, {vr(r[0])}, {vr(r[1])}, {vr(r[2])}")
        A(f"v_max3_f32 {vr(P+4)}, {vr(P+4)}, {vr(r[3])}, {vr(V_MW)}")
        xreduce("v_max_f32", [P+4], [P])
        A(f"v_sub_f32 {vr(P+5)}, {vr(V_MW)}, {vr(P+4)}")
        A(f"v_mul_f32 {vr(P+5)}, {sr(S_C0)}, {vr(P+5)}")
        A(f"v_exp_f32 {vr(P+5)}, {vr(P+5)}")
        A(f"v_mov_b32 {vr(V_MW)}, {vr(P+4)}")
        A(f"v_mul_f32 {vr(P)}, {hex(f2u(-LOG2E))}, {vr(P+4)}")
        A(f"v_mov_b32 {vr(P+6)}, {sr(S_C0)}")
        for x in r: A(f"v_fma_f32 {vr(x)}, {vr(x)}, {vr(P+6)}, {vr(P)}")
        for x in r: A(f"v_exp_f32 {vr(x)}, {vr(x)}")
        for h in range(4):
            A(f"v_readlane_b32 {sr(S_FD + 4*(j%3) + h)}, {vr(P+5)}, {h}")
        A(f"v_add_f32 {vr(P+1)}, {vr(r[0])}, {vr(r[1])}")
        A(f"v_add_f32 {vr(P+2)}, {vr(r[2])}, {vr(r[3])}")
        A(f"v_add_f32 {vr(P+1)}, {vr(P+1)}, {vr(P+2)}")
        A(f"v_fma_f32 {vr(V_LS)}, {vr(V_LS)}, {vr(P+5)}, {vr(P+1)}")
        for x in r: A(f"v_cvt_pk_bf16_f32 {vr(x)}, {vr(x)}, {vr(x)}")
        if j + 1 < CAP:
            A(f"s_cmp_lg_u32 {sr(nr(j+1))}, 0")
            A(f"s_cbranch_scc1 {sk}")
        publish()
        A.label(sk)
    def dyn_pub0():
        sk = A.newlabel("Ldp")
        assert known[0] >= 0
        A(f"s_cmp_lg_u32 {sr(nr(0))}, 0")
        A(f"s_cbranch_scc1 {sk}")
        publish()
        A.label(sk)
    def dyn_pv(t):
        j = t - NS
        if j >= 0:
            for r in range(8):
                A(f"v_mul_f32 {vr(V_ACC+r)}, {sr(S_FD + 4*(j%3) + (r&3))}, {vr(V_ACC+r)}")
        pv(t)
        if o["debug"] and j >= -1: A(f"v_writelane_b32 v{V_STAMP}, {j+2}, 30")
        if -1 <= j < CAP - 1:
            assert known[0] >= j + 1
            A(f"s_cmp_eq_u32 {sr(nr(j+1))}, 0")
            A("s_cbranch_scc1 L_epi")
    flip = [0]
    def pv(t):
        base = vslot(t)
        s_ = sslot(t)
        pv_done.add(t)
        A.wait_vm(ops[("V", t)])
        for u in range(4):
            X = V_XA if flip[0] == 0 else V_XB
            flip[0] ^= 1
            A(f"v_and_b32 {vr(X+2)}, {vr(s_+u)}, {vr(V_M0)}")
            A(f"v_and_b32 {vr(X+3)}, {vr(s_+u)}, {vr(V_M1)}")
            A.nop(2)
            A(f"v_mfma_f32_16x16x32_bf16 {vr(V_ACC,4)}, {vr(X+2,4)}, {vr(base+4*u,4)}, {vr(V_ACC,4)}")
            A(f"v_mfma_f32_16x16x32_bf16 {vr(V_ACC+4,4)}, {vr(X,4)}, {vr(base+4*u,4)}, {vr(V_ACC+4,4)}")
    def q_get():
        A(f"v_and_b32 {vr(T+2)}, 3, {vr(V_J)}")
        A(f"v_lshlrev_b32 {vr(T+2)}, 8, {vr(T+2)}")
        A(f"v_lshl_add_u32 {vr(T+2)}, {vr(V_G)}, 4, {vr(T+2)}")
        A(f"v_add_u32 {vr(T+2)}, {L_Q}, {vr(T+2)}")
        stamp("q_wait")
        lds_wait(F_Q2, 1, T)
        for ks in range(4):
            A(f"ds_read_b128 {vr(V_Q+4*ks,4)}, {vr(T+2)} offset:{64*ks}")
        stamp("q_got")
    qp = o["qpos"]
    quanta = {n: [] for n in range(NSEQ + 1)}
    quanta[qp] += [q_get, lambda: qk_burst([0, 1, 2, 3])]
    quanta[qp+1] += [lambda: qk_burst([4, 5, 6, 7]), lambda: s_round([0, 1, 2, 3])]
    K8 = 8 + NV1
    NST = NS if DYN else 16
    quanta[qp+2] += [lambda: s_round([4, 5, 6, 7]), lambda: softmax(list(range(NV1)), True), lambda: stamp("sm1")]
    assert qp < K8
    for t in range(NV1):
        quanta[max(qp + 3 + t // 2, land_n(8 + t))] += [lambda t=t: pv(t)]
    for j in range(NST - 8):
        quanta[max(land_n(K8 + j), qp + 7)] += [lambda j=j: qk_one(8 + j)]
    nq = max(land_n(K8 + NST - 9), qp + 7)
    def fin_round():
        A.nop(8)
        s_round(list(pend)); pend.clear()
    quanta[nq] += [fin_round, lambda: softmax(list(range(NV1, NST)), False), lambda: stamp("sm2")]
    tail = []
    if DYN:
        quanta[max(nq, pos[("K", NS)])] += [dyn_pub0]
        ev = []
        for t in range(NV1, NS + CAP):
            ev.append((max(nq + 1, pos[("V", t)] + D), 1, t, lambda t=t: dyn_pv(t)))
        for j in range(CAP):
            ev.append((pos[("K", NS + j)] + D, 0, j, lambda j=j: dyn_qk(j)))
        for n, _, _, f in sorted(ev, key=lambda e: e[:3]):
            quanta[min(n, NSEQ)] += [f]
    else:
        for t in range(NV1, 16):
            n = max(nq + 1, land_n(16 + t))
            if n <= 31: quanta[n] += [lambda t=t: pv(t)]
            else: tail.append(t)
        assert not quanta[32]
    for n in range(NSEQ):
        issue(n)
        if o["kfirst"] and n == o["kfirst"] - 1: A("s_barrier")
        if n == D - 1:
            A(f"v_lshrrev_b32 {vr(T)}, 2, {vr(V_J)}")
            A(f"v_and_b32 {vr(T+1)}, 1, {vr(T)}")
            A(f"v_lshlrev_b32 {vr(T+1)}, 4, {vr(T+1)}")
            A(f"v_mov_b32 {vr(T+2)}, 0xffff")
            A(f"v_lshlrev_b32 {vr(T+2)}, {vr(T+1)}, {vr(T+2)}")
            A(f"v_cmp_gt_u32 vcc, 2, {vr(T)}")
            A.nop(2)
            A(f"v_cndmask_b32 {vr(V_M0)}, 0, {vr(T+2)}, vcc")
            A(f"v_cndmask_b32 {vr(V_M1)}, {vr(T+2)}, 0, vcc")
            for r in (V_XA, V_XA+1, V_XA+4, V_XA+5, V_XB, V_XB+1, V_XB+4, V_XB+5):
                A(f"v_mov_b32 {vr(r)}, 0")
            for r in range(8):
                A(f"v_mov_b32 {vr(V_ACC+r)}, 0")
            A(f"s_mov_b32 {sr(S_C0)}, {hex(f2u(LOG2E))}")
            stamp("ln_done")
        if n in (3, 5, 7, 9, 13, 17, 21, 25, 31): stamp(f"iss{n}")
        for f in quanta[n]: f()
    if DYN:
        for f in quanta[NSEQ]: f()
        A.label("L_epi")
        stamp("pv_done")
    A(f"s_lshl_b32 {sr(S_TMP+2)}, {sr(S_SW)}, 4")
    A(f"s_add_u32 {sr(S_TMP+2)}, {sr(S_TMP+2)}, {L_FAC}")
    A(f"v_mov_b32 {vr(T+2)}, {sr(S_TMP+2)}")
    A(f"v_lshlrev_b32 {vr(T+3)}, 3, v0")
    A(f"v_add_u32 {vr(T+3)}, {sr(S_RING)}, {vr(T+3)}")
    if o["stpre"]: lds_inc(F_SD, T+8)
    for t in tail[:-1]: pv(t)
    lds_wait(F_FAC, 1, T, sleep=0)
    FAC = T + 4
    A(f"ds_read_b128 {vr(FAC,4)}, {vr(T+2)}")
    stamp("fac_got")
    if DYN:
        A("s_waitcnt vmcnt(0)")
    else:
        pv(tail[-1])
        stamp("pv_done")
    A("s_waitcnt lgkmcnt(0)")
    A.nop(10)
    PO = V_KF
    for r in range(4):
        for hf in range(2):
            A(f"v_mul_f32 {vr(PO+2*r+hf)}, {vr(FAC+r)}, {vr(V_ACC+4*hf+r)}")
    for r in range(4):
        A(f"ds_write_b64 {vr(T+3)}, {vr(PO+2*r,2)} offset:{512*r}")
    A("s_waitcnt lgkmcnt(0)")
    A("s_barrier")

    A.label("L_fin")
    if o["debug"]:
        A(f"s_memrealtime s[100:101]")
        A("s_waitcnt lgkmcnt(0)")
        A(f"v_writelane_b32 v{V_STAMP}, s100, 31")
        A(f"s_mov_b32 {sr(SWS+2)}, {WS_SIZE}")
        A(f"s_lshl_b32 {sr(S_TMP+2)}, s4, 3")
        A(f"s_add_u32 {sr(S_TMP+2)}, {sr(S_TMP+2)}, {sr(S_WAVE)}")
        A(f"s_lshl_b32 {sr(S_TMP+2)}, {sr(S_TMP+2)}, 8")
        A(f"s_add_u32 {sr(S_TMP+2)}, {sr(S_TMP+2)}, {WS_DBG}")
        A(f"v_lshlrev_b32 v254, 2, v0")
        A(f"buffer_store_dword v{V_STAMP}, v254, {sr(SWS,4)}, {sr(S_TMP+2)} offen")
    A.label("L_end")
    A("s_endpgm")

    A.L.append('.section .rodata,"a"')
    A.L.append(".p2align 6")
    A.L.append(f".amdhsa_kernel {NAME}_kernel")
    A.L.append("  .amdhsa_next_free_vgpr 256")
    A.L.append("  .amdhsa_next_free_sgpr 102")
    A.L.append("  .amdhsa_accum_offset 256")
    A.L.append("  .amdhsa_group_segment_fixed_size 0")
    A.L.append("  .amdhsa_kernarg_size 104")
    A.L.append("  .amdhsa_user_sgpr_count 2")
    A.L.append("  .amdhsa_user_sgpr_kernarg_segment_ptr 1")
    A.L.append("  .amdhsa_system_sgpr_workgroup_id_x 1")
    A.L.append("  .amdhsa_float_denorm_mode_32 3")
    A.L.append(".end_amdhsa_kernel")
    if opts is not None: opts["stamps"] = stamps
    return "\n".join(A.L) + "\n"

if __name__ == "__main__":
    out = sys.argv[1] if len(sys.argv) > 1 else "k3.s"
    opts = {}
    for a in sys.argv[2:]:
        k, v = a.split("="); opts[k] = eval(v)
    open(out, "w").write(gen(opts))
    if opts.get("debug"):
        open(out + ".stamps", "w").write(" ".join(opts["stamps"]["a"]) + "\n" + " ".join(opts["stamps"]["s"]) + "\n")
    print("wrote", out)
```
